```python
import torch

def _softmax(x, axis=-1):
    return torch.softmax(x, dim=axis)
def _gelu(x):
    return torch.nn.functional.gelu(x, approximate="tanh")
def _silu(x):
    return torch.nn.functional.silu(x)
def _sigmoid(x):
    return torch.sigmoid(x)
def _layernorm(x, axis=-1, eps=1e-5):
    m = x.mean(dim=axis, keepdim=True)
    v = x.var(dim=axis, keepdim=True, unbiased=False)
    return (x - m) / torch.sqrt(v + eps)
def _scatter_add(tgt, idx, src, axis=0):
    return tgt.clone().index_add_(axis, idx, src)
def _segment_sum(src, seg, n):
    out = torch.zeros((n,) + src.shape[1:], dtype=src.dtype)
    return out.index_add_(0, seg, src)
def _pad(x, pw):
    flat = tuple(v for pair in reversed(pw) for v in pair)
    return torch.nn.functional.pad(x, flat)

kernel_name = 'recurrent_scan__sliding_block_cached__mixer_token_mlp__prompt'

def setup_inputs():

    _w = (lambda a: (lambda t: t.to(torch.bfloat16) if t.is_floating_point() else t)(torch.as_tensor(a)))
    def _A_setup():
        B, Sq, D = 1, 2048, 576
        Hq, Hkv, Sk, Dh = 32, 16, 2048, 128
        assert Hq % Hkv == 0, (Hq, Hkv)
        return {
            "x": _w((lambda *s: torch.randn(*s, dtype=torch.bfloat16) * 0.05)(B, Sq, D)),
            "k_cache": _w((lambda *s: torch.randn(*s, dtype=torch.bfloat16) * 3.2)(B, Hkv, Sk, Dh)),
            "v_cache": _w((lambda *s: torch.randn(*s, dtype=torch.bfloat16) * 3.2)(B, Hkv, Sk, Dh)),
            "wq": _w((lambda *s: torch.randn(*s, dtype=torch.bfloat16) * 3.2)(D, Hq * Dh) * (D ** -0.5)),
            "wo": _w((lambda *s: torch.randn(*s, dtype=torch.bfloat16) * 3.2)(Hq * Dh, D) * ((Hq * Dh) ** -0.5)),
        }
    _A_in = _A_setup()

    def _B_setup():
        B, S, D, F = 1, 2048, 576, 4608
        return {
            "x": _w((lambda *s: torch.randn(*s, dtype=torch.bfloat16) * 0.05)(B, S, D)),
            "w1": _w((lambda *s: torch.randn(*s, dtype=torch.bfloat16) * 3.2)(S, F) * (S ** -0.5)),
            "b1": _w((lambda *s: torch.randn(*s, dtype=torch.bfloat16) * 3.2)(F) * 0.02),
            "w2": _w((lambda *s: torch.randn(*s, dtype=torch.bfloat16) * 0.4)(F, S) * (F ** -0.5)),
            "b2": _w((lambda *s: torch.randn(*s, dtype=torch.bfloat16) * 0.4)(S) * 0.02),
        }
    _B_in = _B_setup()

    return {
        "A_x": _A_in["x"],
        "A_k_cache": _A_in["k_cache"],
        "A_v_cache": _A_in["v_cache"],
        "A_wq": _A_in["wq"],
        "A_wo": _A_in["wo"],
        "B_x": _B_in["x"],
        "B_w1": _B_in["w1"],
        "B_b1": _B_in["b1"],
        "B_w2": _B_in["w2"],
        "B_b2": _B_in["b2"],
    }

def reference(A_x, A_k_cache, A_v_cache, A_wq, A_wo, B_x, B_w1, B_b1, B_w2, B_b2):
    def _A_ref(x, k_cache, v_cache, wq, wo):
        B, Sq, D = x.shape
        Hq, Dh = 32, 128
        Hkv, Sk = k_cache.shape[1], k_cache.shape[2]
        W = min(4096, max(256, Sk // 4))
        rep = Hq // Hkv
        q = (lambda x, *d: x.permute(*d))((x @ wq).reshape(B, Sq, Hq, Dh), 0, 2, 1, 3)
        k = (lambda x, n, axis: torch.repeat_interleave(x, n, dim=axis))(k_cache[:, :, Sk - W:, :], rep, axis=1)
        v = (lambda x, n, axis: torch.repeat_interleave(x, n, dim=axis))(v_cache[:, :, Sk - W:, :], rep, axis=1)
        scores = torch.einsum("bhqd,bhkd->bhqk", q, k) * (Dh ** -0.5)
        p = _softmax(scores, axis=-1)
        o = torch.einsum("bhqk,bhkd->bhqd", p, v)
        return (lambda x, *d: x.permute(*d))(o, 0, 2, 1, 3).reshape(B, Sq, Hq * Dh) @ wo

    def _B_ref(x, w1, b1, w2, b2):
        B, S, D = x.shape
        h = _layernorm(x, axis=-1)
        u = torch.einsum("bsd,sf->bdf", h, w1) + b1
        u = _gelu(u)
        y = torch.einsum("bdf,fs->bds", u, w2) + b2
        return (lambda x, *d: x.permute(*d))(y, 0, 2, 1)

    x = A_x
    xn = _layernorm(x, axis=-1)
    s = _A_ref(xn, A_k_cache, A_v_cache, A_wq, A_wo)
    g = _silu(_B_ref(xn, B_w1, B_b1, B_w2, B_b2))
    return x + s * g
```

```python
KNAME = "recurrent_scan__sliding_block_cached__mixer_token_mlp__prompt"
class Asm:
    def __init__(self):
        self.lines = []
    def __call__(self, s):
        for l in s.strip("\n").split("\n"):
            self.lines.append(l)
    def text(self):
        return "\n".join(self.lines) + "\n"

def kernel_header(name):
    return f""".p2align 8
.globl {name}
.type {name},@function
{name}:
"""
def kernel_desc(name, vgpr, sgpr=96, accum=None, extra=""):
    if accum is None: accum = min(256, (vgpr + 3) // 4 * 4)
    return f""".amdhsa_kernel {name}
  .amdhsa_next_free_vgpr {vgpr}
  .amdhsa_next_free_sgpr {sgpr}
  .amdhsa_accum_offset {accum}
  .amdhsa_group_segment_fixed_size 0
  .amdhsa_kernarg_size 104
  .amdhsa_user_sgpr_count 2
  .amdhsa_user_sgpr_kernarg_segment_ptr 1
  .amdhsa_system_sgpr_workgroup_id_x 1
{extra}.end_amdhsa_kernel
"""
```

```python
import re

class I:
    __slots__ = ("t", "tag", "cond", "vm", "lg")
    def __init__(self, t, tag=None, cond=False, vm=None, lg=None):
        self.t = t.strip(); self.tag = tag; self.cond = cond; self.vm = vm; self.lg = lg
    def op(self): return self.t.split()[0] if self.t else ""
    def is_vm(self):
        o = self.op(); return o.startswith("buffer_") or o.startswith("global_")
    def is_ds(self): return self.op().startswith("ds_")
    def is_smem(self):
        o = self.op(); return o.startswith("s_load") or o.startswith("s_memtime") or o.startswith("s_memrealtime")

def W(vm=None, lg=None):
    return I("WAIT", vm=vm, lg=lg)

def L(x, tag=None):
    out = []
    for l in x.strip("\n").split("\n"):
        l = l.split(";")[0].strip()
        if l: out.append(I(l, tag))
    return out

class Prog:
    def __init__(self):
        self.s = []
    def __call__(self, x, tag=None):
        if isinstance(x, I): self.s.append(x)
        elif isinstance(x, str): self.s.extend(L(x, tag))
        else:
            for y in x: self(y, tag)
    def mark(self, name): self.s.append(I("MARK " + name))

def resolve(stream):
    vm = []; ds = []
    out = []
    retired = -1
    for ins in stream:
        if ins.t == "WAIT":
            parts = []
            if ins.vm is not None:
                if ins.vm == 0: n = 0; retired = len(vm) - 1
                else:
                    tags = ins.vm if isinstance(ins.vm, (list, tuple, set)) else [ins.vm]
                    for tg in tags: assert any(t == tg for t, c in vm), f"wait on unissued tag {tg}"
                    idx = max([i for i, (t, c) in enumerate(vm) if t in tags])
                    if idx <= retired: n = None
                    else:
                        n = min(63, sum(1 for t, c in vm[idx + 1:] if not c)); retired = idx
                if n is not None:
                    parts.append(f"vmcnt({n})")
            if ins.lg is not None:
                if ins.lg == 0: n = 0
                else:
                    tags = ins.lg if isinstance(ins.lg, (list, tuple, set)) else [ins.lg]
                    idx = max([i for i, t in enumerate(ds) if t in tags], default=None)
                    n = None if idx is None else min(15, len(ds) - idx - 1)
                if n is not None: parts.append(f"lgkmcnt({n})")
            if parts: out.append(I("s_waitcnt " + " ".join(parts)))
            continue
        if ins.is_vm(): vm.append((ins.tag, ins.cond))
        if ins.is_ds(): ds.append(ins.tag)
        out.append(ins)
    return out

def weave(M, slots):
    out = list(slots.get(-1, []))
    for i, m in enumerate(M):
        out.append(m); out.extend(slots.get(i, []))
    return out

def cost(ins):
    o = ins.op()
    if o.endswith(":") or o == "MARK": return 0
    if o.startswith(("v_exp", "v_rcp", "v_rsq", "v_log", "v_sqrt")): return 2
    if ins.is_vm(): return 2
    return 1

class Gaps:
    def __init__(self, n, cap=2):
        self.n = n; self.cap = cap; self.use = [0] * n; self.sl = {}
    def put(self, g, items, force=False):
        if isinstance(items, I): items = [items]
        c = sum(cost(x) for x in items)
        g = max(0, min(g, self.n - 1)); p = g
        if not force:
            while p < self.n and self.use[p] + c > max(self.cap, c) and not (self.use[p] == 0): p += 1
            if p >= self.n:
                p = min(range(g, self.n), key=lambda q: self.use[q])
        self.use[p] += c; self.sl.setdefault(p, []).extend(items)
        return p
    def spread(self, groups, lo, hi, ordered=True):
        n = len(groups); last = lo
        for i, gr in enumerate(groups):
            g = lo + (i * (hi - lo + 1)) // n
            if ordered: g = max(g, last)
            last = self.put(g, gr)
        return last
    def free(self): return sum(max(0, self.cap - u) for u in self.use)

def fold(stream, cnt_sreg, prefix):
    blocks = []; cur = []
    for ins in stream:
        if ins.op() == "MARK":
            blocks.append(cur); cur = [ins]
        else: cur.append(ins)
    blocks.append(cur)
    txt = ["\n".join(x.t for x in b if x.op() != "MARK") for b in blocks]
    per = [int(b[0].t.split()[1][1:]) if b and b[0].op() == "MARK" else 0 for b in blocks]
    out = []; i = 0; nl = 0
    while i < len(blocks):
        p = per[i]
        reps = 1
        if p:
            while i + (reps + 1) * p <= len(blocks) and all(txt[i + k] == txt[i + reps * p + k] for k in range(p)): reps += 1
        if reps >= 2:
            lab = f"{prefix}_L{nl}"; nl += 1
            out.append(I(f"s_mov_b32 {cnt_sreg}, {reps}")); out.append(I(f"{lab}:"))
            body = [x for k in range(p) for x in blocks[i + k] if x.op() != "MARK"]
            out.extend(body)
            out.extend(L(f"s_sub_u32 {cnt_sreg}, {cnt_sreg}, 1\ns_cmp_lg_u32 {cnt_sreg}, 0\ns_cbranch_scc1 {lab}"))
            i += reps * p
        else:
            out.extend(x for x in blocks[i] if x.op() != "MARK"); i += 1
    return out

_reg = re.compile(r"\b([vas])(?:\[(\d+):(\d+)\]|(\d+))(?![\w])")
def regs(s):
    r = set()
    for m in _reg.finditer(s):
        k = m.group(1)
        if m.group(2): r.update((k, i) for i in range(int(m.group(2)), int(m.group(3)) + 1))
        else: r.add((k, int(m.group(4))))
    if re.search(r"\bvcc\b", s): r.add(("s", "vcc"))
    if re.search(r"\bm0\b", s): r.add(("s", "m0"))
    if re.search(r"\bexec\b", s): r.add(("s", "exec"))
    return r
def split_ops(t):
    o = t.split(None, 1)
    if len(o) == 1: return o[0], []
    return o[0], [x.strip() for x in o[1].split(",")]
TRANS = ("v_exp", "v_rcp", "v_rsq", "v_log", "v_sqrt", "v_sin", "v_cos")
def info(ins):
    op, a = split_ops(ins.t)
    d = dict(op=op, kind="other", w=set(), r=set())
    if op.startswith("v_mfma"):
        d.update(kind="mfma", w=regs(a[0]), ab=regs(a[1]) | regs(a[2]), c=regs(a[3]), passes=4 if "16x16x32" in op else 8)
        d["r"] = d["ab"] | d["c"]
    elif op.startswith("v_"):
        d["kind"] = "valu"; d["trans"] = op.startswith(TRANS)
        d["w"] = regs(a[0]); d["r"] = set().union(*[regs(x) for x in a[1:]]) if len(a) > 1 else set()
        if op.startswith(("v_permlane16_swap", "v_permlane32_swap")): d["w"] |= regs(a[1]); d["r"] |= regs(a[0]); d["perm"] = True
        if op.startswith(("v_fmac", "v_dot2c")): d["r"] |= regs(a[0])
        if op.startswith(("v_add_co", "v_addc_co", "v_sub_co")): d["w"] |= regs(a[1])
        if "dpp" in op or "row_" in ins.t or "quad_perm" in ins.t: d["dpp"] = True; d["r"] |= regs(a[0])
        if op.startswith(("v_readfirstlane", "v_readlane")): d["rl"] = True
    elif op.startswith("ds_"):
        d["kind"] = "ds"
        if "read" in op or "bpermute" in op: d["w"] = regs(a[0]); d["r"] = set().union(*[regs(x) for x in a[1:]])
        else: d["r"] = set().union(*[regs(x) for x in a])
    elif op.startswith(("buffer_", "global_")):
        d["kind"] = "vm"
        if " lds" in ins.t or "_lds_" in op: d["r"] = regs(ins.t) | {("s", "m0")}; d["dma"] = True
        elif "load" in op: d["w"] = regs(a[0]); d["r"] = set().union(*[regs(x) for x in a[1:]])
        else:
            d["r"] = regs(ins.t)
            if "x4" in op or "x3" in op: d["wide"] = regs(a[0] if op.startswith("buffer_") else a[1])
    elif op.startswith("s_"):
        d["kind"] = "salu"
        if a and not op.startswith(("s_cmp", "s_cbranch", "s_branch", "s_waitcnt", "s_nop", "s_barrier", "s_setprio", "s_sleep")):
            d["w"] = regs(a[0]); d["r"] = set().union(*[regs(x) for x in a[1:]]) if len(a) > 1 else set()
    d["ws"] = (int(a[0]) + 1) if op == "s_nop" else (0 if (op.endswith(":") or op == "MARK") else 1)
    return d
def check(stream, name=""):
    inf = [info(x) for x in stream]
    bad = 0
    for j, c in enumerate(inf):
        if c["ws"] == 0: continue
        dist = 0
        for i in range(j - 1, max(-1, j - 24), -1):
            p = inf[i]
            need = 0; why = ""
            def upd(n, w):
                nonlocal need, why
                if n > need: need, why = n, w
            if p["kind"] == "mfma":
                big = 8 if p["passes"] == 4 else 12
                if c["kind"] in ("valu", "ds", "vm") and (p["w"] & (c["r"] | c["w"])): upd(big, "mfmaD->use")
                if c["kind"] == "mfma":
                    if p["w"] & c["ab"]: upd(big, "mfmaD->AB")
                    if (p["w"] & c["c"]) and p["w"] != c["c"]: upd(big - 2, "mfmaD->C partial")
                if c["kind"] == "valu" and (p["c"] & c["w"]): upd(3 if p["passes"] == 4 else 7, "mfmaC WAR")
            if p["kind"] == "valu":
                vw = {x for x in p["w"] if x[0] != "s"}; sw = {x for x in p["w"] if x[0] == "s"}
                if c["kind"] == "mfma" and (vw & c["r"]): upd(2, "valu->mfma")
                if c["kind"] == "valu":
                    if p.get("trans") and (vw & c["r"]): upd(1, "trans->valu")
                    if (c.get("perm") or c.get("dpp")) and (vw & c["r"]): upd(2, "valu->perm/dpp")
                    if c.get("rl") and (vw & c["r"]): upd(1, "valu->readlane")
                    if sw & c["r"]: upd(2, "valu sgpr->valu")
                if c["kind"] == "vm" and (sw & c["r"]): upd(5, "valu sgpr->vmem")
            if p["kind"] == "salu" and ("s", "m0") in p["w"] and c.get("dma"): upd(1, "m0->dma")
            if p["kind"] == "vm" and p.get("wide") and c["kind"] == "valu" and (p["wide"] & c["w"]): upd(2, "store data WAR")
            if need > dist:
                print(f"HAZARD[{name}] {why}: need {need} have {dist}: '{stream[i].t}' -> '{stream[j].t}'"); bad += 1
            dist += p["ws"]
            if dist > 12: break
    return bad

def text(stream):
    return "\n".join((x.t if x.t.endswith(":") else "  " + x.t) for x in stream if x.op() != "MARK") + "\n"
```

```python
import sys
from fw import *
from asmlib import kernel_header, kernel_desc

WS_OF = 0
WS_UF = 16 << 20
WS_HF = 22 << 20
WS_ST = 25 << 20
WS_PART = 26 << 20
WS_TS = 60 << 20
WS_SIZE = 64 << 20
MF = "v_mfma_f32_16x16x32_bf16"
CSCALE = 0x3e0293ee
import struct
def f2u(x): return struct.unpack("<I", struct.pack("<f", x))[0]
CS_Q = f2u(128 ** -0.5 * 1.4426950408889634)

def r4(k, i): return f"{k}[{i}:{i+3}]"
def r2(k, i): return f"{k}[{i}:{i+1}]"
def srd(d, lo, nbytes): return f"s_mov_b32 s{d}, s{lo}\ns_mov_b32 s{d+1}, s{lo+1}\ns_mov_b32 s{d+2}, {nbytes}\ns_mov_b32 s{d+3}, 0x20000"

TS = False
def stamp(p, i):
    if TS: p(f"s_memtime s[{64+4*i}:{65+4*i}]\ns_memrealtime s[{66+4*i}:{67+4*i}]")
def stamp_out(p, n, kidx, endlab):
    if not TS: return
    p(f"s_waitcnt vmcnt(0)")
    stamp(p, n - 1)
    p(f"""s_waitcnt lgkmcnt(0)
    v_cmp_eq_u32 vcc, 0, v0
    s_and_saveexec_b64 s[60:61], vcc
    s_cbranch_execz {endlab}
    s_mul_i32 s3, s2, 128
    s_add_u32 s3, s3, {WS_TS + kidx * 65536}
    v_mov_b32 v1, s3""")
    for i in range(n):
        for e in range(4): p(f"v_mov_b32 v{4+e}, s{64+4*i+e}")
        p(f"buffer_store_dwordx4 v[4:7], v1, s[12:15], 0 offen offset:{16*i}\ns_nop 1")

def red32(p, v, t):
    for n in (8, 4, 2, 1):
        p(f"s_nop 1\nv_add_f32_dpp v{v}, v{v}, v{v} row_ror:{n} row_mask:0xf bank_mask:0xf")
    p(f"v_mov_b32 v{t}, v{v}\ns_nop 1\nv_permlane16_swap_b32 v{v}, v{t}\nv_add_f32 v{v}, v{v}, v{t}")

def gen_H(p):
    p(f"""
    s_load_dwordx2 s[4:5], s[0:1], 0
    s_load_dwordx2 s[6:7], s[0:1], 96
    v_and_b32 v2, 31, v0
    v_lshrrev_b32 v3, 5, v0
    v_and_b32 v4, 3, v3
    v_lshrrev_b32 v5, 2, v3
    v_lshl_add_u32 v4, v5, 4, v4
    s_lshr_b32 s16, s2, 2
    s_and_b32 s17, s2, 3
    s_lshl_b32 s18, s16, 5
    s_lshl_b32 s19, s17, 2
    s_add_u32 s18, s18, s19
    v_add_u32 v4, s18, v4
    v_mul_u32_u24 v5, 1152, v4
    v_lshl_add_u32 v5, v2, 2, v5
    s_waitcnt lgkmcnt(0)
    {srd(8, 4, 2048*1152)}
    {srd(12, 6, WS_SIZE)}
    """)
    for t in range(9): p(f"buffer_load_dword v{10+t}, v5, s[8:11], 0 offen offset:{128*t}")
    p("s_waitcnt vmcnt(0)")
    X = 20
    def unpack():
        for t in range(9): p(f"v_lshlrev_b32 v{X+2*t}, 16, v{10+t}\nv_and_b32 v{X+2*t+1}, 0xffff0000, v{10+t}")
    def ln(first):
        p(f"v_add_f32 v40, v{X}, v{X+1}")
        for e in range(2, 18): p(f"v_add_f32 v40, v40, v{X+e}")
        red32(p, 40, 41)
        p(f"v_mul_f32 v40, {f2u(-1.0/576):#x}, v40")
        for e in range(18): p(f"v_add_f32 v{X+e}, v40, v{X+e}")
        p(f"v_mul_f32 v42, v{X}, v{X}")
        for e in range(1, 18): p(f"v_fmac_f32 v42, v{X+e}, v{X+e}")
        red32(p, 42, 41)
        p(f"v_mov_b32 v41, {f2u(1e-5):#x}\nv_fmac_f32 v41, {f2u(1.0/576):#x}, v42\nv_rsq_f32 v41, v41\ns_nop 0")
        for e in range(18): p(f"v_mul_f32 v{X+e}, v41, v{X+e}")
        for t in range(9): p(f"v_cvt_pk_bf16_f32 v{10+t}, v{X+2*t}, v{X+2*t+1}")
        if first:
            p(f"""v_mov_b32 v44, v40
            v_mul_f32 v45, {CS_Q:#x}, v41
            v_lshlrev_b32 v6, 3, v4
            v_add_u32 v6, {WS_ST}, v6
            v_cmp_eq_u32 vcc, 0, v2
            s_and_saveexec_b64 s[20:21], vcc
            buffer_store_dwordx2 v[44:45], v6, s[12:15], 0 offen
            s_mov_b64 exec, s[20:21]""")
    unpack(); ln(True); unpack(); ln(False)
    p("v_mul_u32_u24 v6, 1152, v3\nv_lshl_add_u32 v6, v2, 2, v6")
    for t in range(9): p(f"ds_write_b32 v6, v{10+t} offset:{128*t}")
    p("""s_waitcnt lgkmcnt(0)
    s_barrier
    v_cmp_gt_u32 vcc, 144, v0
    s_and_saveexec_b64 s[20:21], vcc
    s_cbranch_execz K1_fin
    v_lshlrev_b32 v6, 3, v0""")
    for j in range(8): p(f"ds_read_b64 v[{20+2*j}:{21+2*j}], v6 offset:{1152*j}")
    p(f"""v_lshrrev_b32 v7, 2, v0
    v_lshlrev_b32 v7, 10, v7
    v_and_b32 v8, 3, v0
    v_lshl_add_u32 v7, v8, 6, v7
    s_mul_i32 s18, s16, {36*1024}
    s_lshl_b32 s19, s17, 8
    s_add_u32 s18, s18, s19
    s_add_u32 s18, s18, {WS_HF}
    s_mov_b32 s22, 0x05040100
    s_mov_b32 s23, 0x07060302
    s_waitcnt lgkmcnt(0)""")
    for e in range(4):
        for jp in range(4):
            p(f"v_perm_b32 v{40+4*e+jp}, v{20+2*(2*jp+1)+(e>>1)}, v{20+2*(2*jp)+(e>>1)}, s{22+(e&1)}")
        p(f"buffer_store_dwordx4 v[{40+4*e}:{43+4*e}], v7, s[12:15], s18 offen offset:{16*e}")
    p("K1_fin:\ns_mov_b64 exec, -1")

XS = 32768; WB = 98304; WSL = 8448
MSL = 29184; NM = 5
CB = 58368; CSL = 16640; K0B = 148992; CSB = 157184
QF = 192
def gen_K2(p, opts):
    nt_w = " nt" if opts.get("nt", 1) else ""
    p(f"""
    s_load_dwordx4 s[44:47], s[0:1], 0
    s_load_dwordx4 s[48:51], s[0:1], 16
    s_load_dwordx4 s[52:55], s[0:1], 48
    s_load_dwordx2 s[6:7], s[0:1], 96
    v_and_b32 v2, 63, v0
    v_lshrrev_b32 v3, 6, v0
    s_and_b32 s16, s2, 7
    v_readfirstlane_b32 s18, v3
    s_lshr_b32 s17, s2, 3
    s_and_b32 s19, s16, 3
    s_lshl_b32 s19, s19, 3
    s_lshr_b32 s3, s16, 2
    s_lshl_b32 s3, s3, 2
    s_add_u32 s19, s19, s3
    s_and_b32 s3, s17, 3
    s_add_u32 s19, s19, s3
    s_lshr_b32 s5, s17, 2
    s_lshl_b32 s5, s5, 2
    s_add_u32 s5, s5, s18
    """)
    p(f"""
    v_lshrrev_b32 v4, 3, v2
    v_and_b32 v5, 7, v2
    v_lshrrev_b32 v6, 1, v4
    v_xor_b32 v6, v6, v5
    v_mul_u32_u24 v4, 1152, v4
    s_mul_i32 s3, s5, {64*1152}
    v_add_u32 v4, s3, v4
    v_lshl_add_u32 v10, v6, 4, v4
    v_xor_b32 v6, 4, v6
    v_lshl_add_u32 v11, v6, 4, v4
    v_add_u32 v11, {8*1152-1024}, v11
    """)
    for q in range(2, 8):
        p(f"v_add_u32 v{10+q}, {(q & ~1)*8*1152 - ((q & 3) - (q & 1))*1024}, v{10+(q&1)}")
    p(f"""
    v_lshrrev_b32 v4, 4, v2
    v_and_b32 v5, 1, v4
    v_lshlrev_b32 v5, 2, v5
    v_lshrrev_b32 v4, 1, v4
    v_lshl_add_u32 v4, v4, 4, v5
    s_and_b32 s3, s18, 1
    s_lshl_b32 s3, s3, 1
    s_lshr_b32 s4, s18, 1
    s_lshl_b32 s4, s4, 3
    s_add_u32 s3, s3, s4
    v_add_u32 v4, s3, v4
    v_lshlrev_b32 v4, 13, v4
    v_and_b32 v5, 15, v2
    v_lshl_add_u32 v4, v5, 4, v4
    s_lshl_b32 s3, s19, 8
    v_add_u32 v18, s3, v4
    v_add_u32 v19, {8192-1056}, v18
    s_lshl_b32 s56, s18, 13
    s_mul_i32 s57, s18, {2*1056}
    s_mov_b32 s58, 0
    s_mov_b32 s59, 0
    s_waitcnt lgkmcnt(0)
    {srd(20, 44, 2048*1152)}
    {srd(24, 50, 576*8192)}
    """)
    def dmaX(n, half):
        G = [[I(f"s_add_u32 m0, s56, {(n % 3)*XS + half*4096}")]]
        for q in range(4):
            G.append([I(f"buffer_load_dwordx4 v{10+4*half+q}, s[20:23], s58 offen offset:{1024*q} lds", tag=f"x{n}")])
        if half: G.append([I("s_add_u32 s58, s58, 128")])
        return G
    def dmaW(t):
        return [[I(f"s_add_u32 m0, s57, {WB + (t % 6)*WSL}")],
                [I(f"buffer_load_dwordx4 v18, s[24:27], s59 offen{nt_w} lds", tag=f"w{t}")],
                [I(f"buffer_load_dwordx4 v19, s[24:27], s59 offen offset:1056{nt_w} lds", tag=f"w{t}")],
                [I(f"s_add_u32 s59, s59, {32*8192}")]]
    def flat(G):
        out = []
        for g in G:
            out.extend(g)
            if "m0" in g[0].t: out.append(I("s_nop 0"))
        return out
    p(flat(dmaX(0, 0) + dmaW(0) + dmaX(0, 1) + dmaW(1) + dmaX(1, 0) + dmaX(1, 1) + dmaW(2) + dmaW(3)))
    p(f"""
    {srd(28, 46, 16*2048*256)}
    {srd(32, 48, 16*2048*256)}
    {srd(36, 52, 2048*9216)}
    {srd(40, 54, 9216)}
    {srd(12, 6, WS_SIZE)}
    """)
    p(f"""
    v_lshrrev_b32 v4, 4, v2
    v_bfe_u32 v5, v2, 2, 2
    v_and_b32 v6, 1, v4
    v_lshl_add_u32 v5, v6, 2, v5
    v_mul_u32_u24 v5, 1056, v5
    v_lshrrev_b32 v6, 1, v4
    v_lshl_add_u32 v5, v6, 9, v5
    v_and_b32 v6, 3, v2
    v_lshl_add_u32 v5, v6, 3, v5
    v_add_u32 v5, {WB}, v5
    """)
    for kp in range(4):
        p(f"s_xor_b32 s3, s18, {kp}\ns_lshl_b32 s3, s3, 6\nv_add_u32 v{20+kp}, s3, v5")
    p(f"""
    v_and_b32 v5, 15, v2
    v_lshrrev_b32 v6, 1, v5
    v_xor_b32 v6, v6, v4
    v_lshlrev_b32 v5, 7, v5
    v_add_u32 v5, s56, v5
    v_lshl_add_u32 v24, v6, 4, v5
    v_xor_b32 v6, 4, v6
    v_lshl_add_u32 v25, v6, 4, v5
    v_add_u32 v26, 65536, v24
    v_add_u32 v27, 65536, v25
    """)
    for e in range(4): p(f"v_mov_b32 v{36+e}, 0x3f803f80")
    p(f"""
    s_min_u32 s3, s17, 26
    s_mul_i32 s4, s16, 27
    s_add_u32 s3, s3, s4
    s_mul_i32 s8, s3, 10923
    s_lshr_b32 s8, s8, 16
    s_mul_i32 s4, s8, 6
    s_sub_u32 s9, s3, s4
    v_lshrrev_b32 v4, 4, v2
    v_lshlrev_b32 v4, 3, v4
    s_lshr_b32 s3, s18, 1
    s_lshl_b32 s3, s3, 5
    s_and_b32 s4, s18, 1
    s_lshl_b32 s4, s4, 2
    s_add_u32 s3, s3, s4
    v_add_u32 v4, s3, v4
    v_mul_u32_u24 v4, 9216, v4
    v_and_b32 v5, 15, v2
    v_lshl_add_u32 v4, v5, 4, v4
    s_lshl_b32 s3, s8, 8
    v_add_u32 v28, s3, v4
    v_add_u32 v29, {9216-1056}, v28
    v_add_u32 v30, {2*(9216-1056)}, v28
    v_add_u32 v31, {3*(9216-1056)}, v28
    s_lshr_b32 s3, s18, 1
    s_mul_i32 s3, s3, 36
    s_mul_i32 s4, s9, 6
    s_add_u32 s3, s3, s4
    s_and_b32 s4, s18, 1
    s_mul_i32 s4, s4, 3
    s_add_u32 s3, s3, s4
    s_lshl_b32 s3, s3, 10
    s_add_u32 s3, s3, {WS_HF}
    v_lshl_add_u32 v32, v2, 4, s3
    s_mul_i32 s60, s18, {4*1056}
    s_mul_i32 s61, s18, 3072
    s_add_u32 s61, s61, 16896
    s_mov_b32 s62, 0
    s_mov_b32 s63, 0
    """)
    def dmaM(n):
        b = (n % NM) * MSL
        G = [[I(f"s_add_u32 m0, s60, {b}")]]
        for q in range(4): G.append([I(f"buffer_load_dwordx4 v{28+q}, s[36:39], s62 offen offset:{1056*q}{nt_w} lds", tag=f"m{n}")])
        G.append([I(f"s_add_u32 m0, s61, {b}"), I(f"s_add_u32 s62, s62, {64*9216}")])
        for q in range(3): G.append([I(f"buffer_load_dwordx4 v32, s[12:15], s63 offen offset:{1024*q} lds", tag=f"m{n}")])
        G.append([I(f"s_add_u32 s63, s63, {2*36*1024}")])
        return G
    p(f"""
    s_lshl_b32 s3, s8, 8
    s_and_b32 s4, s18, 1
    s_lshl_b32 s4, s4, 7
    s_add_u32 s3, s3, s4
    v_lshrrev_b32 v4, 4, v2
    v_lshl_add_u32 v4, v4, 3, s3
    v_and_b32 v5, 15, v2
    s_lshl_b32 s3, s5, 9
    s_add_u32 s3, s3, {WS_ST}
    v_lshl_add_u32 v5, v5, 3, s3
    """)
    for f in range(4): p(f"buffer_load_dwordx2 v[{40+2*f}:{41+2*f}], v4, s[40:43], 0 offen offset:{32*f}", tag="small")
    for q in range(4): p(f"buffer_load_dwordx2 v[{48+2*q}:{49+2*q}], v5, s[12:15], 0 offen offset:{128*q}", tag="small")

    def qA(s, t): return 48 * s + 4 * t
    def qB(s, q): return 48 * s + 32 + 4 * q
    def qacc(t, q): return 64 + (t * 4 + q) * 4
    CSA = 56
    def qreads(t):
        s = t % 2; n = t // 2; kk = t % 2; sl = n % 3
        R = [I(f"ds_read_b128 {r4('a', qB(s,q))}, v{24 + kk + (2 if sl == 2 else 0)} offset:{(sl & 1)*XS*(sl != 2) + 2048*q}") for q in range(4)]
        for tl in range(8):
            for h in range(2):
                R.append(I(f"ds_read_b64_tr_b16 {r2('a', qA(s,tl)+2*h)}, v{20+tl//2} offset:{(t % 6)*WSL + (tl & 1)*32 + h*256}"))
        return R
    def qmf(t):
        s = t % 2; M = []
        for tl in range(8):
            for q in range(4):
                d = r4('v', qacc(tl, q))
                M.append(I(f"{MF} {d}, {r4('a', qA(s,tl))}, {r4('a', qB(s,q))}, {'0' if t == 0 else d}"))
            if tl < 2:
                d = r4('v', CSA + 4 * tl)
                M.append(I(f"{MF} {d}, {r4('a', qA(s,tl))}, v[36:39], {'0' if t == 0 else d}"))
        return M
    p(W(vm=["x0", "w0"])); p("s_barrier"); stamp(p, 1)
    p(qreads(0)); p(W(vm=["w1"], lg=0)); p("s_barrier")
    extra = {0: dmaX(2, 0) + dmaW(4), 1: dmaX(2, 1) + dmaW(5)}
    for t in range(18):
        M = qmf(t); g = Gaps(len(M))
        D = []
        if t in extra: D += extra[t]
        if t >= 2:
            if t + 4 < 18 and t == 2: pass
        wl = []
        if t == 2: wl = [6, 7]
        elif t == 3: wl = [8, 9]
        elif t >= 4 and t + 6 < 18: wl = [t + 6]
        xl = []
        if t >= 2:
            n = (t - 2) // 2
            if n + 3 < 9: xl = [(n + 3, t % 2)]
        for n_, h_ in xl: D += dmaX(n_, h_)
        for w_ in wl: D += dmaW(w_)
        if t == 14: D += dmaM(0)
        if t == 16: D += dmaM(1)
        if t == 17: D += dmaM(2)
        if D: g.spread(D, 0, len(M) - 2)
        if t < 17:
            g.spread([[r] for r in qreads(t + 1)], 0, len(M) - 7)
            need = [f"w{t+2}", f"x{(t+2)//2}"] if t + 2 < 18 else None
            g.put(len(M) - 1, [W(vm=need, lg=0), I("s_barrier")], force=True)
        p(weave(M, g.sl))
    stamp(p, 2)
    p(f"""
    v_lshrrev_b32 v4, 4, v2
    s_lshl_b32 s3, s18, 7
    s_add_u32 s3, s3, {CSB}
    v_lshl_add_u32 v5, v4, 4, s3
    v_mov_b32 v6, {CSB}
    v_lshl_add_u32 v4, v4, 4, v6
    ds_write_b128 v5, v[{CSA}:{CSA+3}]
    ds_write_b128 v5, v[{CSA+4}:{CSA+7}] offset:64
    """)
    for kp in range(4): p(f"s_xor_b32 s3, s18, {kp}\ns_lshl_b32 s3, s3, 7\nv_add_u32 v{20+kp}, s3, v4")
    p(W(vm="small"))
    for f in range(4):
        p(f"""v_lshlrev_b32 v4, 16, v{40+2*f}
        v_and_b32 v5, 0xffff0000, v{40+2*f}
        v_lshlrev_b32 v6, 16, v{41+2*f}
        v_and_b32 v7, 0xffff0000, v{41+2*f}""")
        for e in range(4): p(f"v_accvgpr_write_b32 a{240+4*f+e}, v{4+e}")
    def qepi():
        G = []
        for kp in range(4):
            T = 40 if kp % 2 == 0 else 56
            G.append(("rd", [I(f"ds_read_b128 {r4('v', T)}, v{20+kp}", tag=f"cs{kp}"), I(f"ds_read_b128 {r4('v', T+4)}, v{20+kp} offset:64", tag=f"cs{kp}")]))
        ops = {}
        for kp in range(4):
            T = 40 if kp % 2 == 0 else 56
            L_ = []
            for q in range(4):
                for tl in range(2):
                    for e in range(4):
                        r = qacc(2 * kp + tl, q) + e
                        L_.append(I(f"v_fmac_f32 v{r}, v{T+4*tl+e}, v{48+2*q}"))
                for tl in range(2):
                    for e in range(4):
                        r = qacc(2 * kp + tl, q) + e
                        L_.append(I(f"v_mul_f32 v{r}, v{r}, v{49+2*q}"))
                F = QF + (q * 4 + kp) * 4
                for tl in range(2):
                    for h in range(2):
                        r = qacc(2 * kp + tl, q) + 2 * h
                        L_.append(I(f"v_cvt_pk_bf16_f32 v{F+2*tl+h}, v{r}, v{r+1}"))
            for q in range(4):
                F = QF + (q * 4 + kp) * 4
                L_.append(I(f"v_permlane16_swap_b32 v{F}, v{F+2}")); L_.append(I(f"v_permlane16_swap_b32 v{F+1}, v{F+3}"))
            ops[kp] = L_
        return [g[1] for g in G], ops
    core_setup = L(f"""
    v_lshrrev_b32 v4, 4, v2
    s_lshl_b32 s3, s18, 3
    v_add_u32 v4, s3, v4
    v_and_b32 v5, 15, v2
    v_and_b32 v6, 15, v4
    v_xor_b32 v6, v5, v6
    v_lshlrev_b32 v6, 4, v6
    v_lshl_add_u32 v10, v4, 8, v6
    v_add_u32 v4, 4, v4
    v_and_b32 v6, 15, v4
    v_xor_b32 v6, v5, v6
    v_lshlrev_b32 v6, 4, v6
    v_lshl_add_u32 v11, v4, 8, v6
    v_subrev_u32 v11, 1024, v11
    v_lshrrev_b32 v4, 4, v2
    v_lshlrev_b32 v4, 3, v4
    s_lshl_b32 s3, s18, 1
    v_add_u32 v4, s3, v4
    v_lshlrev_b32 v5, 4, v5
    v_lshl_add_u32 v12, v4, 8, v5
    v_add_u32 v12, 1024, v12
    v_add_u32 v13, {256-1056}, v12
    s_lshr_b32 s58, s19, 1
    s_lshl_b32 s58, s58, 19
    s_add_u32 s58, s58, {1536*256}
    s_sub_u32 s59, s58, 1024
    s_lshl_b32 s56, s18, 11
    s_mul_i32 s57, s18, {2*1056}
    s_add_u32 s57, s57, 8192
    v_and_b32 v4, 15, v2
    v_lshrrev_b32 v5, 4, v2
    v_lshrrev_b32 v6, 1, v5
    v_and_b32 v7, 1, v5
    v_lshl_add_u32 v5, v7, 1, v6
    v_lshlrev_b32 v7, 8, v4
    v_add_u32 v7, {CB}, v7
    """)
    for kp in range(4):
        core_setup += L(f"""s_xor_b32 s3, s18, {kp}
        s_lshl_b32 s3, s3, 2
        v_add_u32 v6, s3, v5
        v_xor_b32 v6, v6, v4
        v_lshl_add_u32 v{14+kp}, v6, 4, v7""")
    core_setup += L(f"""
    v_lshrrev_b32 v4, 2, v2
    v_and_b32 v5, 7, v4
    v_mul_u32_u24 v5, 1056, v5
    v_lshrrev_b32 v4, 3, v4
    v_lshl_add_u32 v5, v4, 8, v5
    v_and_b32 v4, 3, v2
    v_lshl_add_u32 v19, v4, 3, v5
    v_add_u32 v18, {CB + 8192}, v19
    """)
    p(core_setup)
    def dmaK(base, tag):
        return [[I(f"s_add_u32 m0, s56, {base}")], [I(f"buffer_load_dwordx4 v10, s[28:31], s58 offen lds", tag=tag)],
                [I(f"buffer_load_dwordx4 v11, s[28:31], s58 offen offset:1024 lds", tag=tag)], [I("s_add_u32 s58, s58, 8192")]]
    def dmaV(base, tag):
        return [[I(f"s_add_u32 m0, s57, {base}")], [I(f"buffer_load_dwordx4 v12, s[32:35], s59 offen lds", tag=tag)],
                [I(f"buffer_load_dwordx4 v13, s[32:35], s59 offen offset:1056 lds", tag=tag)], [I("s_add_u32 s59, s59, 8192")]]
    def dmaC(n):
        G = []
        if n + 1 <= 15: G += dmaK(CB + (n % 4) * CSL, f"c{n}")
        G += dmaV(CB + (n % 4) * CSL, f"c{n}")
        return G
    p("s_cmp_ge_u32 s17, 27\ns_cbranch_scc1 K2_skip")
    pre = list(p.s)
    pa = Prog()
    pa(f"""
    s_and_b32 s3, s18, 1
    s_lshl_b32 s3, s3, 7
    v_add_u32 v24, s3, v19
    v_add_u32 v25, {2*MSL}, v24
    v_add_u32 v26, {4*MSL}, v24
    s_lshr_b32 s3, s18, 1
    s_mul_i32 s3, s3, 3072
    s_add_u32 s3, s3, 16896
    v_lshl_add_u32 v33, v2, 4, s3
    v_add_u32 v34, {2*MSL}, v33
    v_add_u32 v35, {4*MSL}, v33
    """)
    def mA(s, f): return 28 * s + 4 * f
    def mB(s, d): return 28 * s + 16 + 4 * d
    def macc(f, d): return 192 + (f * 3 + d) * 4
    def mreads(t):
        s = t % 2; n = t // 2; kk = t % 2; sl = n % NM; o = (sl & 1) * MSL
        R = [I(f"ds_read_b128 {r4('a', mB(s,d))}, v{33+sl//2} offset:{o + kk*6144 + 1024*d}") for d in range(3)]
        for f in range(4):
            for h in range(2):
                R.append(I(f"ds_read_b64_tr_b16 {r2('a', mA(s,f)+2*h)}, v{24+sl//2} offset:{o + kk*8448 + 32*f + 512*h}"))
        return R
    def mmf(t):
        s = t % 2; M = []
        for f in range(4):
            for d in range(3):
                a = r4('a', macc(f, d))
                M.append(I(f"{MF} {a}, {r4('a', mA(s,f))}, {r4('a', mB(s,d))}, {r4('a', 240+4*f) if t == 0 else a}"))
        return M
    pa(W(vm="m0", lg=0)); pa("s_barrier")
    csr, cops = qepi()
    pa(mreads(0)); pa(csr[0]); pa(csr[1])
    pa(flat(dmaM(3)))
    pa(W(lg=0))
    bg = []
    bgq = [("ops", 0), ("rd", 2), ("ops", 1), ("rd", 3), ("ops", 2), ("ops", 3)]
    bglist = cops[0] + csr[2] + cops[1] + csr[3] + cops[2] + cops[3]
    BGN = opts.get("bgn", 12)
    for t in range(64):
        n = t // 2; kk = t % 2
        pa.mark("B10")
        M = mmf(t); g = Gaps(len(M), cap=opts.get("mcap", 2))
        D = []
        if t == 0: D = dmaM(4)
        else:
            m = (t - 1) // 2
            if m + 5 < 32:
                G = dmaM(m + 5)
                D = G[:5] if kk == 1 else G[5:]
        if t == 55: D = dmaK(K0B, "k0")
        if t == 56: D = dmaC(0)
        if t == 58: D = dmaC(1)
        if t == 60: D = dmaC(2)
        if D: g.spread(D, 0, len(M) - 2)
        if t < 63:
            g.spread([[r] for r in mreads(t + 1)], 0, len(M) - 4)
        take = bglist[:BGN]; bglist = bglist[BGN:]
        if take: g.spread([[x] for x in take], 0, len(M) - 1)
        if t < 63:
            if kk == 0: g.put(len(M) - 1, [W(vm=(f"m{n+1}" if n + 1 < 32 else None), lg=0), I("s_barrier")], force=True)
            else: g.put(len(M) - 1, [W(lg=0)], force=True)
        pa(weave(M, g.sl))
    assert not bglist
    pa.mark("B0")
    stamp(pa, 3)
    pa(f"""
    s_lshl_b32 s3, s8, 2
    s_and_b32 s4, s18, 1
    s_lshl_b32 s4, s4, 1
    s_add_u32 s3, s3, s4
    s_mul_i32 s3, s3, 36
    s_mul_i32 s4, s9, 6
    s_add_u32 s3, s3, s4
    s_lshr_b32 s4, s18, 1
    s_mul_i32 s4, s4, 3
    s_add_u32 s3, s3, s4
    s_lshl_b32 s3, s3, 10
    s_add_u32 s3, s3, {WS_UF}
    v_lshl_add_u32 v4, v2, 4, s3
    v_add_u32 v5, {36*1024}, v4
    s_mov_b32 s4, {f2u(-0.10294324):#x}
    v_mov_b32 v6, {f2u(-2.3022082):#x}
    """)
    for fp in range(2):
        for d in range(3):
            U = 64 + ((fp * 3 + d) % 2) * 32; T = U + 8; O = U + 16
            for e in range(8): pa(f"v_accvgpr_read_b32 v{U+e}, a{macc(2*fp + e//4, d) + e%4}")
            for e in range(8): pa(f"v_mul_f32 v{T+e}, v{U+e}, v{U+e}")
            for e in range(8): pa(f"v_fma_f32 v{T+e}, v{T+e}, s4, v6")
            for e in range(8): pa(f"v_mul_f32 v{T+e}, v{T+e}, v{U+e}")
            for e in range(8): pa(f"v_exp_f32 v{T+e}, v{T+e}")
            for e in range(8): pa(f"v_add_f32 v{T+e}, 1.0, v{T+e}")
            for e in range(8): pa(f"v_rcp_f32 v{T+e}, v{T+e}")
            for e in range(8): pa(f"v_mul_f32 v{T+e}, v{T+e}, v{U+e}")
            for e in range(4): pa(f"v_cvt_pk_bf16_f32 v{O+e}, v{T+2*e}, v{T+2*e+1}")
            pa(I(f"buffer_store_dwordx4 {r4('v', O)}, v{4+fp}, s[12:15], 0 offen offset:{1024*d}", cond=True))
    pa("s_branch K2_core")
    pb = Prog()
    pb("K2_skip:")
    pb(W(vm=0, lg=0)); pb("s_barrier")
    pb(flat(dmaK(K0B, "k0") + dmaC(0) + dmaC(1) + dmaC(2)))
    csr, cops = qepi()
    for kp in range(4):
        pb(csr[kp]); pb(W(lg=0)); pb(cops[kp][:-8]); pb("s_nop 1"); pb(cops[kp][-8:])
    stamp(pb, 3)
    pc = Prog()
    pc("K2_core:")
    KB, VB = 128, 160
    def S(b): return 64 + 32 * b
    def P(b): return 128 + 16 * b
    MN = 160; LA = 176
    def readK(off, base):
        return [I(f"ds_read_b128 {r4('a', base+(kt*4+ks)*4)}, v{14+ks} offset:{off+kt*4096}") for kt in range(2) for ks in range(4)]
    def readV(n):
        return [I(f"ds_read_b64_tr_b16 {r2('a', VB+dt*4+2*h)}, v18 offset:{(n%4)*CSL+dt*32+h*512}") for dt in range(8) for h in range(2)]
    def QK(b, kbase, zero):
        M = []
        for kt in range(2):
            for ks in range(4):
                for qt in range(4):
                    d = S(b) + (kt * 4 + qt) * 4
                    c = ("0" if zero else r4('v', MN + 4 * qt)) if ks == 0 else r4('v', d)
                    M.append(I(f"{MF} {r4('v', d)}, {r4('a', kbase+(kt*4+ks)*4)}, {r4('v', QF+(qt*4+ks)*4)}, {c}"))
        return M
    def PV(b, zero):
        M = []
        for dt in range(8):
            for qt in range(4):
                d = r4('a', (dt * 4 + qt) * 4)
                M.append(I(f"{MF} {d}, {r4('a', VB+dt*4)}, {r4('v', P(b)+qt*4)}, {'0' if zero else d}"))
        for qt in range(4):
            d = r4('v', LA + 4 * qt)
            M.append(I(f"{MF} {d}, v[36:39], {r4('v', P(b)+qt*4)}, {'0' if zero else d}"))
        return M
    def SM(b, h):
        U = []; E = []; C = []
        for e in range(16):
            r = S(b) + 16 * h + e; qt = e // 4
            U.append(I(f"v_add_f32 v{r}, v{MN+4*qt}, v{r}")); E.append(I(f"v_exp_f32 v{r}, v{r}"))
            if e % 2: C.append(I(f"v_cvt_pk_bf16_f32 v{P(b)+qt*4+2*h+(e%4)//2}, v{r-1}, v{r}"))
        return U, E, C
    def phase(M, sm, reads, D, tail, sub=False):
        g = Gaps(len(M)); n = len(M)
        if sm:
            U, E, C = sm
            for e in range(16):
                if sub:
                    if e == 0: g.sl.setdefault(-1, []).append(U[0])
                    else: g.put(2 * e - 1, U[e], force=True)
                g.put(2 * e, E[e], force=True)
            for e in range(8): g.put(4 * e + 3, C[e], force=True)
        if D: g.spread(D, 1, n - 2)
        if reads: g.spread([[r] for r in reads], 1, n - 7)
        g.put(n - 1, tail, force=True)
        pc(weave(M, g.sl))
    pc(W(vm=["k0", "c0"])); pc("s_barrier"); stamp(pc, 4)
    pc(f"v_add_u32 v4, {K0B-CB}, v14\nv_add_u32 v5, {K0B-CB}, v15\nv_add_u32 v6, {K0B-CB}, v16\nv_add_u32 v7, {K0B-CB}, v17")
    pc([I(f"ds_read_b128 {r4('a', VB+(kt*4+ks)*4)}, v{4+ks} offset:{kt*4096}") for kt in range(2) for ks in range(4)])
    pc(W(lg=0))
    phase(QK(0, VB, True), None, readK(0, KB), [], [W(lg=0)])
    mx = []
    for qt in range(4):
        r0 = S(0) + qt * 4; r1 = r0 + 16; t = 40 + qt
        mx += L(f"v_max3_f32 v{t}, v{r0}, v{r0+1}, v{r0+2}\nv_max3_f32 v{t}, v{t}, v{r0+3}, v{r1}\nv_max3_f32 v{t}, v{t}, v{r1+1}, v{r1+2}\nv_max_f32 v{t}, v{t}, v{r1+3}")
    for sw in ("v_permlane16_swap_b32", "v_permlane32_swap_b32"):
        for qt in range(4): mx += L(f"v_mov_b32 v{44+qt}, v{40+qt}")
        mx += L("s_nop 0")
        for qt in range(4): mx += L(f"{sw} v{40+qt}, v{44+qt}")
        for qt in range(4): mx += L(f"v_max_f32 v{40+qt}, v{40+qt}, v{44+qt}")
    for qt in range(4):
        for e in range(4): mx += L(f"v_sub_f32 v{MN+4*qt+e}, 0xc2000000, v{40+qt}")
    M = QK(1, KB, True); g = Gaps(len(M), cap=3)
    g.spread([[r] for r in readV(0)], 0, 20)
    g.spread([[x] for x in mx], 4, 31)
    pc(weave(M, g.sl))
    for h in range(2):
        U, E, C = SM(0, h); pc(U); pc(E); pc(C)
    pc(W(vm="c1", lg=0)); pc("s_barrier")
    for i in range(16):
        b = i % 2
        pc.mark("B4")
        if i >= 1:
            if i < 15: phase(QK(1 - b, KB, False), SM(b, 1), readV(i), [], [W(vm=f"c{i+1}", lg=0), I("s_barrier")], sub=(i == 1))
            else:
                pc(readV(i)); U, E, C = SM(b, 1); pc(E); pc(C); pc(W(lg=0)); pc("s_nop 0")
        phase(PV(b, i == 0), SM(1 - b, 0) if i < 15 else None, readK(((i + 1) % 4) * CSL, KB) if i + 2 <= 15 else [],
              dmaC(i + 3) if i + 3 <= 15 else [], [W(lg=0)], sub=(i == 0))
    pc.mark("B0")
    stamp(pc, 5)
    pc(f"""
    s_lshl_b32 s3, s19, 19
    s_lshl_b32 s4, s5, 12
    s_add_u32 s3, s3, s4
    s_add_u32 s3, s3, {WS_OF}
    v_lshlrev_b32 v4, 4, v2
    s_nop 4
    """)
    for qt in range(4): pc(f"v_rcp_f32 v{40+qt}, v{LA+4*qt}")
    for k in range(4):
        for qt in range(4):
            r = 64 + qt * 12
            for e in range(8): pc(f"v_accvgpr_read_b32 v{r+e}, a{((2*k+e//4)*4+qt)*4+e%4}")
            for e in range(8): pc(f"v_mul_f32 v{r+e}, v{r+e}, v{40+qt}")
            for j in range(4): pc(f"v_cvt_pk_bf16_f32 v{r+8+j}, v{r+2*j}, v{r+2*j+1}")
            pc(f"buffer_store_dwordx4 {r4('v', r+8)}, v4, s[12:15], s3 offen offset:{1024*qt}")
        pc(f"s_add_u32 s3, s3, {128*1024}")
    stamp_out(pc, 7, 1, "K2_end")
    A = resolve(pre + pa.s + pc.s); B = resolve(pre + pb.s + pc.s)
    def cut(st, lab): return [x.t for x in st].index(lab)
    ca = cut(A, "K2_core:"); cb = cut(B, "K2_core:"); sb = cut(B, "K2_skip:")
    assert [x.t for x in A[ca:]] == [x.t for x in B[cb:]], "core differs between paths"
    bad = check(A, "K2A") + check(B, "K2B")
    assert not bad
    p.s = fold(A[:ca] + B[sb:cb] + A[ca:], "s10", "K2")

NSLOT = 6
def gen_K3_body(p, kind, opts):
    nst = 32 if kind == 'O' else 36
    D = 6
    wnt = " nt" if opts.get('nt', 1) else ""
    SET = [64, 116]
    def A(s, t): return SET[s] + 4 * t
    def B(s, u): return SET[s] + 36 + 4 * u
    def acc(t, u): return (t * 4 + u) * 4
    SMALL = 9216
    SB = 9216 + (16384 if kind == 'O' else 16 * 1056)
    if kind == 'O':
        p("s_lshl_b32 s22, s18, 7\nv_add_u32 v7, s22, v2")
        for i in range(3):
            p(["v_mov_b32 v4, v7", "v_add_u32 v4, 64, v7", "v_add_u32 v4, 512, v2"][i])
            p(f"""v_mul_u32_u24 v5, 3641, v4
            v_lshrrev_b32 v5, 16, v5
            v_mul_u32_u24 v6, 18, v5
            v_sub_u32 v6, v4, v6
            v_mul_u32_u24 v5, 1152, v5
            v_lshl_add_u32 v{10+i}, v6, 4, v5""")
        p(f"""
        s_mul_i32 s23, s21, 288
        v_add_u32 v10, s23, v10
        v_add_u32 v12, s23, v12
        s_sub_u32 s23, s23, 1024
        v_add_u32 v11, s23, v11
        {srd(24, 4, 4096*576*2)}
        s_mul_i32 s32, s19, {1024*1152}
        v_lshlrev_b32 v4, 4, v2
        s_lshl_b32 s22, s20, 4
        s_lshl_b32 s23, s18, 2
        s_add_u32 s22, s22, s23
        s_lshl_b32 s22, s22, 10
        v_add_u32 v16, s22, v4
        s_mul_i32 s33, s19, {32*128*1024}
        s_add_u32 s33, s33, {WS_OF}
        s_lshl_b32 s34, s18, 11
        s_lshl_b32 s35, s18, 12
        s_add_u32 s35, s35, {SMALL}
        """)
        late = f"""
        v_lshrrev_b32 v4, 2, v2
        v_mul_u32_u24 v4, 288, v4
        v_and_b32 v5, 3, v2
        v_lshl_add_u32 v30, v5, 3, v4
        v_add_u32 v31, {2*SB}, v30
        v_add_u32 v32, {4*SB}, v30
        v_lshlrev_b32 v4, 4, v2
        v_add_u32 v33, s35, v4
        v_add_u32 v34, {2*SB}, v33
        v_add_u32 v35, {4*SB}, v33
        """
        small_step, big_step = 32 * 1152, 128 * 1024
        smallv = ["v10", "v11", "v12"]; bigv = ["v16"] * 4; bigoff = [1024 * u for u in range(4)]
        ssrd, bsrd, snt, bnt = "s[24:27]", "s[12:15]", (wnt if opts.get('ntwo', 1) else ""), ""
        def reads(s, slot):
            o = (slot & 1) * SB
            R = [I(f"ds_read_b128 {r4('v', B(s,u))}, v{33+slot//2} offset:{o+u*1024}") for u in range(4)]
            R += [I(f"ds_read_b64_tr_b16 {r2('v', A(s,t)+2*h)}, v{30+slot//2} offset:{o+h*4608+32*t}") for t in range(9) for h in range(2)]
            return R
    else:
        p(f"""
        v_lshlrev_b32 v4, 4, v2
        s_mul_i32 s23, s21, {9*1024}
        v_add_u32 v12, s23, v4
        s_lshl_b32 s22, s18, 11
        v_add_u32 v10, s22, v12
        v_add_u32 v12, 8192, v12
        s_mul_i32 s32, s19, {36*36*1024}
        s_add_u32 s32, s32, {WS_UF}
        v_and_b32 v4, 31, v2
        v_lshlrev_b32 v4, 4, v4
        v_lshrrev_b32 v5, 5, v2
        v_lshl_add_u32 v4, v5, 16, v4
        s_lshl_b32 s22, s18, 14
        s_lshl_b32 s23, s20, 9
        s_add_u32 s22, s22, s23
        v_add_u32 v16, s22, v4
        v_add_u32 v17, {4096-1056}, v16
        v_add_u32 v18, {2*(4096-1056)}, v16
        v_add_u32 v19, {3*(4096-1056)}, v16
        {srd(24, 8, 4608*2048*2)}
        s_mul_i32 s33, s19, {1152*4096}
        s_lshl_b32 s34, s18, 11
        s_mul_i32 s35, s18, {4*1056}
        s_add_u32 s35, s35, {SMALL}
        """)
        late = f"""
        v_lshrrev_b32 v4, 2, v2
        v_mul_u32_u24 v4, 1056, v4
        v_and_b32 v5, 3, v2
        v_lshl_add_u32 v4, v5, 3, v4
        s_lshl_b32 s22, s18, 7
        s_add_u32 s22, s22, {SMALL}
        v_add_u32 v30, s22, v4
        v_add_u32 v31, {2*SB}, v30
        v_add_u32 v32, {4*SB}, v30
        v_lshlrev_b32 v33, 4, v2
        v_add_u32 v34, {2*SB}, v33
        v_add_u32 v35, {4*SB}, v33
        """
        small_step, big_step = 36 * 1024, 32 * 4096
        smallv = ["v10", "v10", "v12"]; bigv = ["v16", "v17", "v18", "v19"]; bigoff = [1056 * u for u in range(4)]
        ssrd, bsrd, snt, bnt = "s[12:15]", "s[24:27]", "", wnt
        def reads(s, slot):
            o = (slot & 1) * SB
            R = [I(f"ds_read_b64_tr_b16 {r2('v', B(s,u)+2*h)}, v{30+slot//2} offset:{o+h*512+32*u}") for u in range(4) for h in range(2)]
            R += [I(f"ds_read_b128 {r4('v', A(s,t))}, v{33+slot//2} offset:{o+t*1024}") for t in range(9)]
            return R
    p("s_cmp_eq_u32 s18, 0\ns_cselect_b64 vcc, -1, 0")
    def dma(n):
        base = (n % NSLOT) * SB; tg = f"g{n}"
        G = [[I(f"s_add_u32 m0, s34, {base}")],
             [I(f"buffer_load_dwordx4 {smallv[0]}, {ssrd}, s32 offen{snt} lds", tag=tg)],
             [I(f"buffer_load_dwordx4 {smallv[1]}, {ssrd}, s32 offen offset:1024{snt} lds", tag=tg)],
             [I(f"s_mov_b32 m0, {base+8192}")],
             [I("s_cbranch_vccz 1f"), I(f"buffer_load_dwordx4 {smallv[2]}, {ssrd}, s32 offen{snt} lds", tag=tg, cond=True), I("1:")],
             [I(f"s_add_u32 s32, s32, {small_step}")], [I(f"s_add_u32 m0, s35, {base}")]]
        for u in range(4):
            G.append([I(f"buffer_load_dwordx4 {bigv[u]}, {bsrd}, s33 offen offset:{bigoff[u]}{bnt} lds", tag=tg)])
        G.append([I(f"s_add_u32 s33, s33, {big_step}")])
        return G
    POS = [1, 2, 8, 10, 11, 12, 13, 14, 20, 26, 32, 33]
    def flat(G):
        out = []
        for g in G:
            out.extend(g)
            if "m0" in g[0].t: out.append(I("s_nop 0"))
        return out
    D0 = opts.get("D0", 4)
    for n in range(D0): p(flat(dma(n)))
    p(late)
    p(W(vm="g0")); p("s_barrier"); stamp(p, 1)
    p(reads(0, 0)); p(W(vm="g1", lg=0)); p("s_barrier")
    issued = D0
    for t in range(nst):
        p.mark("B6")
        M = [I(f"{MF} {r4('a', acc(tt,u))}, {r4('v', A(t%2,tt))}, {r4('v', B(t%2,u))}, {'0' if t == 0 else r4('a', acc(tt,u))}") for tt in range(9) for u in range(4)]
        g = Gaps(36)
        want = min(nst, t + D + 1)
        nd = min(2 if t % 2 == 0 else 1, want - issued)
        if nd == 1:
            for gr, pos in zip(dma(issued), POS): g.put(pos, gr, force=True)
        elif nd == 2:
            g.spread(dma(issued) + dma(issued + 1), 0, 34)
        issued += nd
        if t < nst - 1:
            g.spread([[r] for r in reads((t + 1) % 2, (t + 1) % NSLOT)], 0, 28)
            if t + 2 < nst: g.put(35, [W(vm=f"g{t+2}", lg=0), I("s_barrier")], force=True)
            else: g.put(35, [W(lg=0)], force=True)
        p(weave(M, g.sl))
    p.mark("B0")

def gen_K3(p, opts):
    p(f"""
    s_load_dwordx2 s[4:5], s[0:1], 32
    s_load_dwordx2 s[8:9], s[0:1], 64
    s_load_dwordx2 s[6:7], s[0:1], 96
    v_and_b32 v2, 63, v0
    v_lshrrev_b32 v3, 6, v0
    s_and_b32 s17, s2, 7
    v_readfirstlane_b32 s18, v3
    s_and_b32 s19, s2, 3
    s_lshr_b32 s16, s2, 3
    s_lshr_b32 s20, s16, 2
    s_and_b32 s21, s16, 3
    s_waitcnt lgkmcnt(0)
    {srd(12, 6, WS_SIZE)}
    s_cmp_ge_u32 s17, 4
    s_cbranch_scc1 K3_U
    """)
    pre = p.s
    a = Prog(); gen_K3_body(a, 'O', opts); a("s_branch K3_epi")
    b = Prog(); b("K3_U:"); gen_K3_body(b, 'U', opts)
    e = Prog(); e("K3_epi:"); stamp(e, 2)
    e(f"""
    s_lshl_b32 s22, s16, 3
    s_lshl_b32 s23, s18, 1
    s_add_u32 s22, s22, s23
    s_lshl_b32 s22, s22, 3
    s_add_u32 s22, s22, s17
    s_mul_i32 s22, s22, 9216
    s_add_u32 s22, s22, {WS_PART}
    v_lshlrev_b32 v4, 4, v2
    v_add_u32 v5, 4096, v4
    v_add_u32 v6, 8192, v4
    """)
    i = 0
    for h in range(2):
        for c in range(9):
            pr = ((2*(c>>1), 2*h+(c&1)), (2*(c>>1)+1, 2*h+(c&1))) if c < 8 else ((8, 2*h), (8, 2*h+1))
            r = 64 + (i % 4) * 12; i += 1
            for j, (t, u) in enumerate(pr):
                for x in range(4): e(f"v_accvgpr_read_b32 v{r+4*j+x}, a{(t*4+u)*4+x}")
            for j in range(4): e(f"v_cvt_pk_bf16_f32 v{r+8+j}, v{r+2*j}, v{r+2*j+1}")
            e(f"buffer_store_dwordx4 {r4('v', r+8)}, v{4+c//4}, s[12:15], s22 offen offset:{(c%4)*1024}")
        if h == 0: e(f"s_add_u32 s22, s22, {8*9216}")
    stamp_out(e, 4, 2, "K3_end")
    A = resolve(a.s); B = resolve(b.s)
    assert not (check(pre + A + e.s, "K3O") + check(pre + B + e.s, "K3U"))
    p.s = pre + fold(A, "s36", "K3O") + fold(B, "s36", "K3U") + e.s

def gen_K4(p):
    p(f"""
    s_load_dwordx2 s[4:5], s[0:1], 0
    s_load_dwordx4 s[8:11], s[0:1], 72
    s_load_dwordx2 s[6:7], s[0:1], 96
    s_mul_i32 s22, s2, {8*9216}
    s_add_u32 s22, s22, {WS_PART}
    v_lshlrev_b32 v4, 2, v0
    v_add_u32 v5, 4096, v4
    v_add_u32 v6, 8192, v4
    s_lshr_b32 s16, s2, 5
    s_lshl_b32 s16, s16, 8
    s_and_b32 s17, s2, 7
    s_lshl_b32 s17, s17, 5
    s_add_u32 s16, s16, s17
    s_bfe_u32 s17, s2, 0x20003
    s_waitcnt lgkmcnt(0)
    {srd(12, 6, WS_SIZE)}
    """)
    for part in range(8):
        for c in range(9):
            p(f"buffer_load_dword v{32+part*9+c}, v{4+c//4}, s[12:15], s22 offen offset:{(c%4)*1024}", tag=f"p{part}")
        p(f"s_add_u32 s22, s22, 9216")
        if part == 3:
            p(f"""
            {srd(24, 4, 2048*1152)}
            {srd(28, 8, 4096)}
            {srd(108-72, 10, 2048*1152)}
            v_bfe_u32 v8, v0, 2, 4
            v_add_u32 v9, s16, v8
            v_lshlrev_b32 v9, 1, v9
            """)
            p("buffer_load_ushort v10, v9, s[28:31], 0 offen\nbuffer_load_ushort v11, v9, s[28:31], 0 offen offset:32", tag="b2")
            for i in range(3):
                p(f"""v_add_u32 v12, {256*i}, v0
                v_mul_u32_u24 v13, 3641, v12
                v_lshrrev_b32 v13, 16, v13
                v_mul_u32_u24 v14, 18, v13
                v_sub_u32 v14, v12, v14
                v_add_u32 v13, s16, v13
                v_mul_u32_u24 v13, 1152, v13
                v_lshl_add_u32 v{16+i}, v14, 4, v13""")
            p(f"""s_mul_i32 s18, s17, 288
            v_mov_b32 v12, 0x7fff0000
            v_cmp_lt_u32 vcc, 63, v0
            s_nop 1
            v_cndmask_b32 v18, v18, v12, vcc""")
            for i in range(3): p(f"buffer_load_dwordx4 {r4('v', 20+4*i)}, v{16+i}, s[24:27], s18 offen", tag="x")
            p(W(vm="p1"))
    p(f"""
    v_lshrrev_b32 v14, 6, v0
    v_and_b32 v15, 1, v0
    v_lshlrev_b32 v15, 2, v15
    v_lshl_add_u32 v15, v14, 3, v15
    v_mul_u32_u24 v14, 288, v8
    v_add_u32 v15, v15, v14
    v_bfe_u32 v14, v0, 1, 1
    v_lshl_add_u32 v12, v14, 5, v15
    v_mul_u32_u24 v14, {16*288}, v14
    v_add3_u32 v13, v14, v15, 64
    s_mov_b32 s20, 0x00003f80
    s_mov_b32 s21, 0x3f800000
    """)
    SA = 104; Y = 122
    for part in range(8):
        p(W(vm=f"p{part}"))
        base = SA if part < 4 else Y
        if part == 4:
            p(f"""v_lshlrev_b32 v10, 16, v10
            v_lshlrev_b32 v11, 16, v11
            v_and_b32 v14, 2, v0
            v_cmp_eq_u32 vcc, 0, v14
            s_nop 1
            v_cndmask_b32 v9, v11, v10, vcc""")
        for c in range(9):
            for h in range(2):
                d = base + 2 * c + h
                cin = "0" if part == 0 else (f"v{9 if c == 8 else 10 + (c & 1)}" if part == 4 else f"v{d}")
                p(f"v_dot2_f32_bf16 v{d}, v{32+part*9+c}, s{20+h}, {cin}")
    p("s_nop 2")
    T = 32
    for e in range(18): p(f"v_mul_f32 v{T+e}, {f2u(-1.4426950408889634):#x}, v{Y+e}")
    for e in range(18): p(f"v_exp_f32 v{T+e}, v{T+e}")
    for e in range(18): p(f"v_add_f32 v{T+e}, 1.0, v{T+e}")
    for e in range(18): p(f"v_rcp_f32 v{T+e}, v{T+e}")
    for e in range(18): p(f"v_mul_f32 v{SA+e}, v{SA+e}, v{Y+e}")
    for e in range(18): p(f"v_mul_f32 v{T+e}, v{T+e}, v{SA+e}")
    for c in range(9):
        p(f"v_cvt_pk_bf16_f32 v{T+c*2}, v{T+2*c}, v{T+2*c+1}")
        if c < 8: p(f"ds_write_b32 v12, v{T+2*c} offset:{(c&1)*16*288 + (c>>1)*64}")
        else: p(f"ds_write_b32 v13, v{T+2*c} offset:192")
    p("s_waitcnt lgkmcnt(0)\ns_barrier\nv_lshlrev_b32 v4, 4, v0")
    for i in range(3): p(f"ds_read_b128 {r4('v', 52+4*i)}, v4 offset:{4096*i}")
    p("s_waitcnt lgkmcnt(0)")
    for i in range(3):
        for k in range(4):
            x = 20 + 4 * i + k; t = 52 + 4 * i + k
            p(f"""v_lshlrev_b32 v64, 16, v{x}
            v_and_b32 v65, 0xffff0000, v{x}
            v_lshlrev_b32 v66, 16, v{t}
            v_and_b32 v67, 0xffff0000, v{t}
            v_add_f32 v64, v64, v66
            v_add_f32 v65, v65, v67
            v_cvt_pk_bf16_f32 v{t}, v64, v65""")
        p(f"buffer_store_dwordx4 {r4('v', 52+4*i)}, v{16+i}, s[36:39], s18 offen")
    stamp_out(p, 2, 3, "K4_end")
    p.s = resolve(p.s)
    assert not check(p.s, "K4")

def build(fname, opts={}, ts=False):
    global TS
    TS = ts
    out = []
    out.append("; @launch kernel=k1_kernel grid=(256,1,1) block=(256,1,1) lds=9216")
    out.append("; @launch kernel=k2_kernel grid=(256,1,1) block=(256,1,1) lds=163840")
    out.append("; @launch kernel=k3_kernel grid=(256,1,1) block=(256,1,1) lds=163840")
    out.append("; @launch kernel=k4_kernel grid=(256,1,1) block=(256,1,1) lds=12288")
    out.append('.amdgcn_target "amdgcn-amd-amdhsa--gfx950"\n.text')
    for i, (g, args) in enumerate([(gen_H, ()), (gen_K2, (opts,)), (gen_K3, (opts,)), (gen_K4, ())]):
        k = f"K{i+1}"
        p = Prog()
        p(f"s_cmp_ge_u32 s2, 256\ns_cbranch_scc1 {k}_end")
        stamp(p, 0)
        g(p, *args)
        if i == 0:
            stamp_out(p, 2, 0, "K1_end")
            assert not check(p.s, "K1")
        out.append(kernel_header(f"k{i+1}_kernel") + text(p.s) + f"{k}_end:\n  s_endpgm")
    out.append('.section .rodata,"a"')
    for name, v, acc in (("k1_kernel", 64, 64), ("k2_kernel", 512, 256), ("k3_kernel", 312, 168), ("k4_kernel", 144, 144)):
        out.append(".p2align 6\n" + kernel_desc(name, v, sgpr=96, accum=acc).replace(".end_amdhsa_kernel", "  .amdhsa_float_denorm_mode_32 3\n.end_amdhsa_kernel"))
    open(fname, "w").write("\n".join(out) + "\n")

if __name__ == "__main__":
    build("v1.s"); build("v1_ts.s", ts=True)
```

```python
import re
TRANS = ("v_exp", "v_rcp", "v_rsq", "v_log", "v_sqrt", "v_sin", "v_cos")

class I:
    __slots__ = ("t", "tag", "cond", "vm", "lg")
    def __init__(self, t, tag=None, cond=False, vm=None, lg=None):
        self.t = t.strip(); self.tag = tag; self.cond = cond; self.vm = vm; self.lg = lg
    def op(self): return self.t.split()[0] if self.t else ""
    def is_vm(self):
        o = self.op(); return o.startswith("buffer_") or o.startswith("global_")
    def is_ds(self): return self.op().startswith("ds_")
    def is_smem(self):
        o = self.op(); return o.startswith("s_load") or o.startswith("s_memtime") or o.startswith("s_memrealtime")

def W(vm=None, lg=None):
    return I("WAIT", vm=vm, lg=lg)

def L(x, tag=None):
    out = []
    for l in x.strip("\n").split("\n"):
        l = l.split(";")[0].strip()
        if l: out.append(I(l, tag))
    return out

class Prog:
    def __init__(self):
        self.s = []
    def __call__(self, x, tag=None):
        if isinstance(x, I): self.s.append(x)
        elif isinstance(x, str): self.s.extend(L(x, tag))
        else:
            for y in x: self(y, tag)
    def mark(self, name): self.s.append(I("MARK " + name))

def resolve(stream):
    vm = []; ds = []
    out = []
    retired = -1
    for ins in stream:
        if ins.t == "WAIT":
            parts = []
            if ins.vm is not None:
                if ins.vm == 0: n = 0; retired = len(vm) - 1
                else:
                    tags = ins.vm if isinstance(ins.vm, (list, tuple, set)) else [ins.vm]
                    for tg in tags: assert any(t == tg for t, c in vm), f"wait on unissued tag {tg}"
                    idx = max([i for i, (t, c) in enumerate(vm) if t in tags])
                    if idx <= retired: n = None
                    else:
                        n = min(63, sum(1 for t, c in vm[idx + 1:] if not c)); retired = idx
                if n is not None:
                    parts.append(f"vmcnt({n})")
            if ins.lg is not None:
                if ins.lg == 0: n = 0
                else:
                    tags = ins.lg if isinstance(ins.lg, (list, tuple, set)) else [ins.lg]
                    idx = max([i for i, t in enumerate(ds) if t in tags], default=None)
                    n = None if idx is None else min(15, len(ds) - idx - 1)
                if n is not None: parts.append(f"lgkmcnt({n})")
            if parts: out.append(I("s_waitcnt " + " ".join(parts)))
            continue
        if ins.is_vm(): vm.append((ins.tag, ins.cond))
        if ins.is_ds(): ds.append(ins.tag)
        out.append(ins)
    return out

def weave(M, slots):
    out = list(slots.get(-1, []))
    for i, m in enumerate(M):
        out.append(m); out.extend(slots.get(i, []))
    return out

def klass(ins):
    o = ins.op()
    if o == "WAIT" or o.startswith("s_") or o.endswith(":"): return 0
    if ins.is_vm() or ins.is_ds(): return 1
    return 2
def vcost(ins):
    if klass(ins) == 0: return 0
    return 2 if ins.op().startswith(TRANS) else 1

class Gaps:
    def __init__(self, n, cap=2):
        self.n = n; self.cap = cap
        self.it = [[[], [], [], []] for _ in range(n)]
        self.vu = [0] * n; self.su = [0] * n; self.lock = [False] * n
        self.pre = []
    def _cls(self, items):
        ks = [klass(x) for x in items if klass(x)]
        return ks[0] if ks else 0
    def _need(self, items):
        c = self._cls(items)
        if c == 0: return 0, len(items)
        v = sum(vcost(x) for x in items); ns = [x for x in items if klass(x) == 0 and not x.t.endswith(":")]
        lead = 1 if klass(items[0]) == 0 else 0
        return v + len(ns) - lead, lead
    def fits(self, p, items):
        if self.lock[p]: return False
        v, s = self._need(items)
        if s and self._cls(items) and (self.su[p] or self.it[p][1]): return False
        extra_s = max(0, self.su[p] + s - 1)
        return self.vu[p] + v + extra_s <= self.cap
    def put(self, g, items, force=False, lim=None):
        if isinstance(items, I): items = [items]
        g = max(0, min(g, self.n - 1)); p = g
        lim = self.n if lim is None else min(self.n, max(lim, g + 1))
        if not force:
            while p < lim and not self.fits(p, items): p += 1
            if p >= lim:
                cand = [q for q in range(g, lim) if not self.lock[q]] or [self.n - 1]
                p = min(cand, key=lambda q: self.vu[q] + max(0, self.su[q] - 1))
        v, s = self._need(items)
        self.vu[p] += v; self.su[p] += s
        self.it[p][self._cls(items)].extend(items)
        return p
    def tail(self, g, items, lock=True):
        self.it[g][3].extend(items)
        if lock: self.lock[g] = True
        else: self.su[g] += len(items)
    def spread(self, groups, lo, hi, after=None):
        n = len(groups); last = after
        for i, gr in enumerate(groups):
            if isinstance(gr, I): gr = [gr]
            g = lo + (i * (hi - lo + 1)) // n
            if last is not None:
                lp, lgr = last
                same_ok = self._cls(gr) >= self._cls(lgr) and "m0" not in lgr[-1].t and not (lgr[-1].op().startswith(TRANS))
                g = max(g, lp if same_ok else lp + 1)
                assert g < self.n, "ordered spread overflow"
            nxt = lo + ((i + 1) * (hi - lo + 1)) // n
            last = (self.put(g, gr, lim=min(hi + 2, nxt + 2)), gr)
        return last
    def fill(self, items, lo=0, hi=None):
        hi = self.n - 1 if hi is None else hi
        p = lo; k = 0; last = None
        while k < len(items):
            gr = items[k] if isinstance(items[k], list) else [items[k]]
            if last is not None:
                lp, lgr = last
                same_ok = self._cls(gr) >= self._cls(lgr) and "m0" not in lgr[-1].t and not (lgr[-1].op().startswith(TRANS))
                p = max(p, lp if same_ok else lp + 1)
            while p <= hi and not self.fits(p, gr): p += 1
            if p > hi: break
            self.put(p, gr, force=True); last = (p, gr); k += 1
        return items[k:]
    def over(self): return sum(max(0, self.vu[p] + max(0, self.su[p] - 1) - 2) for p in range(self.n))
    def weave(self, M):
        assert len(M) == self.n
        out = list(self.pre)
        for i, m in enumerate(M):
            out.append(m)
            for c in range(4): out.extend(self.it[i][c])
        return out

def fold(stream, cnt_sreg, prefix):
    blocks = []; cur = []
    for ins in stream:
        if ins.op() == "MARK":
            blocks.append(cur); cur = [ins]
        else: cur.append(ins)
    blocks.append(cur)
    txt = ["\n".join(x.t for x in b if x.op() != "MARK") for b in blocks]
    per = [int(b[0].t.split()[1][1:]) if b and b[0].op() == "MARK" else 0 for b in blocks]
    out = []; i = 0; nl = 0
    while i < len(blocks):
        p = per[i]
        reps = 1
        if p:
            while i + (reps + 1) * p <= len(blocks) and all(txt[i + k] == txt[i + reps * p + k] for k in range(p)): reps += 1
        if reps >= 2:
            lab = f"{prefix}_L{nl}"; nl += 1
            out.append(I(f"s_mov_b32 {cnt_sreg}, {reps}")); out.append(I(f"{lab}:"))
            body = [x for k in range(p) for x in blocks[i + k] if x.op() != "MARK"]
            out.extend(body)
            out.extend(L(f"s_sub_u32 {cnt_sreg}, {cnt_sreg}, 1\ns_cmp_lg_u32 {cnt_sreg}, 0\ns_cbranch_scc1 {lab}"))
            i += reps * p
        else:
            out.extend(x for x in blocks[i] if x.op() != "MARK"); i += 1
    return out

_reg = re.compile(r"\b([vas])(?:\[(\d+):(\d+)\]|(\d+))(?![\w])")
def regs(s):
    r = set()
    for m in _reg.finditer(s):
        k = m.group(1)
        if m.group(2): r.update((k, i) for i in range(int(m.group(2)), int(m.group(3)) + 1))
        else: r.add((k, int(m.group(4))))
    if re.search(r"\bvcc\b", s): r.add(("s", "vcc"))
    if re.search(r"\bm0\b", s): r.add(("s", "m0"))
    if re.search(r"\bexec\b", s): r.add(("s", "exec"))
    return r
def split_ops(t):
    o = t.split(None, 1)
    if len(o) == 1: return o[0], []
    return o[0], [x.strip() for x in o[1].split(",")]
TRANS = ("v_exp", "v_rcp", "v_rsq", "v_log", "v_sqrt", "v_sin", "v_cos")
def info(ins):
    op, a = split_ops(ins.t)
    d = dict(op=op, kind="other", w=set(), r=set())
    if op.startswith("v_mfma"):
        d.update(kind="mfma", w=regs(a[0]), ab=regs(a[1]) | regs(a[2]), c=regs(a[3]), passes=4 if "16x16x32" in op else 8)
        d["r"] = d["ab"] | d["c"]
    elif op.startswith("v_"):
        d["kind"] = "valu"; d["trans"] = op.startswith(TRANS)
        d["w"] = regs(a[0]); d["r"] = set().union(*[regs(x) for x in a[1:]]) if len(a) > 1 else set()
        if op.startswith(("v_permlane16_swap", "v_permlane32_swap")): d["w"] |= regs(a[1]); d["r"] |= regs(a[0]); d["perm"] = True
        if op.startswith(("v_fmac", "v_dot2c")): d["r"] |= regs(a[0])
        if op.startswith(("v_add_co", "v_addc_co", "v_sub_co")): d["w"] |= regs(a[1])
        if "dpp" in op or "row_" in ins.t or "quad_perm" in ins.t: d["dpp"] = True; d["r"] |= regs(a[0])
        if op.startswith(("v_readfirstlane", "v_readlane")): d["rl"] = True
    elif op.startswith("ds_"):
        d["kind"] = "ds"
        if "read" in op or "bpermute" in op: d["w"] = regs(a[0]); d["r"] = set().union(*[regs(x) for x in a[1:]])
        else: d["r"] = set().union(*[regs(x) for x in a])
    elif op.startswith(("buffer_", "global_")):
        d["kind"] = "vm"
        if " lds" in ins.t or "_lds_" in op: d["r"] = regs(ins.t) | {("s", "m0")}; d["dma"] = True
        elif "load" in op: d["w"] = regs(a[0]); d["r"] = set().union(*[regs(x) for x in a[1:]])
        else:
            d["r"] = regs(ins.t)
            if "x4" in op or "x3" in op: d["wide"] = regs(a[0] if op.startswith("buffer_") else a[1])
    elif op.startswith("s_"):
        d["kind"] = "salu"
        if a and not op.startswith(("s_cmp", "s_cbranch", "s_branch", "s_waitcnt", "s_nop", "s_barrier", "s_setprio", "s_sleep")):
            d["w"] = regs(a[0]); d["r"] = set().union(*[regs(x) for x in a[1:]]) if len(a) > 1 else set()
    d["ws"] = (int(a[0]) + 1) if op == "s_nop" else (0 if (op.endswith(":") or op == "MARK") else 1)
    return d
def check(stream, name=""):
    inf = [info(x) for x in stream]
    bad = 0
    for j, c in enumerate(inf):
        if c["ws"] == 0: continue
        dist = 0
        for i in range(j - 1, max(-1, j - 24), -1):
            p = inf[i]
            need = 0; why = ""
            def upd(n, w):
                nonlocal need, why
                if n > need: need, why = n, w
            if p["kind"] == "mfma":
                big = 8 if p["passes"] == 4 else 12
                if c["kind"] in ("valu", "ds", "vm") and (p["w"] & (c["r"] | c["w"])): upd(big, "mfmaD->use")
                if c["kind"] == "mfma":
                    if p["w"] & c["ab"]: upd(big, "mfmaD->AB")
                    if (p["w"] & c["c"]) and p["w"] != c["c"]: upd(big - 2, "mfmaD->C partial")
                if c["kind"] == "valu" and (p["c"] & c["w"]): upd(3 if p["passes"] == 4 else 7, "mfmaC WAR")
            if p["kind"] == "valu":
                vw = {x for x in p["w"] if x[0] != "s"}; sw = {x for x in p["w"] if x[0] == "s"}
                if c["kind"] == "mfma" and (vw & c["r"]): upd(2, "valu->mfma")
                if c["kind"] == "valu":
                    if p.get("trans") and (vw & c["r"]): upd(1, "trans->valu")
                    if (c.get("perm") or c.get("dpp")) and (vw & c["r"]): upd(2, "valu->perm/dpp")
                    if c.get("rl") and (vw & c["r"]): upd(1, "valu->readlane")
                    if sw & c["r"]: upd(2, "valu sgpr->valu")
                if c["kind"] == "vm" and (sw & c["r"]): upd(5, "valu sgpr->vmem")
            if p["kind"] == "salu" and ("s", "m0") in p["w"] and c.get("dma"): upd(1, "m0->dma")
            if p["kind"] == "vm" and p.get("wide") and c["kind"] == "valu" and (p["wide"] & c["w"]): upd(2, "store data WAR")
            if need > dist:
                print(f"HAZARD[{name}] {why}: need {need} have {dist}: '{stream[i].t}' -> '{stream[j].t}'"); bad += 1
            dist += p["ws"]
            if dist > 12: break
    return bad

def text(stream):
    return "\n".join((x.t if x.t.endswith(":") else "  " + x.t) for x in stream if x.op() != "MARK") + "\n"
```

```python
import sys, struct
from fw2 import *
from asmlib import kernel_header, kernel_desc, KNAME

WS_OF = 0
WS_UF = 16 << 20
WS_HF = 22 << 20
WS_ST = 25 << 20
WS_FO = WS_ST + 65536
WS_FU = WS_FO + 4096
WS_FP = WS_FU + 4096
WS_PART = 26 << 20
WS_TS = 60 << 20
WS_SIZE = 64 << 20
MF = "v_mfma_f32_16x16x32_bf16"
def f2u(x): return struct.unpack("<I", struct.pack("<f", x))[0]
CS_Q = f2u(128 ** -0.5 * 1.4426950408889634)
def r4(k, i): return f"{k}[{i}:{i+3}]"
def r2(k, i): return f"{k}[{i}:{i+1}]"
def srd(d, lo, nbytes): return f"s_mov_b32 s{d}, s{lo}\ns_mov_b32 s{d+1}, s{lo+1}\ns_mov_b32 s{d+2}, {nbytes}\ns_mov_b32 s{d+3}, 0x20000"
def flat(G):
    out = []
    for g in G:
        out.extend(g)
        if "m0" in g[-1].t: out.append(I("s_nop 0"))
    return out

XS = 32768; WB = 98304; WSL = 8448
HSB = 148992; CSB = 158208
MSL = 29184; NM = 5
CB = 58368; CSL = 16640; K0B = 148992
QF = 192
NST = 9

class Gen:
    def __init__(self, opts, ts):
        self.o = opts; self.ts = ts; self.spins = []
    def stamp(self, p, i):
        if self.ts: p(f"s_memtime s[{64+4*i}:{65+4*i}]\ns_memrealtime s[{66+4*i}:{67+4*i}]")
    def poll(self, name, srdn, vaddr, soff, vdst, expect):
        ld = f"buffer_load_dword v{vdst}, v{vaddr}, s[{srdn}:{srdn+3}], {soff} offen sc1"
        chk = [W(vm=name), I(f"v_cmp_ne_u32 s[6:7], {expect}, v{vdst}"), I("s_cmp_lg_u64 s[6:7], 0"), I(f"s_cbranch_scc1 SP_{name}"), I(f"RT_{name}:")]
        if name not in [s[0] for s in self.spins]:
            self.spins.append((name, L(f"""SP_{name}:
            s_mov_b32 vcc_lo, 0x80000
            SQ_{name}:
            {ld}
            s_sub_u32 vcc_lo, vcc_lo, 1
            s_cbranch_scc1 RT_{name}
            s_waitcnt vmcnt(0)
            v_cmp_ne_u32 s[6:7], {expect}, v{vdst}
            s_cmp_lg_u64 s[6:7], 0
            s_cbranch_scc1 SQ_{name}
            s_branch RT_{name}""")))
        return I(ld, tag=name), chk

    def part0(self):
        o = self.o; p = Prog()
        ntq = " nt" if o.get("ntq") else ""
        p("s_cmp_ge_u32 s2, 256\ns_cbranch_scc1 K_end")
        self.stamp(p, 0)
        p(f"""
        s_load_dwordx8 s[20:27], s[0:1], 0
        s_load_dwordx2 s[40:41], s[0:1], 32
        s_load_dwordx4 s[36:39], s[0:1], 48
        s_load_dwordx8 s[44:51], s[0:1], 64
        s_load_dwordx2 s[12:13], s[0:1], 96
        s_getpc_b64 s[10:11]
        K_pc:
        v_and_b32 v2, 63, v0
        v_lshrrev_b32 v3, 6, v0
        s_and_b32 s16, s2, 7
        v_readfirstlane_b32 s18, v3
        s_lshr_b32 s17, s2, 3
        s_and_b32 s19, s16, 3
        s_lshl_b32 s19, s19, 3
        s_lshr_b32 s3, s16, 2
        s_lshl_b32 s3, s3, 2
        s_add_u32 s19, s19, s3
        s_and_b32 s3, s17, 3
        s_add_u32 s19, s19, s3
        s_lshr_b32 s5, s17, 2
        s_lshl_b32 s5, s5, 2
        s_add_u32 s5, s5, s18
        v_lshlrev_b32 v3, 4, v2
        """)
        p(f"""
        v_and_b32 v64, 31, v0
        v_lshrrev_b32 v65, 5, v0
        v_and_b32 v66, 3, v65
        v_lshrrev_b32 v67, 2, v65
        v_lshl_add_u32 v66, v67, 4, v66
        s_lshr_b32 s3, s2, 2
        s_lshl_b32 s3, s3, 5
        s_and_b32 s4, s2, 3
        s_lshl_b32 s4, s4, 2
        s_add_u32 s3, s3, s4
        v_add_u32 v66, s3, v66
        v_mul_u32_u24 v67, 1152, v66
        v_lshl_add_u32 v67, v64, 2, v67
        """)
        p(f"""
        v_lshrrev_b32 v4, 3, v2
        v_and_b32 v5, 7, v2
        v_lshrrev_b32 v6, 1, v4
        v_xor_b32 v6, v6, v5
        v_mul_u32_u24 v4, 1152, v4
        s_mul_i32 s3, s5, {64*1152}
        v_add_u32 v4, s3, v4
        v_lshl_add_u32 v10, v6, 4, v4
        v_xor_b32 v6, 4, v6
        v_lshl_add_u32 v11, v6, 4, v4
        v_add_u32 v11, {8*1152-1024}, v11
        """)
        for q in range(2, 8):
            p(f"v_add_u32 v{10+q}, {(q & ~1)*8*1152 - ((q & 3) - (q & 1))*1024}, v{10+(q&1)}")
        p(f"""
        v_lshrrev_b32 v4, 4, v2
        v_and_b32 v5, 1, v4
        v_lshlrev_b32 v5, 2, v5
        v_lshrrev_b32 v4, 1, v4
        v_lshl_add_u32 v4, v4, 4, v5
        s_and_b32 s3, s18, 1
        s_lshl_b32 s3, s3, 1
        s_lshr_b32 s4, s18, 1
        s_lshl_b32 s4, s4, 3
        s_add_u32 s3, s3, s4
        v_add_u32 v4, s3, v4
        v_lshlrev_b32 v4, 13, v4
        v_and_b32 v5, 15, v2
        v_lshl_add_u32 v4, v5, 4, v4
        s_lshl_b32 s3, s19, 8
        v_add_u32 v18, s3, v4
        v_add_u32 v19, {8192-1056}, v18
        s_lshl_b32 s56, s18, 13
        s_mul_i32 s57, s18, {2*1056}
        s_mov_b32 s58, 0
        s_mov_b32 s59, 0
        s_waitcnt lgkmcnt(0)
        {srd(28, 22, 16*2048*256)}
        {srd(32, 24, 16*2048*256)}
        {srd(24, 26, 576*8192)}
        s_mov_b32 s22, {2048*1152}
        s_mov_b32 s23, 0x20000
        """)
        for t in range(9): p(f"buffer_load_dword v{70+t}, v67, s[20:23], 0 offen offset:{128*t}", tag="hx")
        def dmaX(n, half):
            G = [[I(f"s_add_u32 m0, s56, {(n % 3)*XS + half*4096}")]]
            for q in range(4):
                G.append([I(f"buffer_load_dwordx4 v{10+4*half+q}, s[20:23], s58 offen offset:{1024*q} lds", tag=f"x{n}")])
            if half: G.append([I("s_add_u32 s58, s58, 128")])
            return G
        def dmaW(t):
            return [[I(f"s_add_u32 m0, s57, {WB + (t % 6)*WSL}")],
                    [I(f"buffer_load_dwordx4 v18, s[24:27], s59 offen{ntq} lds", tag=f"w{t}")],
                    [I(f"buffer_load_dwordx4 v19, s[24:27], s59 offen offset:1056{ntq} lds", tag=f"w{t}")],
                    [I(f"s_add_u32 s59, s59, {32*8192}")]]
        p(flat(dmaX(0, 0) + dmaW(0) + dmaX(0, 1) + dmaW(1)))
        p(f"""
        s_lshl_b32 s3, s17, 12
        v_lshl_add_u32 v4, v0, 4, s3
        v_min_u32 v4, K_end - K_pc - 16, v4
        global_load_dwordx4 v[232:235], v4, s[10:11]
        """)
        p(flat(dmaX(1, 0) + dmaW(2) + dmaX(1, 1) + dmaW(3) + dmaX(2, 0) + dmaW(4) + dmaX(2, 1) + dmaW(5)))
        p(f"""
        s_mov_b32 s14, {WS_SIZE}
        s_mov_b32 s15, 0x20000
        s_mov_b32 s100, s38
        s_mov_b32 s101, s39
        s_mov_b32 s38, {2048*9216}
        s_mov_b32 s39, 0x20000
        s_cmp_lt_u32 s16, 4
        s_cselect_b32 s40, s40, s44
        s_cselect_b32 s41, s41, s45
        s_mov_b32 s3, {4608*4096}
        s_cselect_b32 s42, {4096*1152}, s3
        s_mov_b32 s43, 0x20000
        {srd(52, 50, 256)}
        s_mov_b32 s50, {2048*1152}
        s_mov_b32 s51, 0x20000
        v_mov_b32 v8, 0x7fff0000
        v_cmp_eq_u32 vcc, 0, v0
        v_mov_b32 v9, 1
        v_mov_b32 v4, 0
        v_cndmask_b32 v8, v8, v4, vcc
        """)
        p(f"""
        s_min_u32 s3, s17, 26
        s_mul_i32 s4, s16, 27
        s_add_u32 s3, s3, s4
        s_mul_i32 s8, s3, 10923
        s_lshr_b32 s8, s8, 16
        s_mul_i32 s4, s8, 6
        s_sub_u32 s9, s3, s4
        s_lshr_b32 s4, s16, 1
        s_mul_i32 s4, s4, 10
        s_add_u32 s3, s3, s4
        s_lshl_b32 s3, s3, 2
        s_add_u32 s45, s3, {WS_FU}
        s_lshl_b32 s4, s2, 2
        s_add_u32 s4, s4, {WS_FU + 1024}
        s_cmp_ge_u32 s17, 27
        s_cselect_b32 s45, s4, s45
        s_lshr_b32 s3, s19, 3
        s_lshl_b32 s3, s3, 3
        s_lshr_b32 s4, s17, 2
        s_add_u32 s3, s3, s4
        s_lshl_b32 s3, s3, 5
        s_and_b32 s4, s19, 7
        s_add_u32 s3, s3, s4
        s_lshl_b32 s3, s3, 2
        s_add_u32 s44, s3, {WS_FO}
        s_lshl_b32 s3, s17, 5
        s_add_u32 s3, s3, s16
        s_lshl_b32 s3, s3, 2
        s_add_u32 s3, s3, {WS_FP}
        """)
        for s in ("s44", "s45", "s3"): p(f"buffer_store_dword v4, v8, s[12:15], {s} offen sc1", tag="hst")
        p(f"""
        v_lshrrev_b32 v4, 4, v2
        v_bfe_u32 v5, v2, 2, 2
        v_and_b32 v6, 1, v4
        v_lshl_add_u32 v5, v6, 2, v5
        v_mul_u32_u24 v5, 1056, v5
        v_lshrrev_b32 v6, 1, v4
        v_lshl_add_u32 v5, v6, 9, v5
        v_and_b32 v6, 3, v2
        v_lshl_add_u32 v5, v6, 3, v5
        v_add_u32 v5, {WB}, v5
        """)
        for kp in range(4):
            p(f"s_xor_b32 s3, s18, {kp}\ns_lshl_b32 s3, s3, 6\nv_add_u32 v{20+kp}, s3, v5")
        p(f"""
        v_and_b32 v5, 15, v2
        v_lshrrev_b32 v6, 1, v5
        v_xor_b32 v6, v6, v4
        v_lshlrev_b32 v5, 7, v5
        v_add_u32 v5, s56, v5
        v_lshl_add_u32 v24, v6, 4, v5
        v_xor_b32 v6, 4, v6
        v_lshl_add_u32 v25, v6, 4, v5
        v_add_u32 v26, 65536, v24
        v_add_u32 v27, 65536, v25
        """)
        for e in range(4): p(f"v_mov_b32 v{36+e}, 0x3f803f80")
        p(f"""
        v_lshrrev_b32 v4, 4, v2
        v_lshlrev_b32 v4, 3, v4
        s_lshr_b32 s3, s18, 1
        s_lshl_b32 s3, s3, 5
        s_and_b32 s4, s18, 1
        s_lshl_b32 s4, s4, 2
        s_add_u32 s3, s3, s4
        v_add_u32 v4, s3, v4
        v_mul_u32_u24 v4, 9216, v4
        v_and_b32 v5, 15, v2
        v_lshl_add_u32 v4, v5, 4, v4
        s_lshl_b32 s3, s8, 8
        v_add_u32 v28, s3, v4
        v_add_u32 v29, {9216-1056}, v28
        v_add_u32 v30, {2*(9216-1056)}, v28
        v_add_u32 v31, {3*(9216-1056)}, v28
        s_lshr_b32 s3, s18, 1
        s_mul_i32 s3, s3, 36
        s_mul_i32 s4, s9, 6
        s_add_u32 s3, s3, s4
        s_and_b32 s4, s18, 1
        s_mul_i32 s4, s4, 3
        s_add_u32 s3, s3, s4
        s_lshl_b32 s3, s3, 10
        s_add_u32 s3, s3, {WS_HF}
        v_add_u32 v32, s3, v3
        s_mul_i32 s60, s18, {4*1056}
        s_mul_i32 s61, s18, 3072
        s_add_u32 s61, s61, 16896
        s_mov_b32 s62, 0
        s_mov_b32 s63, 0
        s_lshl_b32 s3, s8, 8
        s_and_b32 s4, s18, 1
        s_lshl_b32 s4, s4, 7
        s_add_u32 s3, s3, s4
        v_lshrrev_b32 v4, 4, v2
        v_lshl_add_u32 v4, v4, 3, s3
        v_and_b32 v5, 15, v2
        s_lshl_b32 s3, s5, 9
        s_add_u32 s3, s3, {WS_ST}
        v_lshl_add_u32 v33, v5, 3, s3
        v_lshlrev_b32 v34, 2, v2
        """)
        for f in range(4): p(f"global_load_dwordx2 v[{40+2*f}:{41+2*f}], v4, s[100:101] offset:{32*f}", tag="b1")
        p(W(vm="hx"))
        X = 80
        def red32(v, t):
            for n in (8, 4, 2, 1):
                p(f"s_nop 1\nv_add_f32_dpp v{v}, v{v}, v{v} row_ror:{n} row_mask:0xf bank_mask:0xf")
            p(f"v_mov_b32 v{t}, v{v}\ns_nop 1\nv_permlane16_swap_b32 v{v}, v{t}\nv_add_f32 v{v}, v{v}, v{t}")
        def unpack():
            for t in range(9): p(f"v_lshlrev_b32 v{X+2*t}, 16, v{70+t}\nv_and_b32 v{X+2*t+1}, 0xffff0000, v{70+t}")
        def ln(first):
            p(f"v_add_f32 v100, v{X}, v{X+1}")
            for e in range(2, 18): p(f"v_add_f32 v100, v100, v{X+e}")
            red32(100, 101)
            p(f"v_mul_f32 v100, {f2u(-1.0/576):#x}, v100")
            for e in range(18): p(f"v_add_f32 v{X+e}, v100, v{X+e}")
            p(f"v_mul_f32 v102, v{X}, v{X}")
            for e in range(1, 18): p(f"v_fmac_f32 v102, v{X+e}, v{X+e}")
            red32(102, 101)
            p(f"v_mov_b32 v101, {f2u(1e-5):#x}\nv_fmac_f32 v101, {f2u(1.0/576):#x}, v102\nv_rsq_f32 v101, v101\ns_nop 0")
            for e in range(18): p(f"v_mul_f32 v{X+e}, v101, v{X+e}")
            for t in range(9): p(f"v_cvt_pk_bf16_f32 v{70+t}, v{X+2*t}, v{X+2*t+1}")
            if first:
                p(f"""v_mov_b32 v104, v100
                v_mul_f32 v105, {CS_Q:#x}, v101
                v_lshlrev_b32 v68, 3, v66
                v_add_u32 v68, {WS_ST}, v68
                v_mov_b32 v69, 0x7fff0000
                v_cmp_eq_u32 vcc, 0, v64
                s_nop 1
                v_cndmask_b32 v68, v69, v68, vcc""")
                p("buffer_store_dwordx2 v[104:105], v68, s[12:15], 0 offen sc1", tag="hst")
        unpack(); ln(True); unpack(); ln(False)
        p(f"v_mul_u32_u24 v68, 1152, v65\nv_lshl_add_u32 v68, v64, 2, v68\nv_add_u32 v68, {HSB}, v68")
        for t in range(9): p(f"ds_write_b32 v68, v{70+t} offset:{128*t}")
        p(f"""
        v_min_u32 v68, 143, v0
        v_lshlrev_b32 v68, 3, v68
        v_add_u32 v68, {HSB}, v68
        v_lshrrev_b32 v4, 2, v0
        v_lshlrev_b32 v4, 10, v4
        v_and_b32 v5, 3, v0
        v_lshl_add_u32 v4, v5, 6, v4
        v_cmp_gt_u32 vcc, 144, v0
        s_lshr_b32 s3, s2, 2
        s_mul_i32 s3, s3, {36*1024}
        v_cndmask_b32 v4, v69, v4, vcc
        s_and_b32 s4, s2, 3
        s_lshl_b32 s4, s4, 8
        s_add_u32 s3, s3, s4
        s_add_u32 s3, s3, {WS_HF}
        s_mov_b32 s6, 0x05040100
        s_mov_b32 s7, 0x07060302
        """)
        p(W(vm=["x0", "w0"], lg=0)); p("s_barrier")
        self.stamp(p, 1)
        def qA(s, t): return 48 * s + 4 * t
        def qB(s, q): return 48 * s + 32 + 4 * q
        self.qacc = qacc = lambda t, q: 64 + (t * 4 + q) * 4
        CSA = 56
        def qreads(t):
            s = t % 2; n = t // 2; kk = t % 2; sl = n % 3
            R = [I(f"ds_read_b128 {r4('a', qB(s,q))}, v{24 + kk + (2 if sl == 2 else 0)} offset:{(sl & 1)*XS*(sl != 2) + 2048*q}") for q in range(4)]
            for tl in range(8):
                for h in range(2):
                    R.append(I(f"ds_read_b64_tr_b16 {r2('a', qA(s,tl)+2*h)}, v{20+tl//2} offset:{(t % 6)*WSL + (tl & 1)*32 + h*256}"))
            return R
        for j in range(8): p(f"ds_read_b64 v[{200+2*j}:{201+2*j}], v68 offset:{1152*j}")
        p(qreads(0))
        p(W(lg=0))
        for e in range(4):
            for jp in range(4):
                p(f"v_perm_b32 v{216+4*e+jp}, v{200+2*(2*jp+1)+(e>>1)}, v{200+2*(2*jp)+(e>>1)}, s{6+(e&1)}")
            p(f"buffer_store_dwordx4 v[{216+4*e}:{219+4*e}], v4, s[12:15], s3 offen offset:{16*e} sc1", tag="hst")
        p(W(vm=["w1"])); p("s_barrier")
        ntw1 = " nt" if o.get("ntw1") else ""
        hs = " sc1" if o.get("sc1dma", 1) else ""
        def dmaM(n):
            b = (n % NM) * MSL
            G = [[I(f"s_add_u32 m0, s60, {b}")]]
            for q in range(4): G.append([I(f"buffer_load_dwordx4 v{28+q}, s[36:39], s62 offen offset:{1056*q}{ntw1} lds", tag=f"m{n}")])
            G.append([I(f"s_add_u32 s62, s62, {64*9216}")])
            G.append([I(f"s_add_u32 m0, s61, {b}")])
            for q in range(3): G.append([I(f"buffer_load_dwordx4 v32, s[12:15], s63 offen offset:{1024*q}{hs} lds", tag=f"m{n}")])
            G.append([I(f"s_add_u32 s63, s63, {2*36*1024}")])
            return G
        self.dmaM = dmaM
        pl, chk = self.poll("pH", 52, 34, 0, 35, 4)
        for t in range(18):
            s = t % 2; M = []
            for tl in range(8):
                for q in range(4):
                    d = r4('v', qacc(tl, q))
                    M.append(I(f"{MF} {d}, {r4('a', qA(s,tl))}, {r4('a', qB(s,q))}, {'0' if t == 0 else d}"))
                if tl < 2:
                    d = r4('v', CSA + 4 * tl)
                    M.append(I(f"{MF} {d}, {r4('a', qA(s,tl))}, v[36:39], {'0' if t == 0 else d}"))
            n = len(M); g = Gaps(n)
            if t < 17:
                need = [f"w{t+2}", f"x{(t+2)//2}"] if t + 2 < 18 else []
                if t == 2: need.append("hst")
                g.tail(n - 1, [W(vm=need or None, lg=0), I("s_barrier")])
            D = []
            if t >= 1 and (t - 1) // 2 + 3 < 9: D += dmaX((t - 1) // 2 + 3, (t - 1) % 2)
            if t + 6 < 18: D += dmaW(t + 6)
            if t == 3: D += [[I("s_lshr_b32 s3, s2, 2")], [I("s_lshl_b32 s3, s3, 2")], [I("buffer_atomic_add v9, v8, s[52:55], s3 offen sc1")]]
            if t == 9: D += [[pl]]
            if t == 12: D += [chk] + [[I(f"buffer_load_dwordx2 v[{48+2*q}:{49+2*q}], v33, s[12:15], 0 offen offset:{128*q} sc1", tag="st")] for q in range(4)]
            if t == 13: D += dmaM(0)
            if t == 15: D += dmaM(1)
            if t == 17: D += dmaM(2)
            if D: g.spread(D, 0, n - 3)
            if t < 17: g.spread(qreads(t + 1), 0, n - 8)
            p(g.weave(M))
        self.stamp(p, 2)
        p(f"""
        v_lshrrev_b32 v4, 4, v2
        s_lshl_b32 s3, s18, 7
        s_add_u32 s3, s3, {CSB}
        v_lshl_add_u32 v20, v4, 4, s3
        ds_write_b128 v20, v[{CSA}:{CSA+3}]
        ds_write_b128 v20, v[{CSA+4}:{CSA+7}] offset:64
        v_xor_b32 v21, 128, v20
        v_xor_b32 v22, 256, v20
        v_xor_b32 v23, 384, v20
        """)
        p(W(vm="b1"))
        for f in range(4):
            p(f"""v_lshlrev_b32 v4, 16, v{40+2*f}
            v_and_b32 v5, 0xffff0000, v{40+2*f}
            v_lshlrev_b32 v6, 16, v{41+2*f}
            v_and_b32 v7, 0xffff0000, v{41+2*f}""")
            for e in range(4): p(f"v_accvgpr_write_b32 a{240+4*f+e}, v{4+e}")
        p(f"""
        v_lshrrev_b32 v4, 2, v2
        v_and_b32 v5, 7, v4
        v_mul_u32_u24 v5, 1056, v5
        v_lshrrev_b32 v4, 3, v4
        v_lshl_add_u32 v5, v4, 8, v5
        v_and_b32 v4, 3, v2
        v_lshl_add_u32 v19, v4, 3, v5
        s_cmp_ge_u32 s17, 27
        s_cbranch_scc1 K_skip
        """)
        return p

    def core_setup(self):
        c = L(f"""
        v_lshrrev_b32 v4, 4, v2
        s_lshl_b32 s3, s18, 3
        v_add_u32 v4, s3, v4
        v_and_b32 v5, 15, v2
        v_and_b32 v6, 15, v4
        v_xor_b32 v6, v5, v6
        v_lshlrev_b32 v6, 4, v6
        v_lshl_add_u32 v10, v4, 8, v6
        v_add_u32 v4, 4, v4
        v_and_b32 v6, 15, v4
        v_xor_b32 v6, v5, v6
        v_lshlrev_b32 v6, 4, v6
        v_lshl_add_u32 v11, v4, 8, v6
        v_subrev_u32 v11, 1024, v11
        v_lshrrev_b32 v4, 4, v2
        v_lshlrev_b32 v4, 3, v4
        s_lshl_b32 s3, s18, 1
        v_add_u32 v4, s3, v4
        v_lshlrev_b32 v5, 4, v5
        v_lshl_add_u32 v12, v4, 8, v5
        v_add_u32 v12, 1024, v12
        v_add_u32 v13, {256-1056}, v12
        s_lshr_b32 s58, s19, 1
        s_lshl_b32 s58, s58, 19
        s_add_u32 s58, s58, {1536*256}
        s_sub_u32 s59, s58, 1024
        s_lshl_b32 s56, s18, 11
        s_mul_i32 s57, s18, {2*1056}
        s_add_u32 s57, s57, 8192
        v_and_b32 v4, 15, v2
        v_lshrrev_b32 v5, 4, v2
        v_lshrrev_b32 v6, 1, v5
        v_and_b32 v7, 1, v5
        v_lshl_add_u32 v5, v7, 1, v6
        v_lshlrev_b32 v7, 8, v4
        v_add_u32 v7, {CB}, v7
        """)
        for kp in range(4):
            c += L(f"""s_xor_b32 s3, s18, {kp}
            s_lshl_b32 s3, s3, 2
            v_add_u32 v6, s3, v5
            v_xor_b32 v6, v6, v4
            v_lshl_add_u32 v{14+kp}, v6, 4, v7""")
        c += L(f"v_add_u32 v18, {CB + 8192}, v19")
        return c
    def dmaK(self, base, tag):
        return [[I(f"s_add_u32 m0, s56, {base}")], [I(f"buffer_load_dwordx4 v10, s[28:31], s58 offen lds", tag=tag)],
                [I(f"buffer_load_dwordx4 v11, s[28:31], s58 offen offset:1024 lds", tag=tag)], [I("s_add_u32 s58, s58, 8192")]]
    def dmaV(self, base, tag):
        return [[I(f"s_add_u32 m0, s57, {base}")], [I(f"buffer_load_dwordx4 v12, s[32:35], s59 offen lds", tag=tag)],
                [I(f"buffer_load_dwordx4 v13, s[32:35], s59 offen offset:1056 lds", tag=tag)], [I("s_add_u32 s59, s59, 8192")]]
    def dmaC(self, n):
        G = []
        if n + 1 <= 15: G += self.dmaK(CB + (n % 4) * CSL, f"c{n}")
        return G + self.dmaV(CB + (n % 4) * CSL, f"c{n}")
    def qepi(self):
        qacc = self.qacc
        rd = []; ops = []
        for kp in range(4):
            T = 40 if kp % 2 == 0 else 56
            rd.append([I(f"ds_read_b128 {r4('v', T)}, v{20+kp}"), I(f"ds_read_b128 {r4('v', T+4)}, v{20+kp} offset:64")])
            L_ = []
            for q in range(4):
                for tl in range(2):
                    for e in range(4): L_.append(I(f"v_fmac_f32 v{qacc(2*kp+tl, q)+e}, v{T+4*tl+e}, v{48+2*q}"))
                for tl in range(2):
                    for e in range(4): L_.append(I(f"v_mul_f32 v{qacc(2*kp+tl, q)+e}, v{qacc(2*kp+tl, q)+e}, v{49+2*q}"))
                F = QF + (q * 4 + kp) * 4
                for tl in range(2):
                    for h in range(2):
                        r = qacc(2 * kp + tl, q) + 2 * h
                        L_.append(I(f"v_cvt_pk_bf16_f32 v{F+2*tl+h}, v{r}, v{r+1}"))
            for q in range(4):
                F = QF + (q * 4 + kp) * 4
                L_.append(I(f"v_permlane16_swap_b32 v{F}, v{F+2}")); L_.append(I(f"v_permlane16_swap_b32 v{F+1}, v{F+3}"))
            ops.append(L_)
        return rd, ops

    def partA(self):
        o = self.o; p = Prog(); dmaM = self.dmaM
        p(f"""
        s_and_b32 s3, s18, 1
        s_lshl_b32 s3, s3, 7
        v_add_u32 v24, s3, v19
        v_add_u32 v25, {2*MSL}, v24
        v_add_u32 v26, {4*MSL}, v24
        s_lshr_b32 s3, s18, 1
        s_mul_i32 s3, s3, 3072
        s_add_u32 s3, s3, 16896
        v_add_u32 v33, s3, v3
        v_add_u32 v34, {2*MSL}, v33
        v_add_u32 v35, {4*MSL}, v33
        """)
        def mA(s, f): return 28 * s + 4 * f
        def mB(s, d): return 28 * s + 16 + 4 * d
        def macc(f, d): return 192 + (f * 3 + d) * 4
        def mreads(t):
            s = t % 2; n = t // 2; kk = t % 2; sl = n % NM; off = (sl & 1) * MSL
            R = [I(f"ds_read_b128 {r4('a', mB(s,d))}, v{33+sl//2} offset:{off + kk*6144 + 1024*d}") for d in range(3)]
            for f in range(4):
                for h in range(2):
                    R.append(I(f"ds_read_b64_tr_b16 {r2('a', mA(s,f)+2*h)}, v{24+sl//2} offset:{off + kk*8448 + 32*f + 512*h}"))
            return R
        p(W(vm=["m0", "st"], lg=0)); p("s_barrier")
        rd, ops = self.qepi()
        p(mreads(0)); p(rd[0]); p(rd[1])
        p(flat(dmaM(3)))
        p(W(lg=0))
        bg = ops[0] + rd[2] + ops[1] + rd[3] + ops[2] + ops[3] + self.core_setup()
        BGN = o.get("bgn", 12)
        for t in range(64):
            n = t // 2; kk = t % 2; s = t % 2
            p.mark("B10")
            M = []
            for f in range(4):
                for d in range(3):
                    a = r4('a', macc(f, d))
                    M.append(I(f"{MF} {a}, {r4('a', mA(s,f))}, {r4('a', mB(s,d))}, {r4('a', 240+4*f) if t == 0 else a}"))
            g = Gaps(12)
            if t < 63:
                if kk == 0: g.tail(11, [W(vm=(f"m{n+1}" if n + 1 < 32 else None), lg=0), I("s_barrier")])
                else: g.tail(11, [W(lg=0)])
            D = []
            if t == 0: D = dmaM(4)
            else:
                m = (t - 1) // 2
                if m + 5 < 32:
                    G = dmaM(m + 5); D = G[:6] if kk == 1 else G[6:]
            if t == 55: D = self.dmaK(K0B, "k0")
            if t == 56: D = self.dmaC(0)
            if t == 58: D = self.dmaC(1)
            if t == 60: D = self.dmaC(2)
            if t < 63: g.spread(mreads(t + 1), 0, 7)
            if D: g.spread(D, 0, 10)
            if bg:
                g.cap = 3
                take = bg[:BGN]
                rest = g.fill(take, 0, 10)
                bg = rest + bg[BGN:]
            p(g.weave(M))
            if t == 54: assert not bg
        p.mark("B0")
        self.stamp(p, 3)
        p(f"""
        s_lshl_b32 s3, s8, 2
        s_and_b32 s4, s18, 1
        s_lshl_b32 s4, s4, 1
        s_add_u32 s3, s3, s4
        s_mul_i32 s3, s3, 36
        s_mul_i32 s4, s9, 6
        s_add_u32 s3, s3, s4
        s_lshr_b32 s4, s18, 1
        s_mul_i32 s4, s4, 3
        s_add_u32 s3, s3, s4
        s_lshl_b32 s3, s3, 10
        s_add_u32 s3, s3, {WS_UF}
        v_add_u32 v4, s3, v3
        v_add_u32 v5, {36*1024}, v4
        s_mov_b32 s4, {f2u(-0.10294324):#x}
        v_mov_b32 v6, {f2u(-2.3022082):#x}
        """)
        for fp in range(2):
            for d in range(3):
                U = 64 + ((fp * 3 + d) % 2) * 32; T = U + 8; O = U + 16
                for e in range(8): p(f"v_accvgpr_read_b32 v{U+e}, a{macc(2*fp + e//4, d) + e%4}")
                for e in range(8): p(f"v_mul_f32 v{T+e}, v{U+e}, v{U+e}")
                for e in range(8): p(f"v_fma_f32 v{T+e}, v{T+e}, s4, v6")
                for e in range(8): p(f"v_mul_f32 v{T+e}, v{T+e}, v{U+e}")
                for e in range(8): p(f"v_exp_f32 v{T+e}, v{T+e}")
                for e in range(8): p(f"v_add_f32 v{T+e}, 1.0, v{T+e}")
                for e in range(8): p(f"v_rcp_f32 v{T+e}, v{T+e}")
                for e in range(8): p(f"v_mul_f32 v{T+e}, v{T+e}, v{U+e}")
                for e in range(4): p(f"v_cvt_pk_bf16_f32 v{O+e}, v{T+2*e}, v{T+2*e+1}")
                p(I(f"buffer_store_dwordx4 {r4('v', O)}, v{4+fp}, s[12:15], 0 offen offset:{1024*d} sc1", cond=True))
        p("s_branch K_core")
        return p
    def partB(self):
        p = Prog()
        p("K_skip:")
        p(W(vm=0, lg=0)); p("s_barrier")
        p(self.core_setup())
        p(flat(self.dmaK(K0B, "k0") + self.dmaC(0) + self.dmaC(1) + self.dmaC(2)))
        rd, ops = self.qepi()
        for kp in range(4):
            p(rd[kp]); p(W(lg=0)); p(ops[kp][:-8]); p("s_nop 1"); p(ops[kp][-8:])
        self.stamp(p, 3)
        return p

    KB, VB, MN, LA = 128, 160, 160, 176
    def S(self, b): return 64 + 32 * b
    def P(self, b): return 128 + 16 * b
    def readK(self, off, base, ar=14):
        return [I(f"ds_read_b128 {r4('a', base+(kt*4+ks)*4)}, v{ar+ks} offset:{off+kt*4096}") for kt in range(2) for ks in range(4)]
    def readV(self, off, ar=18):
        return [I(f"ds_read_b64_tr_b16 {r2('a', self.VB+dt*4+2*h)}, v{ar} offset:{off+dt*32+h*512}") for dt in range(8) for h in range(2)]
    def QK(self, b, kbase, zero):
        M = []
        for kt in range(2):
            for ks in range(4):
                for qt in range(4):
                    d = self.S(b) + (kt * 4 + qt) * 4
                    c = ("0" if zero else r4('v', self.MN + 4 * qt)) if ks == 0 else r4('v', d)
                    M.append(I(f"{MF} {r4('v', d)}, {r4('a', kbase+(kt*4+ks)*4)}, {r4('v', QF+(qt*4+ks)*4)}, {c}"))
        return M
    def PV(self, b, zero, nm):
        M = []
        for qt in range(nm):
            d = r4('v', self.LA + 4 + 4 * qt)
            M.append(I(f"{MF} {d}, v[36:39], {r4('v', self.P(b)+qt*4)}, {'0' if zero else d}"))
        for dt in range(8):
            for qt in range(4):
                d = r4('a', (dt * 4 + qt) * 4)
                M.append(I(f"{MF} {d}, {r4('a', self.VB+dt*4)}, {r4('v', self.P(b)+qt*4)}, {'0' if zero else d}"))
        return M
    def SM(self, b, h, nm):
        U = []; E = []; A = []; C = []
        for e in range(16):
            r = self.S(b) + 16 * h + e; qt = e // 4
            U.append(I(f"v_add_f32 v{r}, v{self.MN+4*qt}, v{r}")); E.append(I(f"v_exp_f32 v{r}, v{r}"))
            A.append(I(f"v_add_f32 v{self.LA+qt}, v{self.LA+qt}, v{r}") if qt >= nm else None)
            if e % 2: C.append(I(f"v_cvt_pk_bf16_f32 v{self.P(b)+qt*4+2*h+(e%4)//2}, v{r-1}, v{r}"))
        return U, E, A, C
    def phase(self, p, M, sm, reads, D, tail, carry, sub=False, defer=False, extra=None):
        n = len(M); g = Gaps(n)
        g.tail(n - 1, tail)
        eg = None
        if sm:
            U, E, A, C = sm
            eg = [(e * (n - 2)) // 16 for e in range(16)]
            for e in range(16): g.put(eg[e], E[e], force=True)
            if sub:
                g.pre.append(U[0])
                for e in range(1, 16): g.put(eg[e] - 1, U[e], force=True)
            for e in range(8): g.put(eg[2 * e + 1] + 1, C[e])
        if reads: g.spread(reads, 0, n - 7)
        if D: g.spread(D, 0, n - 3)
        for a in carry: g.put(0, a)
        out = []
        if sm:
            for e in range(16):
                if A[e] is None: continue
                q = eg[e] + 1
                while q < n and not g.fits(q, [A[e]]): q += 1
                if q < n: g.put(q, A[e], force=True)
                elif defer: out.append(A[e])
                else: g.put(eg[e] + 1, A[e])
        if extra: extra(g)
        p(g.weave(M))
        return out
    def iter(self, p, i, carry, Dq=None, Dp=None, pvtail=None, pvextra=None, pre_pv=None):
        nm = self.o.get("nm", 2); b = i % 2
        if i >= 1:
            if i < 15:
                carry = self.phase(p, self.QK(1 - b, self.KB, False), self.SM(b, 1, nm), self.readV((i % 4) * CSL), Dq or [],
                                   [W(vm=f"c{i+1}", lg=0), I("s_barrier")], carry, sub=(i == 1), defer=True)
            else:
                p(self.readV((i % 4) * CSL)); U, E, A, C = self.SM(b, 1, nm); p(E); p(C); p([a for a in A if a])
                p(pre_pv or [W(lg=0)])
        D = [] if i + 3 > 15 else self.dmaC(i + 3)
        carry = self.phase(p, self.PV(b, i == 0, nm), self.SM(1 - b, 0, nm) if i < 15 else None,
                           self.readK(((i + 1) % 4) * CSL, self.KB) if i + 2 <= 15 else [], D + (Dp or []), pvtail or [W(lg=0)], carry,
                           sub=(i == 0), extra=pvextra)
        return carry
    def maxops(self, b, run=False):
        mx = []
        for qt in range(4):
            r0 = self.S(b) + qt * 4; r1 = r0 + 16; t = 40 + qt
            if run: mx += L(f"v_max3_f32 v{t}, v{t}, v{r0}, v{r0+1}\nv_max3_f32 v{t}, v{t}, v{r0+2}, v{r0+3}\nv_max3_f32 v{t}, v{t}, v{r1}, v{r1+1}\nv_max3_f32 v{t}, v{t}, v{r1+2}, v{r1+3}")
            else: mx += L(f"v_max3_f32 v{t}, v{r0}, v{r0+1}, v{r0+2}\nv_max3_f32 v{t}, v{t}, v{r0+3}, v{r1}\nv_max3_f32 v{t}, v{t}, v{r1+1}, v{r1+2}\nv_max_f32 v{t}, v{t}, v{r1+3}")
        return mx
    def maxfin(self):
        mx = []
        for sw in ("v_permlane16_swap_b32", "v_permlane32_swap_b32"):
            for qt in range(4): mx += L(f"v_mov_b32 v{44+qt}, v{40+qt}")
            mx += L("s_nop 0")
            for qt in range(4): mx += L(f"{sw} v{40+qt}, v{44+qt}")
            for qt in range(4): mx += L(f"v_max_f32 v{40+qt}, v{40+qt}, v{44+qt}")
        for qt in range(4):
            for e in range(4): mx += L(f"v_sub_f32 v{self.MN+4*qt+e}, 0xc2000000, v{40+qt}")
        return mx
    def partC(self):
        p = Prog(); nm = self.o.get("nm", 2)
        p("K_core:")
        p(W(vm=["k0", "c0"])); p("s_barrier"); self.stamp(p, 4)
        for ks in range(4): p(f"v_add_u32 v{4+ks}, {K0B-CB}, v{14+ks}")
        p(self.readK(0, self.VB, ar=4))
        for qt in range(4): p(f"v_mov_b32 v{self.LA+qt}, 0")
        p(W(lg=0))
        self.phase(p, self.QK(0, self.VB, True), None, self.readK(0, self.KB), [], [W(lg=0)], [])
        M = self.QK(1, self.KB, True); g = Gaps(32, cap=3)
        g.spread(self.readV(0), 0, 15)
        g.spread(self.maxops(0) + self.maxfin(), 4, 31)
        p(g.weave(M))
        for h in range(2):
            U, E, A, C = self.SM(0, h, nm); p(U); p(E); p(C); p([a for a in A if a])
        p(W(vm="c1", lg=0)); p("s_barrier")
        carry = []
        for i in range(13):
            p.mark("B4")
            Dp = [[I("buffer_store_dword v9, v8, s[12:15], s45 offen sc1")]] if i == 2 else None
            carry = self.iter(p, i, carry, Dp=Dp)
        p.mark("B0")
        assert not carry
        p("s_cmp_ge_u32 s16, 4\ns_cbranch_scc1 K_U")
        return p
    def lfin(self, tagname):
        nm = self.o.get("nm", 2); LA = self.LA
        c = []
        qs = list(range(nm, 4))
        for sw in ("v_permlane16_swap_b32", "v_permlane32_swap_b32"):
            for qt in qs: c += L(f"v_mov_b32 v{44+qt}, v{LA+qt}")
            c += L("s_nop 1")
            for qt in qs: c += L(f"{sw} v{LA+qt}, v{44+qt}")
            for qt in qs: c += L(f"v_add_f32 v{LA+qt}, v{LA+qt}, v{44+qt}")
        for qt in range(nm): c += L(f"v_mov_b32 v{LA+qt}, v{LA+4+4*qt}")
        c += L(f"""v_add_f32 v45, v{LA}, v{LA+1}
        v_add_f32 v46, v{LA+2}, v{LA+3}
        v_add_f32 v44, v45, v46
        v_mov_b32 v45, {self.o.get('thr', 0x5f800000):#x}
        v_cmp_nlt_f32 s[6:7], v44, v45
        s_cmp_lg_u64 s[6:7], 0
        s_cbranch_scc0 FBR_{tagname}
        s_call_b64 s[6:7], K_fallback
        FBR_{tagname}:""")
        for qt in range(4): c += L(f"v_rcp_f32 v{40+qt}, v{LA+qt}")
        return c
    def oepi(self, dst, tmp):
        out = []; i = 0
        for k in range(4):
            c = []
            for qt in range(4):
                r = tmp(i); i += 1; d = dst(k, qt)
                for e in range(8): c.append(I(f"v_accvgpr_read_b32 v{r+e}, a{((2*k+e//4)*4+qt)*4+e%4}"))
                for e in range(8): c.append(I(f"v_mul_f32 v{r+e}, v{r+e}, v{40+qt}"))
                for j in range(4): c.append(I(f"v_cvt_pk_bf16_f32 v{d+j}, v{r+2*j}, v{r+2*j+1}"))
                c.append(I(f"buffer_store_dwordx4 {r4('v', d)}, v3, s[12:15], s11 offen offset:{1024*qt} sc1", tag="ost"))
            c.append(I(f"s_add_u32 s11, s11, {128*1024}"))
            out.append(c)
        return out
    OBASE = f"""
        s_lshl_b32 s11, s19, 19
        s_lshl_b32 s4, s5, 12
        s_add_u32 s11, s11, s4
        s_add_u32 s11, s11, {WS_OF}
        """
    def acc2(self, t, u): return r4('a', 128 + (t * 4 + u) * 4) if t < 8 else r4('v', 240 + 4 * u)

    def partO(self):
        o = self.o; p = Prog()
        ntw = " nt" if o.get("ntwo") else ""
        NW = 6
        p("s_mul_i32 s3, s18, 144\nv_add_u32 v7, s3, v2\ns_and_b32 s4, s17, 3\ns_mul_i32 s4, s4, 288")
        for i in range(3):
            p(f"""v_add_u32 v4, {64*i}, v7
            v_mul_u32_u24 v5, 3641, v4
            v_lshrrev_b32 v5, 16, v5
            v_mul_u32_u24 v6, 18, v5
            v_sub_u32 v6, v4, v6
            v_mul_u32_u24 v5, 1152, v5
            v_lshl_add_u32 v6, v6, 4, v5
            v_add_u32 v{20+i}, s4, v6
            s_sub_u32 s4, s4, 1024""")
        p(f"""
        v_lshrrev_b32 v4, 2, v2
        v_mul_u32_u24 v4, 288, v4
        v_and_b32 v5, 3, v2
        v_lshl_add_u32 v23, v5, 3, v4
        v_lshlrev_b32 v24, 2, v5
        s_mul_i32 s60, s18, 2304
        s_and_b32 s54, s44, 0xffffff80
        s_add_u32 s55, s54, 16
        s_lshl_b32 s63, s5, 12
        s_add_u32 s63, s63, {WS_OF}
        """)
        def hd(i):
            if i < 4: return [I(f"s_xor_b32 s3, s19, {i}")]
            return [I(f"s_and_b32 s3, s19, 0xf8"), I(f"s_add_u32 s3, s3, {i}")]
        def dmaW(t):
            G = []
            if t % 4 == 0: G += [[x] for x in hd(t // 4)] + [[I(f"s_mul_i32 s61, s3, {128*1152}")]]
            G += [[I(f"s_add_u32 m0, s60, {(t % NW)*9216}")],
                  [I(f"buffer_load_dwordx4 v20, s[40:43], s61 offen{ntw} lds", tag=f"g{t}")],
                  [I(f"buffer_load_dwordx4 v21, s[40:43], s61 offen offset:1024{ntw} lds", tag=f"g{t}")],
                  [I("s_mov_b64 exec, 0xffff"), I(f"buffer_load_dwordx4 v22, s[40:43], s61 offen offset:2048{ntw} lds", tag=f"g{t}"), I("s_mov_b64 exec, -1")]]
            if t % 4 != 3: G += [[I(f"s_add_u32 s61, s61, {32*1152}")]]
            return G
        def Bf(t, u): return r4('v', 168 + (t * 4 + u) * 4) if t < 4 else r4('a', ((t - 4) % 8) * 16 + 4 * u)
        def ldB(t):
            G = []
            if t % 4 == 0: G += [[I(x.t.replace("s3", "s4"))] for x in hd(t // 4)] + [[I("s_lshl_b32 s4, s4, 19")], [I("s_add_u32 s62, s4, s63")]]
            for u in range(4): G.append([I(f"buffer_load_dwordx4 {Bf(t,u)}, v3, s[12:15], s62 offen offset:{1024*u} sc1", tag=f"b{t}")])
            if t % 4 != 3: G += [[I(f"s_add_u32 s62, s62, {128*1024}")]]
            return G
        def A(s, t): return 64 + 36 * s + 4 * t
        def reads(t):
            return [I(f"ds_read_b64_tr_b16 {r2('v', A(t%2,tt)+2*h)}, v23 offset:{(t % NW)*9216+h*4608+32*tt}") for tt in range(9) for h in range(2)]
        c = self.iter(p, 13, [], Dp=dmaW(0) + dmaW(1))
        c = self.iter(p, 14, c, Dp=dmaW(2) + dmaW(3))
        c = self.iter(p, 15, c, Dp=dmaW(4) + dmaW(5), pre_pv=[W(vm=["g0", "g1"], lg=0), I("s_barrier")],
                      pvextra=lambda g: g.spread(reads(0), 2, 28))
        self.stamp(p, 5)
        p(self.OBASE); p("s_nop 2"); p(self.lfin("O"))
        for ch in self.oepi(lambda k, qt: 168 + (k * 4 + qt) * 4, lambda i: 136 + (i % 4) * 8): p(ch)
        p("s_barrier")
        self.stamp(p, 6)
        pl1, chk1 = self.poll("pO1", 12, 24, "s54", 25, 1)
        pl2, chk2 = self.poll("pO2", 12, 24, "s55", 25, 1)
        nb = 4
        for t in range(32):
            p.mark("B0")
            M = [I(f"{MF} {self.acc2(tt,u)}, {r4('v', A(t%2,tt))}, {Bf(t,u)}, {'0' if t == 0 else self.acc2(tt,u)}") for tt in range(9) for u in range(4)]
            g = Gaps(36)
            if t < 31:
                need = ([f"g{t+2}"] if t + 2 < 32 else []) + ([f"b{t+1}"] if t + 1 >= 4 else []) + (["ost"] if t == 1 else [])
                tl = [W(vm=need or None, lg=0)] + ([I("s_barrier")] if t + 2 < 32 else [])
                if t == 2: tl += chk1
                g.tail(35, tl)
            D = []
            if t == 2: D += [[I("buffer_store_dword v9, v8, s[12:15], s44 offen sc1")]]
            if t == 6: D += [[pl2]]
            if t == 8: D += [chk2]
            if t >= 3:
                lim = min(32, t + 8, 16 if t < 8 else 32)
                for _ in range(2):
                    if nb < lim: D += ldB(nb); nb += 1
            if t + 6 < 32: D += dmaW(t + 6)
            if t == 2: D += [[pl1]]
            if D: g.spread(D, 0, 33)
            if t < 31: g.spread(reads(t + 1), 0, 28)
            p(g.weave(M))
        p("s_branch K_tail")
        return p

    def partU(self):
        o = self.o; p = Prog()
        ntw = " nt" if o.get("ntw2") else ""
        hs = " sc1" if o.get("sc1dma", 1) else ""
        SB = 9216 + 16 * 1056
        p("K_U:")
        p(f"""
        s_and_b32 s3, s17, 3
        s_mul_i32 s3, s3, 9216
        s_mul_i32 s60, s18, 2304
        s_add_u32 s3, s3, s60
        v_add_u32 v20, s3, v3
        s_and_b32 s4, s16, 3
        s_mul_i32 s61, s4, {36*36*1024}
        s_add_u32 s61, s61, {WS_UF}
        s_mul_i32 s62, s4, {1152*4096}
        s_lshl_b32 s54, s4, 8
        s_add_u32 s54, s54, {WS_FU}
        v_min_u32 v31, 53, v2
        v_lshlrev_b32 v31, 2, v31
        v_and_b32 v4, 31, v2
        v_lshlrev_b32 v4, 4, v4
        v_lshrrev_b32 v5, 5, v2
        v_lshl_add_u32 v4, v5, 16, v4
        s_lshl_b32 s3, s18, 14
        s_lshr_b32 s4, s17, 2
        s_lshl_b32 s4, s4, 9
        s_add_u32 s3, s3, s4
        v_add_u32 v21, s3, v4
        v_add_u32 v22, {4096-1056}, v21
        v_add_u32 v23, {2*(4096-1056)}, v21
        v_add_u32 v24, {3*(4096-1056)}, v21
        s_mul_i32 s63, s18, {4*1056}
        s_add_u32 s63, s63, 9216
        v_lshrrev_b32 v4, 2, v2
        v_mul_u32_u24 v4, 1056, v4
        v_and_b32 v5, 3, v2
        v_lshl_add_u32 v4, v5, 3, v4
        s_lshl_b32 s3, s18, 7
        s_add_u32 s3, s3, 9216
        v_add_u32 v25, s3, v4
        v_add_u32 v26, {2*SB}, v25
        v_add_u32 v27, {4*SB}, v25
        v_mov_b32 v28, v3
        v_add_u32 v29, {2*SB}, v3
        v_add_u32 v30, {4*SB}, v3
        """)
        sl = lambda n: (n + 5) % 6
        def dma(n):
            base = sl(n) * SB; tg = f"g{n}"
            G = [[I(f"s_add_u32 m0, s63, {base}")]]
            for u in range(4): G.append([I(f"buffer_load_dwordx4 v{21+u}, s[40:43], s62 offen offset:{1056*u}{ntw} lds", tag=tg)])
            G += [[I(f"s_add_u32 m0, s60, {base}")], [I(f"s_add_u32 s62, s62, {32*4096}")],
                  [I(f"buffer_load_dwordx4 v20, s[12:15], s61 offen{hs} lds", tag=tg)],
                  [I(f"buffer_load_dwordx4 v20, s[12:15], s61 offen offset:1024{hs} lds", tag=tg)],
                  [I("s_mov_b64 exec, 0xffff"), I(f"buffer_load_dwordx4 v20, s[12:15], s61 offen offset:2048{hs} lds", tag=tg), I("s_mov_b64 exec, -1")],
                  [I(f"s_add_u32 s61, s61, {36*1024}")]]
            return G
        SET = [64, 116]
        def A(s, t): return SET[s] + 4 * t
        def B(s, u): return SET[s] + 36 + 4 * u
        def reads(t):
            s = t % 2; slot = sl(t); off = (slot & 1) * SB
            R = [I(f"ds_read_b64_tr_b16 {r2('v', B(s,u)+2*h)}, v{25+slot//2} offset:{off+h*512+32*u}") for u in range(4) for h in range(2)]
            R += [I(f"ds_read_b128 {r4('v', A(s,tt))}, v{28+slot//2} offset:{off+tt*1024}") for tt in range(9)]
            return R
        pl, chk = self.poll("pU", 12, 31, "s54", 32, 1)
        p(pl)
        c = self.iter(p, 13, [], Dp=[chk] + dma(0))
        c = self.iter(p, 14, c, Dp=dma(1) + dma(2))
        c = self.iter(p, 15, c, pre_pv=[W(vm=["g0"], lg=0), I("s_barrier")], pvextra=lambda g: g.spread(reads(0), 2, 28))
        self.stamp(p, 5)
        p(self.OBASE); p("s_nop 2"); p(self.lfin("U"))
        p(W(vm="g1")); p("s_barrier")
        self.stamp(p, 6)
        bg = [x for ch in self.oepi(lambda k, qt: 216 + ((k * 4 + qt) % 4) * 4, lambda i: 184 + (i % 4) * 8) for x in ch]
        issued = 3; flag_at = None
        for t in range(36):
            p.mark("B6")
            M = [I(f"{MF} {self.acc2(tt,u)}, {r4('v', A(t%2,tt))}, {r4('v', B(t%2,u))}, {'0' if t == 0 else self.acc2(tt,u)}") for tt in range(9) for u in range(4)]
            g = Gaps(36)
            if t < 35:
                need = ([f"g{t+2}"] if t + 2 < 36 else []) + (["ost"] if flag_at == t + 1 else [])
                g.tail(35, [W(vm=need or None, lg=0)] + ([I("s_barrier")] if t + 2 < 36 else []))
            D = []
            if flag_at == t: D += [[I("buffer_store_dword v9, v8, s[12:15], s44 offen sc1")]]
            want = min(36, t + 7)
            nd = min(2 if t % 2 == 0 else 1, want - issued)
            for _ in range(nd): D += dma(issued); issued += 1
            if D: g.spread(D, 0, 33)
            if t < 35: g.spread(reads(t + 1), 0, 28)
            if bg:
                bg = g.fill(bg, 0, 34)
                if not bg: flag_at = t + 3
            p(g.weave(M))
        p.mark("B0")
        return p

    def partT(self):
        p = Prog()
        p("K_tail:")
        self.stamp(p, 7)
        p(f"""
        s_lshl_b32 s3, s17, 3
        s_lshl_b32 s4, s18, 1
        s_add_u32 s3, s3, s4
        s_lshl_b32 s3, s3, 3
        s_add_u32 s3, s3, s16
        s_mul_i32 s3, s3, 9216
        s_add_u32 s3, s3, {WS_PART}
        v_add_u32 v5, 4096, v3
        v_add_u32 v6, 8192, v3
        v_mov_b32 v4, v3
        """)
        i = 0
        for h in range(2):
            for c in range(9):
                pr = ((2*(c>>1), 2*h+(c&1)), (2*(c>>1)+1, 2*h+(c&1))) if c < 8 else ((8, 2*h), (8, 2*h+1))
                r = 64 + (i % 4) * 12; i += 1
                if c < 8:
                    for j, (t, u) in enumerate(pr):
                        for x in range(4): p(f"v_accvgpr_read_b32 v{r+4*j+x}, a{128+(t*4+u)*4+x}")
                    src = r
                else: src = 240 + 8 * h
                for j in range(4): p(f"v_cvt_pk_bf16_f32 v{r+8+j}, v{src+2*j}, v{src+2*j+1}")
                p(f"buffer_store_dwordx4 {r4('v', r+8)}, v{4+c//4}, s[12:15], s3 offen offset:{(c%4)*1024} sc1", tag="pst")
            if h == 0: p(f"s_add_u32 s3, s3, {8*9216}")
        p(f"""
        s_lshr_b32 s56, s17, 2
        s_lshl_b32 s56, s56, 8
        s_lshl_b32 s4, s16, 5
        s_add_u32 s56, s56, s4
        s_and_b32 s57, s17, 3
        s_mul_i32 s57, s57, 288
        s_lshl_b32 s58, s17, 3
        s_add_u32 s58, s58, s16
        s_mul_i32 s58, s58, {8*9216}
        s_add_u32 s58, s58, {WS_PART}
        s_lshl_b32 s59, s17, 7
        s_add_u32 s59, s59, {WS_FP}
        s_lshl_b32 s4, s16, 2
        s_add_u32 s60, s59, s4
        v_bfe_u32 v28, v0, 2, 4
        v_add_u32 v29, s56, v28
        v_lshlrev_b32 v29, 1, v29
        """)
        p("global_load_ushort v10, v29, s[46:47]\nglobal_load_ushort v11, v29, s[46:47] offset:32", tag="b2")
        for i in range(3):
            p(f"""v_add_u32 v12, {256*i}, v0
            v_mul_u32_u24 v13, 3641, v12
            v_lshrrev_b32 v13, 16, v13
            v_mul_u32_u24 v14, 18, v13
            v_sub_u32 v14, v12, v14
            v_add_u32 v13, s56, v13
            v_mul_u32_u24 v13, 1152, v13
            v_lshl_add_u32 v{16+i}, v14, 4, v13""")
        p(f"""v_mov_b32 v12, 0x7fff0000
        v_cmp_lt_u32 vcc, 63, v0
        v_and_b32 v30, 7, v2
        v_lshlrev_b32 v30, 2, v30
        v_cndmask_b32 v18, v18, v12, vcc""")
        for i in range(3): p(f"buffer_load_dwordx4 {r4('v', 144+4*i)}, v{16+i}, s[20:23], s57 offen", tag="x")
        p(f"""
        v_lshlrev_b32 v4, 2, v0
        v_add_u32 v5, 4096, v4
        v_add_u32 v6, 8192, v4
        v_lshrrev_b32 v14, 6, v0
        v_and_b32 v15, 1, v0
        v_lshlrev_b32 v15, 2, v15
        v_lshl_add_u32 v15, v14, 3, v15
        v_mul_u32_u24 v14, 288, v28
        v_add_u32 v15, v15, v14
        v_bfe_u32 v14, v0, 1, 1
        v_lshl_add_u32 v12, v14, 5, v15
        v_mul_u32_u24 v14, {16*288}, v14
        v_add3_u32 v13, v14, v15, 64
        s_mov_b32 s62, 0x00003f80
        s_mov_b32 s63, 0x3f800000
        """)
        p(W(vm="pst")); p("s_barrier")
        p("buffer_store_dword v9, v8, s[12:15], s60 offen sc1")
        pl, chk = self.poll("pP", 12, 30, "s59", 31, 1)
        p(pl); p(chk)
        PB = 160
        for part in range(8):
            if part == 7: p(W(vm="p0"))
            for c in range(9):
                p(f"buffer_load_dword v{PB+part*9+c}, v{4+c//4}, s[12:15], s58 offen offset:{(c%4)*1024} sc1", tag=f"p{part}")
            p("s_add_u32 s58, s58, 9216")
        p(f"""v_lshlrev_b32 v10, 16, v10
        v_lshlrev_b32 v11, 16, v11
        v_and_b32 v14, 2, v0
        v_cmp_eq_u32 vcc, 0, v14
        s_nop 1
        v_cndmask_b32 v19, v11, v10, vcc""")
        SA = 104; Y = 122
        for part in range(8):
            p(W(vm=f"p{part}"))
            base = SA if part < 4 else Y
            for c in range(9):
                for h in range(2):
                    d = base + 2 * c + h
                    cin = "0" if part == 0 else (f"v{19 if c == 8 else 10 + (c & 1)}" if part == 4 else f"v{d}")
                    p(f"v_dot2_f32_bf16 v{d}, v{PB+part*9+c}, s{62+h}, {cin}")
        p("s_nop 2")
        T = 64
        for e in range(18): p(f"v_mul_f32 v{T+e}, {f2u(-1.4426950408889634):#x}, v{Y+e}")
        for e in range(18): p(f"v_exp_f32 v{T+e}, v{T+e}")
        for e in range(18): p(f"v_add_f32 v{T+e}, 1.0, v{T+e}")
        for e in range(18): p(f"v_rcp_f32 v{T+e}, v{T+e}")
        for e in range(18): p(f"v_mul_f32 v{SA+e}, v{SA+e}, v{Y+e}")
        for e in range(18): p(f"v_mul_f32 v{T+e}, v{T+e}, v{SA+e}")
        for c in range(9):
            p(f"v_cvt_pk_bf16_f32 v{T+c*2}, v{T+2*c}, v{T+2*c+1}")
            if c < 8: p(f"ds_write_b32 v12, v{T+2*c} offset:{(c&1)*16*288 + (c>>1)*64}")
            else: p(f"ds_write_b32 v13, v{T+2*c} offset:192")
        p("v_lshlrev_b32 v4, 4, v0\ns_waitcnt lgkmcnt(0)\ns_barrier")
        for i in range(3): p(f"ds_read_b128 {r4('v', 84+4*i)}, v4 offset:{4096*i}")
        p("s_waitcnt lgkmcnt(0)")
        for i in range(3):
            for k in range(4):
                x = 144 + 4 * i + k; t = 84 + 4 * i + k
                p(f"""v_lshlrev_b32 v96, 16, v{x}
                v_and_b32 v97, 0xffff0000, v{x}
                v_lshlrev_b32 v98, 16, v{t}
                v_and_b32 v99, 0xffff0000, v{t}
                v_add_f32 v96, v96, v98
                v_add_f32 v97, v97, v99
                v_cvt_pk_bf16_f32 v{t}, v96, v97""")
            p(f"buffer_store_dwordx4 {r4('v', 84+4*i)}, v{16+i}, s[48:51], s57 offen")
        if self.ts:
            p("s_waitcnt vmcnt(0)"); self.stamp(p, 8)
            p(f"s_waitcnt lgkmcnt(0)\ns_mul_i32 s3, s2, {16*NST}\ns_add_u32 s3, s3, {WS_TS}")
            for i in range(NST):
                for e in range(4): p(f"v_mov_b32 v{4+e}, s{64+4*i+e}")
                p(f"buffer_store_dwordx4 v[4:7], v8, s[12:15], s3 offen offset:{16*i}\ns_nop 1")
        p("s_endpgm")
        return p

    def partF(self):
        nm = self.o.get("nm", 2); LA = self.LA
        p = Prog()
        FB = CB
        p(f"""
        K_fallback:
        s_waitcnt vmcnt(0) lgkmcnt(0)
        s_mul_i32 s56, s18, 8448
        s_add_u32 s56, s56, {FB}
        v_lshrrev_b32 v4, 4, v2
        v_and_b32 v5, 15, v2
        """)
        for q in range(4):
            p(f"""v_add_u32 v6, {4*q}, v4
            v_xor_b32 v7, v6, v5
            v_lshlrev_b32 v7, 4, v7
            v_lshl_add_u32 v{48+q}, v6, 8, v7""")
        p(f"""
        v_lshlrev_b32 v6, 11, v4
        v_lshl_add_u32 v52, v5, 4, v6
        s_sub_u32 s3, s56, {CB}
        v_add_u32 v53, s3, v14
        v_add_u32 v54, s3, v15
        v_add_u32 v55, s3, v16
        v_add_u32 v56, s3, v17
        v_add_u32 v57, s56, v19
        s_lshr_b32 s57, s19, 1
        s_lshl_b32 s57, s57, 19
        s_add_u32 s57, s57, {1536*256}
        """)
        def loadK():
            for q in range(8):
                p(f"s_add_u32 m0, s56, {1024*q}\ns_add_u32 s3, s58, {4096*(q//4)}\nbuffer_load_dwordx4 v{48+q%4}, s[28:31], s3 offen lds")
            p("s_waitcnt vmcnt(0)")
            p(self.readK(0, self.KB, ar=53)); p("s_waitcnt lgkmcnt(0)")
        for qt in range(4): p(f"v_mov_b32 v{40+qt}, 0xff800000")
        p("s_mov_b32 s58, s57\ns_mov_b32 s59, 16\nFB_l1:")
        loadK()
        p(self.QKf(True)); p("s_nop 7")
        p(self.maxf())
        p("s_add_u32 s58, s58, 8192\ns_sub_u32 s59, s59, 1\ns_cmp_lg_u32 s59, 0\ns_cbranch_scc1 FB_l1")
        p(self.maxfin())
        for qt in range(4): p(f"v_mov_b32 v{LA+qt}, 0")
        for i in range(128): p(f"v_accvgpr_write_b32 a{i}, 0")
        p("s_mov_b32 s58, s57\ns_mov_b32 s59, 16\nFB_l2:")
        loadK()
        p(self.QKf(False))
        for q in range(8):
            p(f"s_add_u32 m0, s56, {1056*q}\ns_add_u32 s3, s58, {256*q}\nbuffer_load_dwordx4 v52, s[32:35], s3 offen lds")
        SF = 116
        for e in range(32): p(f"v_exp_f32 v{SF+e}, v{SF+e}")
        for e in range(32): p(f"v_add_f32 v{LA+(e%16)//4}, v{LA+(e%16)//4}, v{SF+e}")
        PF = 148
        def pf(qt): return PF + 4 * qt if qt < 3 else 180
        for e in range(1, 32, 2):
            qt = (e % 16) // 4; h = e // 16
            p(f"v_cvt_pk_bf16_f32 v{pf(qt)+2*h+(e%4)//2}, v{SF+e-1}, v{SF+e}")
        p("s_waitcnt vmcnt(0)")
        p(self.readV(0, ar=57)); p("s_waitcnt lgkmcnt(0)")
        for dt in range(8):
            for qt in range(4):
                d = r4('a', (dt * 4 + qt) * 4)
                p(f"{MF} {d}, {r4('a', self.VB+dt*4)}, {r4('v', pf(qt))}, {d}")
        p("s_add_u32 s58, s58, 8192\ns_sub_u32 s59, s59, 1\ns_cmp_lg_u32 s59, 0\ns_cbranch_scc1 FB_l2")
        for sw in ("v_permlane16_swap_b32", "v_permlane32_swap_b32"):
            for qt in range(4): p(f"v_mov_b32 v{44+qt}, v{LA+qt}")
            p("s_nop 1")
            for qt in range(4): p(f"{sw} v{LA+qt}, v{44+qt}")
            for qt in range(4): p(f"v_add_f32 v{LA+qt}, v{LA+qt}, v{44+qt}")
        p("s_setpc_b64 s[6:7]")
        return p
    def QKf(self, zero):
        M = []
        for kt in range(2):
            for ks in range(4):
                for qt in range(4):
                    d = 116 + (kt * 4 + qt) * 4
                    c = ("0" if zero else r4('v', self.MN + 4 * qt)) if ks == 0 else r4('v', d)
                    M.append(I(f"{MF} {r4('v', d)}, {r4('a', self.KB+(kt*4+ks)*4)}, {r4('v', QF+(qt*4+ks)*4)}, {c}"))
        return M
    def maxf(self):
        mx = []
        for qt in range(4):
            r0 = 116 + qt * 4; r1 = r0 + 16; t = 40 + qt
            mx += L(f"v_max3_f32 v{t}, v{t}, v{r0}, v{r0+1}\nv_max3_f32 v{t}, v{t}, v{r0+2}, v{r0+3}\nv_max3_f32 v{t}, v{t}, v{r1}, v{r1+1}\nv_max3_f32 v{t}, v{t}, v{r1+2}, v{r1+3}")
        return mx

    def build(self):
        P0 = self.part0().s; PA = self.partA().s; PB = self.partB().s; PC = self.partC().s
        PO = self.partO().s; PU = self.partU().s; PT = self.partT().s; PF = self.partF().s
        seg = {}
        bad = 0
        for n1, x1 in (("A", PA), ("B", PB)):
            for n2, x2 in (("O", PO), ("U", PU)):
                parts = [("0", P0), (n1, x1), ("C", PC), (n2, x2), ("T", PT)]
                st = []
                for nme, x in parts: st += [I(f"SEG_{nme}:")] + x
                st = resolve(st)
                bad += check(st, n1 + n2)
                cur = None; d = {}
                for ins in st:
                    if ins.t.startswith("SEG_"): cur = ins.t[4:-1]; d[cur] = []
                    else: d[cur].append(ins)
                for k, v in d.items():
                    if k in seg: assert [x.t for x in seg[k]] == [x.t for x in v], f"segment {k} differs on path {n1}{n2}"
                    else: seg[k] = v
        bad += check(PF, "F")
        assert not bad
        body = []
        for k in "0ABCOUT": body += fold(seg[k], "s10", "K" + k)
        for _, sp in self.spins: body += sp
        body += PF
        return body

def build(fname, opts={}, ts=False):
    g = Gen(opts, ts)
    body = g.build()
    name = KNAME + "_kernel"
    out = ["; @launch grid=(256,1,1) block=(256,1,1) lds=163840", '.amdgcn_target "amdgcn-amd-amdhsa--gfx950"\n.text',
           kernel_header(name) + text(body) + "K_end:\n  s_endpgm", '.section .rodata,"a"', ".p2align 6",
           kernel_desc(name, 512, sgpr=102, accum=256).replace(".end_amdhsa_kernel", "  .amdhsa_float_denorm_mode_32 3\n.end_amdhsa_kernel")]
    open(fname, "w").write("\n".join(out) + "\n")

if __name__ == "__main__":
    build("v2.s"); build("v2_ts.s", ts=True); build("v2_fb.s", {"thr": 0x3f800000})
```

```python
import sys, struct
from fw2 import *
from asmlib import kernel_header, kernel_desc, KNAME

WS_OF = 0
WS_UF = 16 << 20
WS_HF = 22 << 20
WS_ST = 25 << 20
WS_FO = WS_ST + 65536
WS_FU = WS_FO + 4096
WS_FP = WS_FU + 4096
WS_PART = 26 << 20
WS_TS = 60 << 20
WS_SIZE = 64 << 20
MF = "v_mfma_f32_16x16x32_bf16"
def f2u(x): return struct.unpack("<I", struct.pack("<f", x))[0]
CS_Q = f2u(128 ** -0.5 * 1.4426950408889634)
def r4(k, i): return f"{k}[{i}:{i+3}]"
def r2(k, i): return f"{k}[{i}:{i+1}]"
def srd(d, lo, nbytes): return f"s_mov_b32 s{d}, s{lo}\ns_mov_b32 s{d+1}, s{lo+1}\ns_mov_b32 s{d+2}, {nbytes}\ns_mov_b32 s{d+3}, 0x20000"
def flat(G):
    out = []
    for g in G:
        out.extend(g)
        if "m0" in g[-1].t: out.append(I("s_nop 0"))
    return out

XS = 32768; WB = 98304; WSL = 8448
HSB = 148992; CSB = 158208
MSL = 29184; NM = 5
CB = 58368; CSL = 16640; K0B = 75008; NC = 6; FBB = 104448
def cs(n): return (n + 2) % NC
QF = 192
NST = 9

class Gen:
    def __init__(self, opts, ts):
        self.o = opts; self.ts = ts; self.spins = []
    def tr(self, p, ph, idx):
        if self.o.get("trace") != ph or idx > 63: return
        if idx > 0: p(f"s_waitcnt lgkmcnt(0)\nv_writelane_b32 v1, s96, {idx-1}")
        p("s_memtime s[96:97]")
        self.lasttr = idx
    def stamp(self, p, i):
        if self.ts: p(f"s_memtime s[{64+4*i}:{65+4*i}]\ns_memrealtime s[{66+4*i}:{67+4*i}]")
    def poll(self, name, srdn, vaddr, soff, vdst, expect):
        cmpop = "v_cmp_gt_u32" if expect == 4 else "v_cmp_ne_u32"
        ld = f"buffer_load_dword v{vdst}, v{vaddr}, s[{srdn}:{srdn+3}], {soff} offen sc1"
        chk = [W(vm=name), I(f"{cmpop} s[6:7], {expect}, v{vdst}"), I("s_cmp_lg_u64 s[6:7], 0"), I(f"s_cbranch_scc1 SP_{name}"), I(f"RT_{name}:")]
        if name not in [s[0] for s in self.spins]:
            self.spins.append((name, L(f"""SP_{name}:
            s_mov_b32 vcc_lo, 0x80000
            SQ_{name}:
            {ld}
            s_sub_u32 vcc_lo, vcc_lo, 1
            s_cbranch_scc1 RT_{name}
            s_waitcnt vmcnt(0)
            {cmpop} s[6:7], {expect}, v{vdst}
            s_cmp_lg_u64 s[6:7], 0
            s_cbranch_scc1 SQ_{name}
            s_branch RT_{name}""")))
        return I(ld, tag=name), chk

    def part0(self):
        o = self.o; p = Prog()
        ntq = " nt" if o.get("ntq") else ""
        p("s_cmp_ge_u32 s2, 256\ns_cbranch_scc1 K_end")
        self.stamp(p, 0)
        p(f"""
        s_load_dwordx8 s[20:27], s[0:1], 0
        s_load_dwordx2 s[40:41], s[0:1], 32
        s_load_dwordx4 s[36:39], s[0:1], 48
        s_load_dwordx8 s[44:51], s[0:1], 64
        s_load_dwordx2 s[12:13], s[0:1], 96
        s_getpc_b64 s[10:11]
        K_pc:
        v_and_b32 v2, 63, v0
        v_lshrrev_b32 v3, 6, v0
        s_and_b32 s16, s2, 7
        v_readfirstlane_b32 s18, v3
        s_lshr_b32 s17, s2, 3
        s_and_b32 s19, s16, 3
        s_lshl_b32 s19, s19, 3
        s_lshr_b32 s3, s16, 2
        s_lshl_b32 s3, s3, 2
        s_add_u32 s19, s19, s3
        s_and_b32 s3, s17, 3
        s_add_u32 s19, s19, s3
        s_lshr_b32 s5, s17, 2
        s_lshl_b32 s5, s5, 2
        s_add_u32 s5, s5, s18
        v_lshlrev_b32 v3, 4, v2
        """)
        p(f"""
        v_and_b32 v64, 31, v0
        v_lshrrev_b32 v65, 5, v0
        v_and_b32 v66, 3, v65
        v_lshrrev_b32 v67, 2, v65
        v_lshl_add_u32 v66, v67, 4, v66
        s_lshr_b32 s3, s2, 2
        s_lshl_b32 s3, s3, 5
        s_and_b32 s4, s2, 3
        s_lshl_b32 s4, s4, 2
        s_add_u32 s3, s3, s4
        v_add_u32 v66, s3, v66
        v_mul_u32_u24 v67, 1152, v66
        v_lshl_add_u32 v67, v64, 2, v67
        """)
        p(f"""
        v_lshrrev_b32 v4, 3, v2
        v_and_b32 v5, 7, v2
        v_lshrrev_b32 v6, 1, v4
        v_xor_b32 v6, v6, v5
        v_mul_u32_u24 v4, 1152, v4
        s_mul_i32 s3, s5, {64*1152}
        v_add_u32 v4, s3, v4
        v_lshl_add_u32 v10, v6, 4, v4
        v_xor_b32 v6, 4, v6
        v_lshl_add_u32 v11, v6, 4, v4
        v_add_u32 v11, {8*1152-1024}, v11
        """)
        for q in range(2, 8):
            p(f"v_add_u32 v{10+q}, {(q & ~1)*8*1152 - ((q & 3) - (q & 1))*1024}, v{10+(q&1)}")
        p(f"""
        v_lshrrev_b32 v4, 4, v2
        v_and_b32 v5, 1, v4
        v_lshlrev_b32 v5, 2, v5
        v_lshrrev_b32 v4, 1, v4
        v_lshl_add_u32 v4, v4, 4, v5
        s_and_b32 s3, s18, 1
        s_lshl_b32 s3, s3, 1
        s_lshr_b32 s4, s18, 1
        s_lshl_b32 s4, s4, 3
        s_add_u32 s3, s3, s4
        v_add_u32 v4, s3, v4
        v_lshlrev_b32 v4, 13, v4
        v_and_b32 v5, 15, v2
        v_lshl_add_u32 v4, v5, 4, v4
        s_lshl_b32 s3, s19, 8
        v_add_u32 v18, s3, v4
        v_add_u32 v19, {8192-1056}, v18
        s_lshl_b32 s56, s18, 13
        s_mul_i32 s57, s18, {2*1056}
        s_mov_b32 s58, 0
        s_mov_b32 s59, 0
        s_waitcnt lgkmcnt(0)
        {srd(28, 22, 16*2048*256)}
        {srd(32, 24, 16*2048*256)}
        {srd(24, 26, 576*8192)}
        s_mov_b32 s22, {2048*1152}
        s_mov_b32 s23, 0x20000
        """)
        for t in range(9): p(f"buffer_load_dword v{70+t}, v67, s[20:23], 0 offen offset:{128*t}", tag="hx")
        def dmaX(n, half):
            G = [[I(f"s_add_u32 m0, s56, {(n % 3)*XS + half*4096}")]]
            for q in range(4):
                G.append([I(f"buffer_load_dwordx4 v{10+4*half+q}, s[20:23], s58 offen offset:{1024*q} lds", tag=f"x{n}")])
            if half: G.append([I("s_add_u32 s58, s58, 128")])
            return G
        def dmaW(t):
            return [[I(f"s_add_u32 m0, s57, {WB + (t % 6)*WSL}")],
                    [I(f"buffer_load_dwordx4 v18, s[24:27], s59 offen{ntq} lds", tag=f"w{t}")],
                    [I(f"buffer_load_dwordx4 v19, s[24:27], s59 offen offset:1056{ntq} lds", tag=f"w{t}")],
                    [I(f"s_add_u32 s59, s59, {32*8192}")]]
        p(flat(dmaX(0, 0) + dmaW(0) + dmaX(0, 1) + dmaW(1)))
        p(f"""
        s_lshl_b32 s3, s17, 12
        v_lshl_add_u32 v4, v0, 4, s3
        v_min_u32 v4, K_end - K_pc - 16, v4
        global_load_dwordx4 v[232:235], v4, s[10:11]
        """)
        p(flat(dmaX(1, 0) + dmaW(2) + dmaX(1, 1) + dmaW(3) + dmaX(2, 0) + dmaW(4) + dmaX(2, 1) + dmaW(5)))
        p(f"""
        s_mov_b32 s14, {WS_SIZE}
        s_mov_b32 s15, 0x20000
        s_mov_b32 s100, s38
        s_mov_b32 s101, s39
        s_mov_b32 s38, {2048*9216}
        s_mov_b32 s39, 0x20000
        s_cmp_lt_u32 s16, 4
        s_cselect_b32 s40, s40, s44
        s_cselect_b32 s41, s41, s45
        s_mov_b32 s3, {4608*4096}
        s_cselect_b32 s42, {4096*1152}, s3
        s_mov_b32 s43, 0x20000
        {srd(52, 50, 256)}
        s_mov_b32 s50, {2048*1152}
        s_mov_b32 s51, 0x20000
        v_mov_b32 v8, 0x7fff0000
        v_cmp_eq_u32 vcc, 0, v0
        v_mov_b32 v9, 1
        v_mov_b32 v4, 0
        v_cndmask_b32 v8, v8, v4, vcc
        """)
        p(f"""
        s_min_u32 s3, s17, 26
        s_mul_i32 s4, s16, 27
        s_add_u32 s3, s3, s4
        s_mul_i32 s8, s3, 10923
        s_lshr_b32 s8, s8, 16
        s_mul_i32 s4, s8, 6
        s_sub_u32 s9, s3, s4
        s_lshr_b32 s4, s16, 1
        s_mul_i32 s4, s4, 10
        s_add_u32 s3, s3, s4
        s_lshl_b32 s3, s3, 2
        s_add_u32 s45, s3, {WS_FU}
        s_lshl_b32 s4, s2, 2
        s_add_u32 s4, s4, {WS_FU + 1024}
        s_cmp_ge_u32 s17, 27
        s_cselect_b32 s45, s4, s45
        s_lshr_b32 s3, s19, 3
        s_lshl_b32 s3, s3, 3
        s_lshr_b32 s4, s17, 2
        s_add_u32 s3, s3, s4
        s_lshl_b32 s3, s3, 5
        s_and_b32 s4, s19, 7
        s_add_u32 s3, s3, s4
        s_lshl_b32 s3, s3, 2
        s_add_u32 s44, s3, {WS_FO}
        s_lshl_b32 s3, s17, 5
        s_add_u32 s3, s3, s16
        s_lshl_b32 s3, s3, 2
        s_add_u32 s3, s3, {WS_FP}
        """)
        for s in ("s44", "s45", "s3"): p(f"buffer_store_dword v4, v8, s[12:15], {s} offen sc1", tag="hst")
        p(f"""
        v_lshrrev_b32 v4, 4, v2
        v_bfe_u32 v5, v2, 2, 2
        v_and_b32 v6, 1, v4
        v_lshl_add_u32 v5, v6, 2, v5
        v_mul_u32_u24 v5, 1056, v5
        v_lshrrev_b32 v6, 1, v4
        v_lshl_add_u32 v5, v6, 9, v5
        v_and_b32 v6, 3, v2
        v_lshl_add_u32 v5, v6, 3, v5
        v_add_u32 v5, {WB}, v5
        """)
        for kp in range(4):
            p(f"s_xor_b32 s3, s18, {kp}\ns_lshl_b32 s3, s3, 6\nv_add_u32 v{20+kp}, s3, v5")
        p(f"""
        v_and_b32 v5, 15, v2
        v_lshrrev_b32 v6, 1, v5
        v_xor_b32 v6, v6, v4
        v_lshlrev_b32 v5, 7, v5
        v_add_u32 v5, s56, v5
        v_lshl_add_u32 v24, v6, 4, v5
        v_xor_b32 v6, 4, v6
        v_lshl_add_u32 v25, v6, 4, v5
        v_add_u32 v26, 65536, v24
        v_add_u32 v27, 65536, v25
        """)
        for e in range(4): p(f"v_mov_b32 v{36+e}, 0x3f803f80")
        p(f"""
        v_lshrrev_b32 v4, 4, v2
        v_lshlrev_b32 v4, 3, v4
        s_lshr_b32 s3, s18, 1
        s_lshl_b32 s3, s3, 5
        s_and_b32 s4, s18, 1
        s_lshl_b32 s4, s4, 2
        s_add_u32 s3, s3, s4
        v_add_u32 v4, s3, v4
        v_mul_u32_u24 v4, 9216, v4
        v_and_b32 v5, 15, v2
        v_lshl_add_u32 v4, v5, 4, v4
        s_lshl_b32 s3, s8, 8
        v_add_u32 v28, s3, v4
        v_add_u32 v29, {9216-1056}, v28
        v_add_u32 v30, {2*(9216-1056)}, v28
        v_add_u32 v31, {3*(9216-1056)}, v28
        s_lshr_b32 s3, s18, 1
        s_mul_i32 s3, s3, 36
        s_mul_i32 s4, s9, 6
        s_add_u32 s3, s3, s4
        s_and_b32 s4, s18, 1
        s_mul_i32 s4, s4, 3
        s_add_u32 s3, s3, s4
        s_lshl_b32 s3, s3, 10
        s_add_u32 s3, s3, {WS_HF}
        v_add_u32 v32, s3, v3
        s_mul_i32 s60, s18, {4*1056}
        s_mul_i32 s61, s18, 3072
        s_add_u32 s61, s61, 16896
        s_mov_b32 s62, 0
        s_mov_b32 s63, 0
        s_lshl_b32 s3, s8, 8
        s_and_b32 s4, s18, 1
        s_lshl_b32 s4, s4, 7
        s_add_u32 s3, s3, s4
        v_lshrrev_b32 v4, 4, v2
        v_lshl_add_u32 v4, v4, 3, s3
        v_and_b32 v5, 15, v2
        s_lshl_b32 s3, s5, 9
        s_add_u32 s3, s3, {WS_ST}
        v_lshl_add_u32 v33, v5, 3, s3
        v_lshlrev_b32 v34, 2, v2
        """)
        p(f"""
        v_mul_u32_u24 v5, 7282, v2
        v_lshrrev_b32 v5, 16, v5
        v_mul_u32_u24 v6, 9, v5
        v_sub_u32 v6, v2, v6
        s_lshl_b32 s3, s17, 2
        s_add_u32 s3, s3, s18
        s_mul_i32 s3, s3, {o.get('pf1rows', 1)}
        v_add_u32 v5, s3, v5
        v_mul_u32_u24 v5, 9216, v5
        v_lshl_add_u32 v5, v6, 7, v5
        s_mul_i32 s3, s16, 1152
        v_add_u32 v5, s3, v5
        v_mov_b32 v6, 0x7fff0000
        v_cmp_gt_u32 vcc, {9*o.get('pf1rows', 1)}, v2
        s_mov_b32 s11, 0
        s_nop 0
        v_cndmask_b32 v237, v6, v5, vcc
        v_add_u32 v238, {768*9216}, v237
        v_add_u32 v239, {2*768*9216}, v237
        """)
        for f in range(4): p(f"global_load_dwordx2 v[{40+2*f}:{41+2*f}], v4, s[100:101] offset:{32*f}", tag="b1")
        p(W(vm="hx"))
        X = 80
        def red32(v, t):
            for n in (8, 4, 2, 1):
                p(f"s_nop 1\nv_add_f32_dpp v{v}, v{v}, v{v} row_ror:{n} row_mask:0xf bank_mask:0xf")
            p(f"v_mov_b32 v{t}, v{v}\ns_nop 1\nv_permlane16_swap_b32 v{v}, v{t}\nv_add_f32 v{v}, v{v}, v{t}")
        def unpack():
            for t in range(9): p(f"v_lshlrev_b32 v{X+2*t}, 16, v{70+t}\nv_and_b32 v{X+2*t+1}, 0xffff0000, v{70+t}")
        def ln(first):
            p(f"v_add_f32 v100, v{X}, v{X+1}")
            for e in range(2, 18): p(f"v_add_f32 v100, v100, v{X+e}")
            red32(100, 101)
            p(f"v_mul_f32 v100, {f2u(-1.0/576):#x}, v100")
            for e in range(18): p(f"v_add_f32 v{X+e}, v100, v{X+e}")
            p(f"v_mul_f32 v102, v{X}, v{X}")
            for e in range(1, 18): p(f"v_fmac_f32 v102, v{X+e}, v{X+e}")
            red32(102, 101)
            p(f"v_mov_b32 v101, {f2u(1e-5):#x}\nv_fmac_f32 v101, {f2u(1.0/576):#x}, v102\nv_rsq_f32 v101, v101\ns_nop 0")
            for e in range(18): p(f"v_mul_f32 v{X+e}, v101, v{X+e}")
            for t in range(9): p(f"v_cvt_pk_bf16_f32 v{70+t}, v{X+2*t}, v{X+2*t+1}")
            if first:
                p(f"""v_mov_b32 v104, v100
                v_mul_f32 v105, {CS_Q:#x}, v101
                v_lshlrev_b32 v68, 3, v66
                v_add_u32 v68, {WS_ST}, v68
                v_mov_b32 v69, 0x7fff0000
                v_cmp_eq_u32 vcc, 0, v64
                s_nop 1
                v_cndmask_b32 v68, v69, v68, vcc""")
                p("buffer_store_dwordx2 v[104:105], v68, s[12:15], 0 offen sc1", tag="hst")
        unpack(); ln(True); unpack(); ln(False)
        p(f"v_mul_u32_u24 v68, 1152, v65\nv_lshl_add_u32 v68, v64, 2, v68\nv_add_u32 v68, {HSB}, v68")
        for t in range(9): p(f"ds_write_b32 v68, v{70+t} offset:{128*t}")
        p(f"""
        v_bfe_u32 v4, v0, 2, 2
        v_mul_u32_u24 v4, 1152, v4
        v_and_b32 v5, 3, v0
        v_lshl_add_u32 v4, v5, 3, v4
        v_lshrrev_b32 v5, 4, v0
        v_lshl_add_u32 v68, v5, 5, v4
        v_add_u32 v68, {HSB}, v68
        v_and_b32 v4, 15, v0
        v_lshlrev_b32 v4, 4, v4
        v_lshl_add_u32 v4, v5, 10, v4
        v_add_u32 v5, 16384, v4
        v_add_u32 v6, 32768, v4
        v_cmp_gt_u32 vcc, 64, v0
        s_lshr_b32 s3, s2, 2
        s_mul_i32 s3, s3, {36*1024}
        v_cndmask_b32 v6, v69, v6, vcc
        s_and_b32 s4, s2, 3
        s_lshl_b32 s4, s4, 8
        s_add_u32 s3, s3, s4
        s_add_u32 s3, s3, {WS_HF}
        """)
        p(W(vm=["x0", "w0"], lg=0)); p("s_barrier")
        self.stamp(p, 1)
        def qA(s, t): return 48 * s + 4 * t
        def qB(s, q): return 48 * s + 32 + 4 * q
        self.qacc = qacc = lambda t, q: 64 + (t * 4 + q) * 4
        CSA = 56
        def qreads(t):
            s = t % 2; n = t // 2; kk = t % 2; sl = n % 3
            R = [I(f"ds_read_b128 {r4('a', qB(s,q))}, v{24 + kk + (2 if sl == 2 else 0)} offset:{(sl & 1)*XS*(sl != 2) + 2048*q}") for q in range(4)]
            for tl in range(8):
                for h in range(2):
                    R.append(I(f"ds_read_b64_tr_b16 {r2('a', qA(s,tl)+2*h)}, v{20+tl//2} offset:{(t % 6)*WSL + (tl & 1)*32 + h*256}"))
            return R
        for i in range(3):
            for h in range(2): p(f"ds_read_b64_tr_b16 v[{200+4*i+2*h}:{201+4*i+2*h}], v68 offset:{512*i + 4608*h}")
        p(qreads(0))
        p(W(lg=0))
        for i in range(3):
            p(f"buffer_store_dwordx4 v[{200+4*i}:{203+4*i}], v{4+i}, s[12:15], s3 offen sc1", tag="hst")
        p(W(vm=["w1"])); p("s_barrier")
        ntw1 = " nt" if o.get("ntw1") else ""
        hs = " sc1" if o.get("sc1dma", 1) else ""
        def dmaM(n):
            b = (n % NM) * MSL
            G = [[I(f"s_add_u32 m0, s60, {b}")]]
            for q in range(4): G.append([I(f"buffer_load_dwordx4 v{28+q}, s[36:39], s62 offen offset:{1056*q}{ntw1} lds", tag=f"m{n}")])
            G.append([I(f"s_add_u32 s62, s62, {64*9216}")])
            G.append([I(f"s_add_u32 m0, s61, {b}")])
            for q in range(3): G.append([I(f"buffer_load_dwordx4 v32, s[12:15], s63 offen offset:{1024*q}{hs} lds", tag=f"m{n}")])
            G.append([I(f"s_add_u32 s63, s63, {2*36*1024}")])
            return G
        self.dmaM = dmaM
        pl, chk = self.poll("pH", 52, 34, 0, 35, 4)
        for t in range(18):
            s = t % 2; M = []
            for tl in range(8):
                for q in range(4):
                    d = r4('v', qacc(tl, q))
                    M.append(I(f"{MF} {d}, {r4('a', qA(s,tl))}, {r4('a', qB(s,q))}, {'0' if t == 0 else d}"))
                if tl < 2:
                    d = r4('v', CSA + 4 * tl)
                    M.append(I(f"{MF} {d}, {r4('a', qA(s,tl))}, v[36:39], {'0' if t == 0 else d}"))
            n = len(M); g = Gaps(n)
            if t < 17:
                need = [f"w{t+2}", f"x{(t+2)//2}"] if t + 2 < 18 else []
                if t == 4: need.append("hst")
                g.tail(n - 1, [W(vm=need or None, lg=0), I("s_barrier")])
            D = []
            if t >= 1 and (t - 1) // 2 + 3 < 9: D += dmaX((t - 1) // 2 + 3, (t - 1) % 2)
            if t + 6 < 18: D += dmaW(t + 6)
            if t == 5: D += [[I("s_lshr_b32 s3, s2, 2")], [I("s_lshl_b32 s3, s3, 2")], [I("buffer_atomic_add v9, v8, s[52:55], s3 offen sc1")]]
            if t == 10: D += [[pl]]
            if t == 12: D += [chk] + [[I(f"buffer_load_dwordx2 v[{48+2*q}:{49+2*q}], v33, s[12:15], 0 offen offset:{128*q} sc1", tag="st")] for q in range(4)]
            pr = o.get('pf1rows', 1)
            if o.get("pf1", 1) and t >= 1 and (t - 1) % pr == 0 and (t - 1) < 16:
                D = D + [[I(f"buffer_load_dword v236, v237, s[36:39], s11 offen")], [I(f"s_add_u32 s11, s11, {128*pr*9216}")]]
            if t == 13: D += dmaM(0)
            if t == 15: D += dmaM(1)
            if t == 17: D += dmaM(2)
            if D: g.spread(D, 0, n - 3)
            if t < 17: g.spread(qreads(t + 1), 0, n - 8)
            self.tr(p, "Q", t)
            p(g.weave(M))
        self.tr(p, "Q", 18); self.tr(p, "Q", 19)
        self.stamp(p, 2)
        p(f"""
        v_lshrrev_b32 v4, 4, v2
        s_lshl_b32 s3, s18, 7
        s_add_u32 s3, s3, {CSB}
        v_lshl_add_u32 v20, v4, 4, s3
        ds_write_b128 v20, v[{CSA}:{CSA+3}]
        ds_write_b128 v20, v[{CSA+4}:{CSA+7}] offset:64
        v_xor_b32 v21, 128, v20
        v_xor_b32 v22, 256, v20
        v_xor_b32 v23, 384, v20
        """)
        p(W(vm="b1"))
        for f in range(4):
            p(f"""v_lshlrev_b32 v4, 16, v{40+2*f}
            v_and_b32 v5, 0xffff0000, v{40+2*f}
            v_lshlrev_b32 v6, 16, v{41+2*f}
            v_and_b32 v7, 0xffff0000, v{41+2*f}""")
            for e in range(4): p(f"v_accvgpr_write_b32 a{240+4*f+e}, v{4+e}")
        p(f"""
        v_lshrrev_b32 v4, 2, v2
        v_and_b32 v5, 7, v4
        v_mul_u32_u24 v5, 1056, v5
        v_lshrrev_b32 v4, 3, v4
        v_lshl_add_u32 v5, v4, 8, v5
        v_and_b32 v4, 3, v2
        v_lshl_add_u32 v19, v4, 3, v5
        s_cmp_ge_u32 s17, 27
        s_cbranch_scc1 K_skip
        """)
        return p

    def core_setup(self):
        c = L(f"""
        v_lshrrev_b32 v4, 4, v2
        s_lshl_b32 s3, s18, 3
        v_add_u32 v4, s3, v4
        v_and_b32 v5, 15, v2
        v_and_b32 v6, 15, v4
        v_xor_b32 v6, v5, v6
        v_lshlrev_b32 v6, 4, v6
        v_lshl_add_u32 v10, v4, 8, v6
        v_add_u32 v4, 4, v4
        v_and_b32 v6, 15, v4
        v_xor_b32 v6, v5, v6
        v_lshlrev_b32 v6, 4, v6
        v_lshl_add_u32 v11, v4, 8, v6
        v_subrev_u32 v11, 1024, v11
        v_lshrrev_b32 v4, 4, v2
        v_lshlrev_b32 v4, 3, v4
        s_lshl_b32 s3, s18, 1
        v_add_u32 v4, s3, v4
        v_lshlrev_b32 v5, 4, v5
        v_lshl_add_u32 v12, v4, 8, v5
        v_add_u32 v12, 1024, v12
        v_add_u32 v13, {256-1056}, v12
        s_lshr_b32 s58, s19, 1
        s_lshl_b32 s58, s58, 19
        s_add_u32 s58, s58, {1536*256}
        s_sub_u32 s59, s58, 1024
        s_lshl_b32 s56, s18, 11
        s_mul_i32 s57, s18, {2*1056}
        s_add_u32 s57, s57, 8192
        v_and_b32 v4, 15, v2
        v_lshrrev_b32 v5, 4, v2
        v_lshrrev_b32 v6, 1, v5
        v_and_b32 v7, 1, v5
        v_lshl_add_u32 v5, v7, 1, v6
        v_lshlrev_b32 v7, 8, v4
        v_add_u32 v7, {CB}, v7
        """)
        for kp in range(4):
            c += L(f"""s_xor_b32 s3, s18, {kp}
            s_lshl_b32 s3, s3, 2
            v_add_u32 v6, s3, v5
            v_xor_b32 v6, v6, v4
            v_lshl_add_u32 v{14+kp}, v6, 4, v7""")
        c += L(f"v_add_u32 v18, {CB + 8192}, v19")
        for k in range(5): c += L(f"v_add_u32 v{48+k}, {3*CSL}, v{14+k}")
        c.append(L("s_cmp_lt_u32 s16, 4\ns_cselect_b32 s4, 6, 24"))
        c += L(f"""s_lshl_b32 s3, s17, 2
        s_add_u32 s3, s3, s18
        s_mul_i32 s3, s3, s4
        v_add_u32 v54, s3, v2
        v_lshlrev_b32 v54, 7, v54
        v_mov_b32 v4, 0x7fff0000
        v_cmp_gt_u32 vcc, s4, v2
        s_lshl_b32 s101, s4, 14
        s_mul_i32 s100, s101, 12
        v_cndmask_b32 v54, v4, v54, vcc
        s_and_b32 s3, s16, 3
        s_mul_i32 s100, s100, s3""")
        return c
    def dmaK(self, base, tag):
        return [[I(f"s_add_u32 m0, s56, {base}")], [I(f"buffer_load_dwordx4 v10, s[28:31], s58 offen lds", tag=tag)],
                [I(f"buffer_load_dwordx4 v11, s[28:31], s58 offen offset:1024 lds", tag=tag)], [I("s_add_u32 s58, s58, 8192")]]
    def dmaV(self, base, tag):
        return [[I(f"s_add_u32 m0, s57, {base}")], [I(f"buffer_load_dwordx4 v12, s[32:35], s59 offen lds", tag=tag)],
                [I(f"buffer_load_dwordx4 v13, s[32:35], s59 offen offset:1056 lds", tag=tag)], [I("s_add_u32 s59, s59, 8192")]]
    def dmaC(self, n):
        G = []
        if n + 1 <= 15: G += self.dmaK(CB + cs(n) * CSL, f"c{n}")
        return G + self.dmaV(CB + cs(n) * CSL, f"c{n}")
    def rdK(self, n):
        sl = cs(n); return self.readK((sl % 3) * CSL, self.KB, ar=14 if sl < 3 else 48)
    def rdV(self, n):
        sl = cs(n); return self.readV((sl % 3) * CSL, ar=18 if sl < 3 else 52)
    def pf2(self):
        return [[I("buffer_load_dword v53, v54, s[40:43], s100 offen")], [I("s_add_u32 s100, s100, s101")]]
    def qepi(self):
        qacc = self.qacc
        rd = []; ops = []
        for kp in range(4):
            T = 40 if kp % 2 == 0 else 56
            rd.append([I(f"ds_read_b128 {r4('v', T)}, v{20+kp}"), I(f"ds_read_b128 {r4('v', T+4)}, v{20+kp} offset:64")])
            L_ = []
            for q in range(4):
                for tl in range(2):
                    for e in range(4): L_.append(I(f"v_fmac_f32 v{qacc(2*kp+tl, q)+e}, v{T+4*tl+e}, v{48+2*q}"))
                for tl in range(2):
                    for e in range(4): L_.append(I(f"v_mul_f32 v{qacc(2*kp+tl, q)+e}, v{qacc(2*kp+tl, q)+e}, v{49+2*q}"))
                F = QF + (q * 4 + kp) * 4
                for tl in range(2):
                    for h in range(2):
                        r = qacc(2 * kp + tl, q) + 2 * h
                        L_.append(I(f"v_cvt_pk_bf16_f32 v{F+2*tl+h}, v{r}, v{r+1}"))
            for q in range(4):
                F = QF + (q * 4 + kp) * 4
                L_.append(I(f"v_permlane16_swap_b32 v{F}, v{F+2}")); L_.append(I(f"v_permlane16_swap_b32 v{F+1}, v{F+3}"))
            ops.append(L_)
        return rd, ops

    def partA(self):
        o = self.o; p = Prog(); dmaM = self.dmaM
        p(f"""
        s_and_b32 s3, s18, 1
        s_lshl_b32 s3, s3, 7
        v_add_u32 v24, s3, v19
        v_add_u32 v25, {2*MSL}, v24
        v_add_u32 v26, {4*MSL}, v24
        s_lshr_b32 s3, s18, 1
        s_mul_i32 s3, s3, 3072
        s_add_u32 s3, s3, 16896
        v_add_u32 v33, s3, v3
        v_add_u32 v34, {2*MSL}, v33
        v_add_u32 v35, {4*MSL}, v33
        """)
        def mA(s, f): return 28 * s + 4 * f
        def mB(s, d): return 28 * s + 16 + 4 * d
        def macc(f, d): return 192 + (f * 3 + d) * 4
        def mreads(t):
            s = t % 2; n = t // 2; kk = t % 2; sl = n % NM; off = (sl & 1) * MSL
            R = [I(f"ds_read_b128 {r4('a', mB(s,d))}, v{33+sl//2} offset:{off + kk*6144 + 1024*d}") for d in range(3)]
            for f in range(4):
                for h in range(2):
                    R.append(I(f"ds_read_b64_tr_b16 {r2('a', mA(s,f)+2*h)}, v{24+sl//2} offset:{off + kk*8448 + 32*f + 512*h}"))
            return R
        p(W(vm=["m0", "st"], lg=0)); p("s_barrier")
        rd, ops = self.qepi()
        p(mreads(0)); p(rd[0]); p(rd[1])
        p(flat(dmaM(3)))
        p(W(lg=0))
        bg = ops[0] + rd[2] + ops[1] + rd[3] + ops[2] + ops[3] + self.core_setup()
        BGN = o.get("bgn", 16)
        for t in range(64):
            n = t // 2; kk = t % 2; s = t % 2
            p.mark("B10")
            M = []
            for f in range(4):
                for d in range(3):
                    a = r4('a', macc(f, d))
                    M.append(I(f"{MF} {a}, {r4('a', mA(s,f))}, {r4('a', mB(s,d))}, {r4('a', 240+4*f) if t == 0 else a}"))
            g = Gaps(12)
            if t < 63:
                if kk == 0: g.tail(11, [W(vm=(f"m{n+1}" if n + 1 < 32 else None), lg=0), I("s_barrier")])
                else: g.tail(11, [W(lg=0)])
            D = []
            if t == 0: D = dmaM(4)
            else:
                m = (t - 1) // 2
                if m + 5 < 32:
                    G = dmaM(m + 5); D = G[:6] if kk == 1 else G[6:]
            if t == 55: D = self.dmaK(K0B, "k0")
            if t == 57: D = self.dmaC(0)
            if t == 59: D = self.dmaC(1)
            if t == 60: D = self.dmaC(2)
            if t == 61: D = self.dmaC(3)
            if t < 63: g.spread(mreads(t + 1), 0, 7)
            if D: g.spread(D, 0, 10)
            if bg:
                g.cap = 3
                take = bg[:BGN]
                rest = g.fill(take, 0, 10)
                bg = rest + bg[BGN:]
            if t % 2 == 0: self.tr(p, "M", t // 2)
            p(g.weave(M))
            if t == 54: assert not bg
        p.mark("B0")
        self.tr(p, "M", 32); self.tr(p, "M", 33)
        self.stamp(p, 3)
        p(f"""
        s_lshl_b32 s3, s8, 2
        s_and_b32 s4, s18, 1
        s_lshl_b32 s4, s4, 1
        s_add_u32 s3, s3, s4
        s_mul_i32 s3, s3, 36
        s_mul_i32 s4, s9, 6
        s_add_u32 s3, s3, s4
        s_lshr_b32 s4, s18, 1
        s_mul_i32 s4, s4, 3
        s_add_u32 s3, s3, s4
        s_lshl_b32 s3, s3, 10
        s_add_u32 s3, s3, {WS_UF}
        v_add_u32 v4, s3, v3
        v_add_u32 v5, {36*1024}, v4
        s_mov_b32 s4, {f2u(-0.10294324):#x}
        v_mov_b32 v6, {f2u(-2.3022082):#x}
        """)
        for fp in range(2):
            for d in range(3):
                U = 64 + ((fp * 3 + d) % 2) * 32; T = U + 8; O = U + 16
                for e in range(8): p(f"v_accvgpr_read_b32 v{U+e}, a{macc(2*fp + e//4, d) + e%4}")
                for e in range(8): p(f"v_mul_f32 v{T+e}, v{U+e}, v{U+e}")
                for e in range(8): p(f"v_fma_f32 v{T+e}, v{T+e}, s4, v6")
                for e in range(8): p(f"v_mul_f32 v{T+e}, v{T+e}, v{U+e}")
                for e in range(8): p(f"v_exp_f32 v{T+e}, v{T+e}")
                for e in range(8): p(f"v_add_f32 v{T+e}, 1.0, v{T+e}")
                for e in range(8): p(f"v_rcp_f32 v{T+e}, v{T+e}")
                for e in range(8): p(f"v_mul_f32 v{T+e}, v{T+e}, v{U+e}")
                for e in range(4): p(f"v_cvt_pk_bf16_f32 v{O+e}, v{T+2*e}, v{T+2*e+1}")
                p(I(f"buffer_store_dwordx4 {r4('v', O)}, v{4+fp}, s[12:15], 0 offen offset:{1024*d} sc1", cond=True))
        p("s_branch K_core")
        return p
    def partB(self):
        p = Prog()
        p("K_skip:")
        p(W(vm=0, lg=0)); p("s_barrier")
        rd, ops = self.qepi()
        for kp in range(4):
            p(rd[kp]); p(W(lg=0)); p(ops[kp][:-8]); p("s_nop 1"); p(ops[kp][-8:])
        if self.o.get("pfskip"):
            p(f"""
            s_lshr_b32 s4, s42, 2
            s_and_b32 s3, s16, 3
            s_mul_i32 s6, s3, s4
            s_add_u32 s7, s6, s4
            s_sub_u32 s3, s17, 27
            s_lshl_b32 s3, s3, 2
            s_add_u32 s3, s3, s18
            s_lshl_b32 s3, s3, 13
            s_add_u32 s6, s6, s3
            v_lshlrev_b32 v4, 7, v2
            K_pfl:
            buffer_load_dword v5, v4, s[40:43], s6 offen
            s_add_u32 s6, s6, {20*8192}
            s_cmp_lt_u32 s6, s7
            s_cbranch_scc1 K_pfl
            s_waitcnt vmcnt(0)
            """)
        p(self.core_setup())
        p(flat(self.dmaK(K0B, "k0") + self.dmaC(0) + self.dmaC(1) + self.dmaC(2) + self.dmaC(3)))
        self.stamp(p, 3)
        return p

    KB, VB, MN, LA = 128, 160, 160, 176
    def S(self, b): return 64 + 32 * b
    def P(self, b): return 128 + 16 * b
    def readK(self, off, base, ar=14):
        return [I(f"ds_read_b128 {r4('a', base+(kt*4+ks)*4)}, v{ar+ks} offset:{off+kt*4096}") for kt in range(2) for ks in range(4)]
    def readV(self, off, ar=18):
        return [I(f"ds_read_b64_tr_b16 {r2('a', self.VB+dt*4+2*h)}, v{ar} offset:{off+dt*32+h*512}") for dt in range(8) for h in range(2)]
    def QK(self, b, kbase, zero):
        M = []
        for kt in range(2):
            for ks in range(4):
                for qt in range(4):
                    d = self.S(b) + (kt * 4 + qt) * 4
                    c = ("0" if zero else r4('v', self.MN + 4 * qt)) if ks == 0 else r4('v', d)
                    M.append(I(f"{MF} {r4('v', d)}, {r4('a', kbase+(kt*4+ks)*4)}, {r4('v', QF+(qt*4+ks)*4)}, {c}"))
        return M
    def PV(self, b, zero, nm):
        M = []
        for qt in range(nm):
            d = r4('v', self.LA + 4 + 4 * qt)
            M.append(I(f"{MF} {d}, v[36:39], {r4('v', self.P(b)+qt*4)}, {'0' if zero else d}"))
        for dt in range(8):
            for qt in range(4):
                d = r4('a', (dt * 4 + qt) * 4)
                M.append(I(f"{MF} {d}, {r4('a', self.VB+dt*4)}, {r4('v', self.P(b)+qt*4)}, {'0' if zero else d}"))
        return M
    def SM(self, b, h, nm):
        U = []; E = []; A = []; C = []
        for e in range(16):
            r = self.S(b) + 16 * h + e; qt = e // 4
            U.append(I(f"v_add_f32 v{r}, v{self.MN+4*qt}, v{r}")); E.append(I(f"v_exp_f32 v{r}, v{r}"))
            A.append(I(f"v_add_f32 v{self.LA+qt}, v{self.LA+qt}, v{r}") if qt >= nm else None)
            if e % 2: C.append(I(f"v_cvt_pk_bf16_f32 v{self.P(b)+qt*4+2*h+(e%4)//2}, v{r-1}, v{r}"))
        return U, E, A, C
    def phase(self, p, M, sm, reads, D, tail, carry, sub=False, defer=False, extra=None):
        n = len(M); g = Gaps(n)
        g.tail(n - 1, tail)
        eg = None
        if sm:
            U, E, A, C = sm
            eg = [(e * (n - 2)) // 16 for e in range(16)]
            for e in range(16): g.put(eg[e], E[e], force=True)
            if sub:
                g.pre.append(U[0])
                for e in range(1, 16): g.put(eg[e] - 1, U[e], force=True)
            for e in range(8): g.put(eg[2 * e + 1] + 1, C[e])
        if reads: g.spread(reads, 0, n - 7)
        if D: g.spread(D, 0, n - 3)
        for a in carry: g.put(0, a)
        out = []
        if sm:
            for e in range(16):
                if A[e] is None: continue
                q = eg[e] + 1
                while q < n and not g.fits(q, [A[e]]): q += 1
                if q < n: g.put(q, A[e], force=True)
                elif defer: out.append(A[e])
                else: g.put(eg[e] + 1, A[e])
        if extra: extra(g)
        p(g.weave(M))
        return out
    def iter(self, p, i, carry, Dq=None, Dp=None, pvtail=None, pvextra=None, pre_pv=None):
        nm = self.o.get("nm", 2); b = i % 2
        self.tr(p, "C", 2 * i + 1)
        if i >= 1:
            if i < 15:
                carry = self.phase(p, self.QK(1 - b, self.KB, False), self.SM(b, 1, nm), self.rdV(i), Dq or [],
                                   [W(vm=f"c{i+1}", lg=0), I("s_barrier")], carry, sub=(i == 1), defer=True)
            else:
                p(self.rdV(i)); U, E, A, C = self.SM(b, 1, nm); p(E); p(C); p([a for a in A if a])
                p(pre_pv or [W(lg=0)])
        cd = self.o.get("cd", 5)
        if cd == 5:
            D = [] if i + 5 > 15 else self.dmaC(i + 5)
            if i == 0: D = self.dmaC(4) + D
        else:
            D = self.dmaC(i + cd) if 4 <= i + cd <= 15 else []
        if i < 12 and self.o.get("pf2", 1): D = self.pf2() + D
        self.tr(p, "C", 2 * i + 2)
        carry = self.phase(p, self.PV(b, i == 0, nm), self.SM(1 - b, 0, nm) if i < 15 else None,
                           self.rdK(i + 1) if i + 2 <= 15 else [], D + (Dp or []), pvtail or [W(lg=0)], carry,
                           sub=(i == 0), extra=pvextra)
        if i == 15: self.tr(p, "C", 33); self.tr(p, "C", 34)
        return carry
    def maxops(self, b, run=False):
        mx = []
        for qt in range(4):
            r0 = self.S(b) + qt * 4; r1 = r0 + 16; t = 40 + qt
            if run: mx += L(f"v_max3_f32 v{t}, v{t}, v{r0}, v{r0+1}\nv_max3_f32 v{t}, v{t}, v{r0+2}, v{r0+3}\nv_max3_f32 v{t}, v{t}, v{r1}, v{r1+1}\nv_max3_f32 v{t}, v{t}, v{r1+2}, v{r1+3}")
            else: mx += L(f"v_max3_f32 v{t}, v{r0}, v{r0+1}, v{r0+2}\nv_max3_f32 v{t}, v{t}, v{r0+3}, v{r1}\nv_max3_f32 v{t}, v{t}, v{r1+1}, v{r1+2}\nv_max_f32 v{t}, v{t}, v{r1+3}")
        return mx
    def maxfin(self):
        mx = []
        for sw in ("v_permlane16_swap_b32", "v_permlane32_swap_b32"):
            for qt in range(4): mx += L(f"v_mov_b32 v{44+qt}, v{40+qt}")
            mx += L("s_nop 0")
            for qt in range(4): mx += L(f"{sw} v{40+qt}, v{44+qt}")
            for qt in range(4): mx += L(f"v_max_f32 v{40+qt}, v{40+qt}, v{44+qt}")
        for qt in range(4):
            for e in range(4): mx += L(f"v_sub_f32 v{self.MN+4*qt+e}, 0xc2000000, v{40+qt}")
        return mx
    def partC(self):
        p = Prog(); nm = self.o.get("nm", 2)
        p("K_core:")
        p(W(vm=["k0", "c0"])); p("s_barrier"); self.stamp(p, 4); self.tr(p, "C", 0)
        for ks in range(4): p(f"v_add_u32 v{4+ks}, {K0B-CB}, v{14+ks}")
        p(self.readK(0, self.VB, ar=4))
        for qt in range(4): p(f"v_mov_b32 v{self.LA+qt}, 0")
        p(W(lg=0))
        self.phase(p, self.QK(0, self.VB, True), None, self.rdK(0), [], [W(lg=0)], [])
        M = self.QK(1, self.KB, True); g = Gaps(32, cap=3)
        g.spread(self.rdV(0), 0, 15)
        g.spread(self.maxops(0) + self.maxfin(), 4, 31)
        p(g.weave(M))
        for h in range(2):
            U, E, A, C = self.SM(0, h, nm); p(U); p(E); p(C); p([a for a in A if a])
        p(W(vm="c1", lg=0)); p("s_barrier")
        carry = []
        for i in range(13):
            p.mark("B6")
            Dp = [[I("buffer_store_dword v9, v8, s[12:15], s45 offen sc1")]] if i == 3 else None
            carry = self.iter(p, i, carry, Dp=Dp)
        p.mark("B0")
        assert not carry
        p("s_cmp_ge_u32 s16, 4\ns_cbranch_scc1 K_U")
        return p
    def lfin(self, tagname):
        nm = self.o.get("nm", 2); LA = self.LA
        c = []
        qs = list(range(nm, 4))
        for sw in ("v_permlane16_swap_b32", "v_permlane32_swap_b32"):
            for qt in qs: c += L(f"v_mov_b32 v{44+qt}, v{LA+qt}")
            c += L("s_nop 1")
            for qt in qs: c += L(f"{sw} v{LA+qt}, v{44+qt}")
            for qt in qs: c += L(f"v_add_f32 v{LA+qt}, v{LA+qt}, v{44+qt}")
        for qt in range(nm): c += L(f"v_mov_b32 v{LA+qt}, v{LA+4+4*qt}")
        c += L(f"""v_add_f32 v45, v{LA}, v{LA+1}
        v_add_f32 v46, v{LA+2}, v{LA+3}
        v_add_f32 v44, v45, v46
        v_mov_b32 v45, {self.o.get('thr', 0x5f800000):#x}
        v_cmp_nlt_f32 s[6:7], v44, v45
        s_cmp_lg_u64 s[6:7], 0
        s_cbranch_scc0 FBR_{tagname}
        s_call_b64 s[6:7], K_fallback
        FBR_{tagname}:""")
        for qt in range(4): c += L(f"v_rcp_f32 v{40+qt}, v{LA+qt}")
        return c
    def oepi(self, dst, tmp):
        out = []; i = 0
        for k in range(4):
            c = []
            for qt in range(4):
                r = tmp(i); i += 1; d = dst(k, qt)
                for e in range(8): c.append(I(f"v_accvgpr_read_b32 v{r+e}, a{((2*k+e//4)*4+qt)*4+e%4}"))
                for e in range(8): c.append(I(f"v_mul_f32 v{r+e}, v{r+e}, v{40+qt}"))
                for j in range(4): c.append(I(f"v_cvt_pk_bf16_f32 v{d+j}, v{r+2*j}, v{r+2*j+1}"))
                c.append(I(f"buffer_store_dwordx4 {r4('v', d)}, v3, s[12:15], s11 offen offset:{1024*qt} sc1", tag="ost"))
            c.append(I(f"s_add_u32 s11, s11, {128*1024}"))
            out.append(c)
        return out
    OBASE = f"""
        s_lshl_b32 s11, s19, 19
        s_lshl_b32 s4, s5, 12
        s_add_u32 s11, s11, s4
        s_add_u32 s11, s11, {WS_OF}
        """
    def acc2(self, t, u): return r4('a', 128 + (t * 4 + u) * 4) if t < 8 else r4('v', 240 + 4 * u)

    def partO(self):
        o = self.o; p = Prog()
        ntw = " nt" if o.get("ntwo") else ""
        NW = 6
        p("s_mul_i32 s3, s18, 144\nv_add_u32 v7, s3, v2\ns_and_b32 s4, s17, 3\ns_mul_i32 s4, s4, 288")
        for i in range(3):
            p(f"""v_add_u32 v4, {64*i}, v7
            v_mul_u32_u24 v5, 3641, v4
            v_lshrrev_b32 v5, 16, v5
            v_mul_u32_u24 v6, 18, v5
            v_sub_u32 v6, v4, v6
            v_mul_u32_u24 v5, 1152, v5
            v_lshl_add_u32 v6, v6, 4, v5
            v_add_u32 v{20+i}, s4, v6
            s_sub_u32 s4, s4, 1024""")
        p(f"""
        v_lshrrev_b32 v4, 2, v2
        v_mul_u32_u24 v4, 288, v4
        v_and_b32 v5, 3, v2
        v_lshl_add_u32 v23, v5, 3, v4
        v_lshlrev_b32 v24, 2, v5
        s_mul_i32 s60, s18, 2304
        s_and_b32 s54, s44, 0xffffff80
        s_add_u32 s55, s54, 16
        s_lshl_b32 s63, s5, 12
        s_add_u32 s63, s63, {WS_OF}
        """)
        def hd(i):
            if i < 4: return [I(f"s_xor_b32 s3, s19, {i}")]
            return [I(f"s_and_b32 s3, s19, 0xf8"), I(f"s_add_u32 s3, s3, {i}")]
        def dmaW(t):
            G = []
            if t % 4 == 0: G += [[x] for x in hd(t // 4)] + [[I(f"s_mul_i32 s61, s3, {128*1152}")]]
            G += [[I(f"s_add_u32 m0, s60, {(t % NW)*9216}")],
                  [I(f"buffer_load_dwordx4 v20, s[40:43], s61 offen{ntw} lds", tag=f"g{t}")],
                  [I(f"buffer_load_dwordx4 v21, s[40:43], s61 offen offset:1024{ntw} lds", tag=f"g{t}")],
                  [I("s_mov_b64 exec, 0xffff"), I(f"buffer_load_dwordx4 v22, s[40:43], s61 offen offset:2048{ntw} lds", tag=f"g{t}"), I("s_mov_b64 exec, -1")]]
            if t % 4 != 3: G += [[I(f"s_add_u32 s61, s61, {32*1152}")]]
            return G
        def Bf(t, u): return r4('v', 168 + (t * 4 + u) * 4) if t < 4 else r4('a', ((t - 4) % 8) * 16 + 4 * u)
        def ldB(t):
            G = []
            if t % 4 == 0: G += [[I(x.t.replace("s3", "s4"))] for x in hd(t // 4)] + [[I("s_lshl_b32 s4, s4, 19")], [I("s_add_u32 s62, s4, s63")]]
            for u in range(4): G.append([I(f"buffer_load_dwordx4 {Bf(t,u)}, v3, s[12:15], s62 offen offset:{1024*u} sc1", tag=f"b{t}")])
            if t % 4 != 3: G += [[I(f"s_add_u32 s62, s62, {128*1024}")]]
            return G
        def A(s, t): return 64 + 36 * s + 4 * t
        def reads(t):
            return [I(f"ds_read_b64_tr_b16 {r2('v', A(t%2,tt)+2*h)}, v23 offset:{(t % NW)*9216+h*4608+32*tt}") for tt in range(9) for h in range(2)]
        c = self.iter(p, 13, [], Dp=dmaW(0) + dmaW(1))
        c = self.iter(p, 14, c, Dp=dmaW(2) + dmaW(3))
        c = self.iter(p, 15, c, Dp=dmaW(4) + dmaW(5), pre_pv=[W(vm=["g0", "g1"], lg=0), I("s_barrier")],
                      pvextra=lambda g: g.spread(reads(0), 2, 28))
        self.stamp(p, 5)
        p(self.OBASE); p("s_nop 2"); p(self.lfin("O"))
        for ch in self.oepi(lambda k, qt: 168 + (k * 4 + qt) * 4, lambda i: 136 + (i % 4) * 8): p(ch)
        p("s_barrier")
        self.stamp(p, 6)
        pl1, chk1 = self.poll("pO1", 12, 24, "s54", 25, 1)
        pl2, chk2 = self.poll("pO2", 12, 24, "s55", 25, 1)
        nb = 4
        for t in range(32):
            p.mark("B0")
            M = [I(f"{MF} {self.acc2(tt,u)}, {r4('v', A(t%2,tt))}, {Bf(t,u)}, {'0' if t == 0 else self.acc2(tt,u)}") for tt in range(9) for u in range(4)]
            g = Gaps(36)
            if t < 31:
                need = ([f"g{t+2}"] if t + 2 < 32 else []) + ([f"b{t+1}"] if t + 1 >= 4 else []) + (["ost"] if t == 1 else [])
                tl = [W(vm=need or None, lg=0)] + ([I("s_barrier")] if t + 2 < 32 else [])
                if t == 2: tl += chk1
                g.tail(35, tl)
            D = []
            if t == 2: D += [[I("buffer_store_dword v9, v8, s[12:15], s44 offen sc1")]]
            C2 = o.get("c2", 12)
            if t == C2 - 2: D += [[pl2]]
            if t == C2: D += [chk2]
            if t >= 3:
                lim = min(32, t + 8, 16 if t < C2 else 32)
                for _ in range(2):
                    if nb < lim: D += ldB(nb); nb += 1
            if t + 6 < 32: D += dmaW(t + 6)
            if t == 2: D += [[pl1]]
            if D: g.spread(D, 0, 33)
            if t < 31: g.spread(reads(t + 1), 0, 28)
            self.tr(p, "2", t)
            p(g.weave(M))
        for t in range(32, 38): self.tr(p, "2", t)
        p("s_branch K_tail")
        return p

    def partU(self):
        o = self.o; p = Prog()
        ntw = " nt" if o.get("ntw2") else ""
        hs = " sc1" if o.get("sc1dma", 1) else ""
        SB = 9216 + 16 * 1056
        p("K_U:")
        p(f"""
        s_and_b32 s3, s17, 3
        s_mul_i32 s3, s3, 9216
        s_mul_i32 s60, s18, 2304
        s_add_u32 s3, s3, s60
        v_add_u32 v20, s3, v3
        s_and_b32 s4, s16, 3
        s_mul_i32 s61, s4, {36*36*1024}
        s_add_u32 s61, s61, {WS_UF}
        s_mul_i32 s62, s4, {1152*4096}
        s_lshl_b32 s54, s4, 8
        s_add_u32 s54, s54, {WS_FU}
        v_min_u32 v31, 53, v2
        v_lshlrev_b32 v31, 2, v31
        v_and_b32 v4, 31, v2
        v_lshlrev_b32 v4, 4, v4
        v_lshrrev_b32 v5, 5, v2
        v_lshl_add_u32 v4, v5, 16, v4
        s_lshl_b32 s3, s18, 14
        s_lshr_b32 s4, s17, 2
        s_lshl_b32 s4, s4, 9
        s_add_u32 s3, s3, s4
        v_add_u32 v21, s3, v4
        v_add_u32 v22, {4096-1056}, v21
        v_add_u32 v23, {2*(4096-1056)}, v21
        v_add_u32 v24, {3*(4096-1056)}, v21
        s_mul_i32 s63, s18, {4*1056}
        s_add_u32 s63, s63, 9216
        v_lshrrev_b32 v4, 2, v2
        v_mul_u32_u24 v4, 1056, v4
        v_and_b32 v5, 3, v2
        v_lshl_add_u32 v4, v5, 3, v4
        s_lshl_b32 s3, s18, 7
        s_add_u32 s3, s3, 9216
        v_add_u32 v25, s3, v4
        v_add_u32 v26, {2*SB}, v25
        v_add_u32 v27, {4*SB}, v25
        v_mov_b32 v28, v3
        v_add_u32 v29, {2*SB}, v3
        v_add_u32 v30, {4*SB}, v3
        """)
        sl = lambda n: n % 6
        def dma(n):
            base = sl(n) * SB; tg = f"g{n}"
            G = [[I(f"s_add_u32 m0, s63, {base}")]]
            for u in range(4): G.append([I(f"buffer_load_dwordx4 v{21+u}, s[40:43], s62 offen offset:{1056*u}{ntw} lds", tag=tg)])
            G += [[I(f"s_add_u32 m0, s60, {base}")], [I(f"s_add_u32 s62, s62, {32*4096}")],
                  [I(f"buffer_load_dwordx4 v20, s[12:15], s61 offen{hs} lds", tag=tg)],
                  [I(f"buffer_load_dwordx4 v20, s[12:15], s61 offen offset:1024{hs} lds", tag=tg)],
                  [I("s_mov_b64 exec, 0xffff"), I(f"buffer_load_dwordx4 v20, s[12:15], s61 offen offset:2048{hs} lds", tag=tg), I("s_mov_b64 exec, -1")],
                  [I(f"s_add_u32 s61, s61, {36*1024}")]]
            return G
        SET = [64, 116]
        def A(s, t): return SET[s] + 4 * t
        def B(s, u): return SET[s] + 36 + 4 * u
        def reads(t):
            s = t % 2; slot = sl(t); off = (slot & 1) * SB
            R = [I(f"ds_read_b64_tr_b16 {r2('v', B(s,u)+2*h)}, v{25+slot//2} offset:{off+h*512+32*u}") for u in range(4) for h in range(2)]
            R += [I(f"ds_read_b128 {r4('v', A(s,tt))}, v{28+slot//2} offset:{off+tt*1024}") for tt in range(9)]
            return R
        pl, chk = self.poll("pU", 12, 31, "s54", 32, 1)
        p(pl)
        c = self.iter(p, 13, [], Dp=[chk] + dma(0))
        c = self.iter(p, 14, c, Dq=dma(1), Dp=dma(2))
        c = self.iter(p, 15, c, Dp=dma(3), pre_pv=[W(vm=["g0"], lg=0), I("s_barrier")], pvextra=lambda g: g.spread(reads(0), 2, 28))
        self.stamp(p, 5)
        p(self.OBASE); p("s_nop 2"); p(self.lfin("U"))
        p(W(vm="g1")); p("s_barrier")
        self.stamp(p, 6)
        bg = [x for ch in self.oepi(lambda k, qt: 216 + ((k * 4 + qt) % 4) * 4, lambda i: 184 + (i % 4) * 8) for x in ch]
        issued = 4; flag_at = None
        for t in range(36):
            p.mark("B6")
            M = [I(f"{MF} {self.acc2(tt,u)}, {r4('v', A(t%2,tt))}, {r4('v', B(t%2,u))}, {'0' if t == 0 else self.acc2(tt,u)}") for tt in range(9) for u in range(4)]
            g = Gaps(36)
            if t < 35:
                need = ([f"g{t+2}"] if t + 2 < 36 else []) + (["ost"] if flag_at == t + 1 else [])
                g.tail(35, [W(vm=need or None, lg=0)] + ([I("s_barrier")] if t + 2 < 36 else []))
            D = []
            if flag_at == t: D += [[I("buffer_store_dword v9, v8, s[12:15], s44 offen sc1")]]
            want = min(36, t + 7)
            nd = min(2 if t in (8, 10) else 1, want - issued)
            for _ in range(nd): D += dma(issued); issued += 1
            if D: g.spread(D, 0, 33)
            if t < 35: g.spread(reads(t + 1), 0, 28)
            if bg:
                bg = g.fill(bg, 0, 34)
                if not bg: flag_at = t + 3
            self.tr(p, "2", t)
            p(g.weave(M))
        self.tr(p, "2", 36); self.tr(p, "2", 37)
        p.mark("B0")
        return p

    def partT(self):
        p = Prog()
        p("K_tail:")
        self.stamp(p, 7); self.tr(p, "T", 0)
        p(f"""
        s_lshl_b32 s3, s17, 3
        s_lshl_b32 s4, s18, 1
        s_add_u32 s3, s3, s4
        s_lshl_b32 s3, s3, 3
        s_add_u32 s3, s3, s16
        s_mul_i32 s3, s3, 9216
        s_add_u32 s3, s3, {WS_PART}
        v_add_u32 v5, 4096, v3
        v_add_u32 v6, 8192, v3
        v_mov_b32 v4, v3
        """)
        i = 0
        for h in range(2):
            for c in range(9):
                pr = ((2*(c>>1), 2*h+(c&1)), (2*(c>>1)+1, 2*h+(c&1))) if c < 8 else ((8, 2*h), (8, 2*h+1))
                r = 64 + (i % 4) * 12; i += 1
                if c < 8:
                    for j, (t, u) in enumerate(pr):
                        for x in range(4): p(f"v_accvgpr_read_b32 v{r+4*j+x}, a{128+(t*4+u)*4+x}")
                    src = r
                else: src = 240 + 8 * h
                for j in range(4): p(f"v_cvt_pk_bf16_f32 v{r+8+j}, v{src+2*j}, v{src+2*j+1}")
                p(f"buffer_store_dwordx4 {r4('v', r+8)}, v{4+c//4}, s[12:15], s3 offen offset:{(c%4)*1024} sc1", tag="pst")
            if h == 0: p(f"s_add_u32 s3, s3, {8*9216}")
        self.tr(p, "T", 1)
        p(f"""
        s_lshr_b32 s56, s17, 2
        s_lshl_b32 s56, s56, 8
        s_lshl_b32 s4, s16, 5
        s_add_u32 s56, s56, s4
        s_and_b32 s57, s17, 3
        s_mul_i32 s57, s57, 288
        s_lshl_b32 s58, s17, 3
        s_add_u32 s58, s58, s16
        s_mul_i32 s58, s58, {8*9216}
        s_add_u32 s58, s58, {WS_PART}
        s_lshl_b32 s59, s17, 7
        s_add_u32 s59, s59, {WS_FP}
        s_lshl_b32 s4, s16, 2
        s_add_u32 s60, s59, s4
        v_bfe_u32 v28, v0, 2, 4
        v_add_u32 v29, s56, v28
        v_lshlrev_b32 v29, 1, v29
        """)
        p("global_load_ushort v10, v29, s[46:47]\nglobal_load_ushort v11, v29, s[46:47] offset:32", tag="b2")
        for i in range(3):
            p(f"""v_add_u32 v12, {256*i}, v0
            v_mul_u32_u24 v13, 3641, v12
            v_lshrrev_b32 v13, 16, v13
            v_mul_u32_u24 v14, 18, v13
            v_sub_u32 v14, v12, v14
            v_add_u32 v13, s56, v13
            v_mul_u32_u24 v13, 1152, v13
            v_lshl_add_u32 v{16+i}, v14, 4, v13""")
        p(f"""v_mov_b32 v12, 0x7fff0000
        v_cmp_lt_u32 vcc, 63, v0
        v_and_b32 v30, 7, v2
        v_lshlrev_b32 v30, 2, v30
        v_cndmask_b32 v18, v18, v12, vcc""")
        for i in range(3): p(f"buffer_load_dwordx4 {r4('v', 144+4*i)}, v{16+i}, s[20:23], s57 offen", tag="x")
        p(f"""
        v_lshlrev_b32 v4, 2, v0
        v_add_u32 v5, 4096, v4
        v_add_u32 v6, 8192, v4
        v_lshrrev_b32 v14, 6, v0
        v_and_b32 v15, 1, v0
        v_lshlrev_b32 v15, 2, v15
        v_lshl_add_u32 v15, v14, 3, v15
        v_mul_u32_u24 v14, 288, v28
        v_add_u32 v15, v15, v14
        v_bfe_u32 v14, v0, 1, 1
        v_lshl_add_u32 v12, v14, 5, v15
        v_mul_u32_u24 v14, {16*288}, v14
        v_add3_u32 v13, v14, v15, 64
        s_mov_b32 s62, 0x00003f80
        s_mov_b32 s63, 0x3f800000
        """)
        self.tr(p, "T", 2)
        p(W(vm="pst")); self.tr(p, "T", 3); p("s_barrier"); self.tr(p, "T", 4)
        p("buffer_store_dword v9, v8, s[12:15], s60 offen sc1")
        pl, chk = self.poll("pP", 12, 30, "s59", 31, 1)
        p(pl); p(chk); self.tr(p, "T", 5)
        PB = 160
        for part in range(8):
            if part == 7: p(W(vm="p0"))
            for c in range(9):
                p(f"buffer_load_dword v{PB+part*9+c}, v{4+c//4}, s[12:15], s58 offen offset:{(c%4)*1024} sc1", tag=f"p{part}")
            p("s_add_u32 s58, s58, 9216")
        p(f"""v_lshlrev_b32 v10, 16, v10
        v_lshlrev_b32 v11, 16, v11
        v_and_b32 v14, 2, v0
        v_cmp_eq_u32 vcc, 0, v14
        s_nop 1
        v_cndmask_b32 v19, v11, v10, vcc""")
        SA = 104; Y = 122
        self.tr(p, "T", 6)
        for part in range(8):
            p(W(vm=f"p{part}"))
            base = SA if part < 4 else Y
            for c in range(9):
                for h in range(2):
                    d = base + 2 * c + h
                    cin = "0" if part == 0 else (f"v{19 if c == 8 else 10 + (c & 1)}" if part == 4 else f"v{d}")
                    p(f"v_dot2_f32_bf16 v{d}, v{PB+part*9+c}, s{62+h}, {cin}")
        p("s_nop 2"); self.tr(p, "T", 7)
        T = 64
        for e in range(18): p(f"v_mul_f32 v{T+e}, {f2u(-1.4426950408889634):#x}, v{Y+e}")
        for e in range(18): p(f"v_exp_f32 v{T+e}, v{T+e}")
        for e in range(18): p(f"v_add_f32 v{T+e}, 1.0, v{T+e}")
        for e in range(18): p(f"v_rcp_f32 v{T+e}, v{T+e}")
        for e in range(18): p(f"v_mul_f32 v{SA+e}, v{SA+e}, v{Y+e}")
        for e in range(18): p(f"v_mul_f32 v{T+e}, v{T+e}, v{SA+e}")
        for c in range(9):
            p(f"v_cvt_pk_bf16_f32 v{T+c*2}, v{T+2*c}, v{T+2*c+1}")
            if c < 8: p(f"ds_write_b32 v12, v{T+2*c} offset:{(c&1)*16*288 + (c>>1)*64}")
            else: p(f"ds_write_b32 v13, v{T+2*c} offset:192")
        p("v_lshlrev_b32 v4, 4, v0\ns_waitcnt lgkmcnt(0)\ns_barrier")
        for i in range(3): p(f"ds_read_b128 {r4('v', 84+4*i)}, v4 offset:{4096*i}")
        p("s_waitcnt lgkmcnt(0)")
        for i in range(3):
            for k in range(4):
                x = 144 + 4 * i + k; t = 84 + 4 * i + k
                p(f"""v_lshlrev_b32 v96, 16, v{x}
                v_and_b32 v97, 0xffff0000, v{x}
                v_lshlrev_b32 v98, 16, v{t}
                v_and_b32 v99, 0xffff0000, v{t}
                v_add_f32 v96, v96, v98
                v_add_f32 v97, v97, v99
                v_cvt_pk_bf16_f32 v{t}, v96, v97""")
            p(f"buffer_store_dwordx4 {r4('v', 84+4*i)}, v{16+i}, s[48:51], s57 offen")
        if self.o.get("trace"):
            self.tr(p, "T", 8); p("s_waitcnt vmcnt(0)"); self.tr(p, "T", 9); self.tr(p, "T", 10)
            p(f"s_lshl_b32 s3, s2, 10\ns_add_u32 s3, s3, {WS_TS}\nv_lshlrev_b32 v4, 2, v0\nbuffer_store_dword v1, v4, s[12:15], s3 offen")
        if self.ts:
            p("s_waitcnt vmcnt(0)"); self.stamp(p, 8)
            p(f"s_waitcnt lgkmcnt(0)\ns_mul_i32 s3, s2, {16*NST}\ns_add_u32 s3, s3, {WS_TS}")
            for i in range(NST):
                for e in range(4): p(f"v_mov_b32 v{4+e}, s{64+4*i+e}")
                p(f"buffer_store_dwordx4 v[4:7], v8, s[12:15], s3 offen offset:{16*i}\ns_nop 1")
        p("s_endpgm")
        return p

    def partF(self):
        nm = self.o.get("nm", 2); LA = self.LA
        p = Prog()
        FB = FBB
        p(f"""
        K_fallback:
        s_waitcnt vmcnt(0) lgkmcnt(0)
        s_mul_i32 s56, s18, 8448
        s_add_u32 s56, s56, {FB}
        v_lshrrev_b32 v4, 4, v2
        v_and_b32 v5, 15, v2
        """)
        for q in range(4):
            p(f"""v_add_u32 v6, {4*q}, v4
            v_xor_b32 v7, v6, v5
            v_lshlrev_b32 v7, 4, v7
            v_lshl_add_u32 v{48+q}, v6, 8, v7""")
        p(f"""
        v_lshlrev_b32 v6, 11, v4
        v_lshl_add_u32 v52, v5, 4, v6
        s_sub_u32 s3, s56, {CB}
        v_add_u32 v53, s3, v14
        v_add_u32 v54, s3, v15
        v_add_u32 v55, s3, v16
        v_add_u32 v56, s3, v17
        v_add_u32 v57, s56, v19
        s_lshr_b32 s57, s19, 1
        s_lshl_b32 s57, s57, 19
        s_add_u32 s57, s57, {1536*256}
        """)
        def loadK():
            for q in range(8):
                p(f"s_add_u32 m0, s56, {1024*q}\ns_add_u32 s3, s58, {4096*(q//4)}\nbuffer_load_dwordx4 v{48+q%4}, s[28:31], s3 offen lds")
            p("s_waitcnt vmcnt(0)")
            p(self.readK(0, self.KB, ar=53)); p("s_waitcnt lgkmcnt(0)")
        for qt in range(4): p(f"v_mov_b32 v{40+qt}, 0xff800000")
        p("s_mov_b32 s58, s57\ns_mov_b32 s59, 16\nFB_l1:")
        loadK()
        p(self.QKf(True)); p("s_nop 7")
        p(self.maxf())
        p("s_add_u32 s58, s58, 8192\ns_sub_u32 s59, s59, 1\ns_cmp_lg_u32 s59, 0\ns_cbranch_scc1 FB_l1")
        p(self.maxfin())
        for qt in range(4): p(f"v_mov_b32 v{LA+qt}, 0")
        for i in range(128): p(f"v_accvgpr_write_b32 a{i}, 0")
        p("s_mov_b32 s58, s57\ns_mov_b32 s59, 16\nFB_l2:")
        loadK()
        p(self.QKf(False))
        for q in range(8):
            p(f"s_add_u32 m0, s56, {1056*q}\ns_add_u32 s3, s58, {256*q}\nbuffer_load_dwordx4 v52, s[32:35], s3 offen lds")
        SF = 116
        for e in range(32): p(f"v_exp_f32 v{SF+e}, v{SF+e}")
        for e in range(32): p(f"v_add_f32 v{LA+(e%16)//4}, v{LA+(e%16)//4}, v{SF+e}")
        PF = 148
        def pf(qt): return PF + 4 * qt if qt < 3 else 180
        for e in range(1, 32, 2):
            qt = (e % 16) // 4; h = e // 16
            p(f"v_cvt_pk_bf16_f32 v{pf(qt)+2*h+(e%4)//2}, v{SF+e-1}, v{SF+e}")
        p("s_waitcnt vmcnt(0)")
        p(self.readV(0, ar=57)); p("s_waitcnt lgkmcnt(0)")
        for dt in range(8):
            for qt in range(4):
                d = r4('a', (dt * 4 + qt) * 4)
                p(f"{MF} {d}, {r4('a', self.VB+dt*4)}, {r4('v', pf(qt))}, {d}")
        p("s_add_u32 s58, s58, 8192\ns_sub_u32 s59, s59, 1\ns_cmp_lg_u32 s59, 0\ns_cbranch_scc1 FB_l2")
        for sw in ("v_permlane16_swap_b32", "v_permlane32_swap_b32"):
            for qt in range(4): p(f"v_mov_b32 v{44+qt}, v{LA+qt}")
            p("s_nop 1")
            for qt in range(4): p(f"{sw} v{LA+qt}, v{44+qt}")
            for qt in range(4): p(f"v_add_f32 v{LA+qt}, v{LA+qt}, v{44+qt}")
        p("s_setpc_b64 s[6:7]")
        return p
    def QKf(self, zero):
        M = []
        for kt in range(2):
            for ks in range(4):
                for qt in range(4):
                    d = 116 + (kt * 4 + qt) * 4
                    c = ("0" if zero else r4('v', self.MN + 4 * qt)) if ks == 0 else r4('v', d)
                    M.append(I(f"{MF} {r4('v', d)}, {r4('a', self.KB+(kt*4+ks)*4)}, {r4('v', QF+(qt*4+ks)*4)}, {c}"))
        return M
    def maxf(self):
        mx = []
        for qt in range(4):
            r0 = 116 + qt * 4; r1 = r0 + 16; t = 40 + qt
            mx += L(f"v_max3_f32 v{t}, v{t}, v{r0}, v{r0+1}\nv_max3_f32 v{t}, v{t}, v{r0+2}, v{r0+3}\nv_max3_f32 v{t}, v{t}, v{r1}, v{r1+1}\nv_max3_f32 v{t}, v{t}, v{r1+2}, v{r1+3}")
        return mx

    def build(self):
        P0 = self.part0().s; PA = self.partA().s; PB = self.partB().s; PC = self.partC().s
        PO = self.partO().s; PU = self.partU().s; PT = self.partT().s; PF = self.partF().s
        seg = {}
        bad = 0
        for n1, x1 in (("A", PA), ("B", PB)):
            for n2, x2 in (("O", PO), ("U", PU)):
                parts = [("0", P0), (n1, x1), ("C", PC), (n2, x2), ("T", PT)]
                st = []
                for nme, x in parts: st += [I(f"SEG_{nme}:")] + x
                st = resolve(st)
                bad += check(st, n1 + n2)
                cur = None; d = {}
                for ins in st:
                    if ins.t.startswith("SEG_"): cur = ins.t[4:-1]; d[cur] = []
                    else: d[cur].append(ins)
                for k, v in d.items():
                    if k in seg: assert [x.t for x in seg[k]] == [x.t for x in v], f"segment {k} differs on path {n1}{n2}"
                    else: seg[k] = v
        bad += check(PF, "F")
        assert not bad
        body = []
        for k in "0ABCOUT": body += fold(seg[k], "s10", "K" + k)
        for _, sp in self.spins: body += sp
        body += PF
        return body

def build(fname, opts={}, ts=False):
    g = Gen(opts, ts)
    body = g.build()
    name = KNAME + "_kernel"
    out = ["; @launch grid=(256,1,1) block=(256,1,1) lds=163840", '.amdgcn_target "amdgcn-amd-amdhsa--gfx950"\n.text',
           kernel_header(name) + text(body) + "K_end:\n  s_endpgm", '.section .rodata,"a"', ".p2align 6",
           kernel_desc(name, 512, sgpr=102, accum=256).replace(".end_amdhsa_kernel", "  .amdhsa_float_denorm_mode_32 3\n.end_amdhsa_kernel")]
    open(fname, "w").write("\n".join(out) + "\n")

if __name__ == "__main__":
    build("v3.s"); build("v3_ts.s", ts=True); build("v3_fb.s", {"thr": 0x3f800000})
    for ph in "QMC2T": build(f"v3_tr{ph}.s", {"trace": ph})
    build("v3_cd3_trC.s", {"trace": "C", "cd": 3}); build("v3_cd2_trC.s", {"trace": "C", "cd": 2})
    build("v3_sk_ts.s", {"pfskip": 1, "pf2": 0}, ts=True)
    build("v3_r2_trQ.s", {"trace": "Q", "pf1rows": 2}); build("v3_n_trQ.s", {"trace": "Q", "pf1": 0})
```

```python
import sys, struct
from fw2 import *
from asmlib import kernel_header, kernel_desc, KNAME

WS_OF = 0
WS_UF = 16 << 20
WS_HF = 22 << 20
WS_ST = 25 << 20
WS_FO = WS_ST + 65536
WS_FU = WS_FO + 4096
WS_FP = WS_FU + 4096
WS_PART = 26 << 20
WS_TS = 60 << 20
WS_SIZE = 64 << 20
MF = "v_mfma_f32_16x16x32_bf16"
def f2u(x): return struct.unpack("<I", struct.pack("<f", x))[0]
CS_Q = f2u(128 ** -0.5 * 1.4426950408889634)
def r4(k, i): return f"{k}[{i}:{i+3}]"
def r2(k, i): return f"{k}[{i}:{i+1}]"
def srd(d, lo, nbytes): return f"s_mov_b32 s{d}, s{lo}\ns_mov_b32 s{d+1}, s{lo+1}\ns_mov_b32 s{d+2}, {nbytes}\ns_mov_b32 s{d+3}, 0x20000"
def flat(G):
    out = []
    for g in G:
        out.extend(g)
        if "m0" in g[-1].t: out.append(I("s_nop 0"))
    return out

XS = 32768; WB = 98304; WSL = 8448
HSB = 148992; CSB = 158208
MSL = 29184; NM = 5
CB = 58368; CSL = 16640; K0B = 75008; NC = 6; FBB = 104448
def cs(n): return (n + 2) % NC
QF = 192
NST = 9

class Gen:
    def __init__(self, opts, ts):
        self.o = opts; self.ts = ts; self.spins = []
    def tr(self, p, ph, idx):
        if self.o.get("trace") != ph or idx > 63: return
        if idx > 0: p(f"s_waitcnt lgkmcnt(0)\nv_writelane_b32 v1, s96, {idx-1}")
        p("s_memtime s[96:97]")
        self.lasttr = idx
    def stamp(self, p, i):
        if self.ts: p(f"s_memtime s[{64+4*i}:{65+4*i}]\ns_memrealtime s[{66+4*i}:{67+4*i}]")
    def poll(self, name, srdn, vaddr, soff, vdst, expect):
        cmpop = "v_cmp_gt_u32" if expect == 8 else "v_cmp_ne_u32"
        ld = f"buffer_load_dword v{vdst}, v{vaddr}, s[{srdn}:{srdn+3}], {soff} offen sc1"
        chk = [W(vm=name), I(f"{cmpop} s[6:7], {expect}, v{vdst}"), I("s_cmp_lg_u64 s[6:7], 0"), I(f"s_cbranch_scc1 SP_{name}"), I(f"RT_{name}:")]
        if name not in [s[0] for s in self.spins]:
            self.spins.append((name, L(f"""SP_{name}:
            s_mov_b32 vcc_lo, 0x80000
            SQ_{name}:
            {ld}
            s_sub_u32 vcc_lo, vcc_lo, 1
            s_cbranch_scc1 RT_{name}
            s_waitcnt vmcnt(0)
            {cmpop} s[6:7], {expect}, v{vdst}
            s_cmp_lg_u64 s[6:7], 0
            s_cbranch_scc1 SQ_{name}
            s_branch RT_{name}""")))
        return I(ld, tag=name), chk

    def part0(self):
        o = self.o; p = Prog()
        ntq = " nt" if o.get("ntq") else ""
        p("s_cmp_ge_u32 s2, 256\ns_cbranch_scc1 K_end")
        self.stamp(p, 0)
        if o.get("dbgts"): p("s_memrealtime s[64:65]")
        p(f"""
        s_load_dwordx8 s[20:27], s[0:1], 0
        s_load_dwordx2 s[40:41], s[0:1], 32
        s_load_dwordx4 s[36:39], s[0:1], 48
        s_load_dwordx8 s[44:51], s[0:1], 64
        s_load_dwordx2 s[12:13], s[0:1], 96
        s_getpc_b64 s[10:11]
        K_pc:
        v_and_b32 v2, 63, v0
        v_lshrrev_b32 v3, 6, v0
        s_and_b32 s16, s2, 7
        v_readfirstlane_b32 s18, v3
        s_lshr_b32 s17, s2, 3
        s_and_b32 s19, s16, 3
        s_lshl_b32 s19, s19, 3
        s_lshr_b32 s3, s16, 2
        s_lshl_b32 s3, s3, 2
        s_add_u32 s19, s19, s3
        s_and_b32 s3, s17, 3
        s_add_u32 s19, s19, s3
        s_lshr_b32 s5, s17, 2
        s_lshl_b32 s5, s5, 2
        s_add_u32 s5, s5, s18
        v_lshlrev_b32 v3, 4, v2
        """)
        p(f"""
        v_and_b32 v64, 31, v0
        v_lshrrev_b32 v65, 5, v0
        v_and_b32 v66, 3, v65
        v_lshrrev_b32 v67, 2, v65
        v_lshl_add_u32 v66, v67, 4, v66
        s_lshr_b32 s3, s2, 2
        s_lshl_b32 s3, s3, 5
        s_and_b32 s4, s2, 3
        s_lshl_b32 s4, s4, 2
        s_add_u32 s3, s3, s4
        v_add_u32 v66, s3, v66
        v_mul_u32_u24 v67, 1152, v66
        v_lshl_add_u32 v67, v64, 2, v67
        """)
        p(f"""
        v_lshrrev_b32 v4, 3, v2
        v_and_b32 v5, 7, v2
        v_lshrrev_b32 v6, 1, v4
        v_xor_b32 v6, v6, v5
        v_mul_u32_u24 v4, 1152, v4
        s_mul_i32 s3, s5, {64*1152}
        v_add_u32 v4, s3, v4
        v_lshl_add_u32 v10, v6, 4, v4
        v_xor_b32 v6, 4, v6
        v_lshl_add_u32 v11, v6, 4, v4
        v_add_u32 v11, {8*1152-1024}, v11
        """)
        for q in range(2, 8):
            p(f"v_add_u32 v{10+q}, {(q & ~1)*8*1152 - ((q & 3) - (q & 1))*1024}, v{10+(q&1)}")
        p(f"""
        v_lshrrev_b32 v4, 4, v2
        v_and_b32 v5, 1, v4
        v_lshlrev_b32 v5, 2, v5
        v_lshrrev_b32 v4, 1, v4
        v_lshl_add_u32 v4, v4, 4, v5
        s_and_b32 s3, s18, 1
        s_lshl_b32 s3, s3, 1
        s_lshr_b32 s4, s18, 1
        s_lshl_b32 s4, s4, 3
        s_add_u32 s3, s3, s4
        v_add_u32 v4, s3, v4
        v_lshlrev_b32 v4, 13, v4
        v_and_b32 v5, 15, v2
        v_lshl_add_u32 v4, v5, 4, v4
        s_lshl_b32 s3, s19, 8
        v_add_u32 v18, s3, v4
        v_add_u32 v19, {8192-1056}, v18
        s_lshl_b32 s56, s18, 13
        s_mul_i32 s57, s18, {2*1056}
        s_mov_b32 s58, 0
        s_mov_b32 s59, 0
        s_waitcnt lgkmcnt(0)
        {srd(28, 22, 16*2048*256)}
        {srd(32, 24, 16*2048*256)}
        {srd(24, 26, 576*8192)}
        s_mov_b32 s22, {2048*1152}
        s_mov_b32 s23, 0x20000
        """)
        for t in range(9): p(f"buffer_load_dword v{70+t}, v67, s[20:23], 0 offen offset:{128*t}", tag="hx")
        def dmaX(n, half):
            G = [[I(f"s_add_u32 m0, s56, {(n % 3)*XS + half*4096}")]]
            for q in range(4):
                G.append([I(f"buffer_load_dwordx4 v{10+4*half+q}, s[20:23], s58 offen offset:{1024*q} lds", tag=f"x{n}")])
            if half: G.append([I("s_add_u32 s58, s58, 128")])
            return G
        def dmaW(t):
            return [[I(f"s_add_u32 m0, s57, {WB + (t % 6)*WSL}")],
                    [I(f"buffer_load_dwordx4 v18, s[24:27], s59 offen{ntq} lds", tag=f"w{t}")],
                    [I(f"buffer_load_dwordx4 v19, s[24:27], s59 offen offset:1056{ntq} lds", tag=f"w{t}")],
                    [I(f"s_add_u32 s59, s59, {32*8192}")]]
        p(flat(dmaX(0, 0) + dmaW(0) + dmaX(0, 1) + dmaW(1)))
        p(f"""
        s_lshl_b32 s3, s17, 12
        v_lshl_add_u32 v4, v0, 4, s3
        v_min_u32 v4, K_end - K_pc - 16, v4
        global_load_dwordx4 v[232:235], v4, s[10:11]
        """)
        p(flat(dmaX(1, 0) + dmaW(2) + dmaX(1, 1) + dmaW(3) + dmaX(2, 0) + dmaW(4) + dmaX(2, 1) + dmaW(5)))
        p(f"""
        s_mov_b32 s14, {WS_SIZE}
        s_mov_b32 s15, 0x20000
        s_mov_b32 s100, s38
        s_mov_b32 s101, s39
        s_mov_b32 s38, {2048*9216}
        s_mov_b32 s39, 0x20000
        s_cmp_lt_u32 s16, 4
        s_cselect_b32 s40, s40, s44
        s_cselect_b32 s41, s41, s45
        s_mov_b32 s3, {4608*4096}
        s_cselect_b32 s42, {4096*1152}, s3
        s_mov_b32 s43, 0x20000
        {srd(52, 50, 256)}
        s_mov_b32 s50, {2048*1152}
        s_mov_b32 s51, 0x20000
        v_mov_b32 v8, 0x7fff0000
        v_cmp_eq_u32 vcc, 0, v0
        v_mov_b32 v9, 1
        v_mov_b32 v4, 0
        v_cndmask_b32 v8, v8, v4, vcc
        """)
        p(f"""
        s_min_u32 s3, s17, 26
        s_mul_i32 s4, s16, 27
        s_add_u32 s3, s3, s4
        s_mul_i32 s8, s3, 10923
        s_lshr_b32 s8, s8, 16
        s_mul_i32 s4, s8, 6
        s_sub_u32 s9, s3, s4
        s_lshr_b32 s4, s16, 1
        s_mul_i32 s4, s4, 10
        s_add_u32 s3, s3, s4
        s_lshl_b32 s3, s3, 2
        s_add_u32 s45, s3, {WS_FU}
        s_lshl_b32 s4, s2, 2
        s_add_u32 s4, s4, {WS_FU + 1024}
        s_cmp_ge_u32 s17, 27
        s_cselect_b32 s45, s4, s45
        s_lshr_b32 s3, s19, 3
        s_lshl_b32 s3, s3, 3
        s_lshr_b32 s4, s17, 2
        s_add_u32 s3, s3, s4
        s_lshl_b32 s3, s3, 5
        s_and_b32 s4, s19, 7
        s_add_u32 s3, s3, s4
        s_lshl_b32 s3, s3, 2
        s_add_u32 s44, s3, {WS_FO}
        s_lshl_b32 s3, s17, 5
        s_add_u32 s3, s3, s16
        s_lshl_b32 s3, s3, 2
        s_add_u32 s3, s3, {WS_FP}
        """)
        for s in ("s44", "s45", "s3"): p(f"buffer_store_dword v4, v8, s[12:15], {s} offen sc1", tag="hst")
        p(f"""
        v_lshrrev_b32 v4, 4, v2
        v_bfe_u32 v5, v2, 2, 2
        v_and_b32 v6, 1, v4
        v_lshl_add_u32 v5, v6, 2, v5
        v_mul_u32_u24 v5, 1056, v5
        v_lshrrev_b32 v6, 1, v4
        v_lshl_add_u32 v5, v6, 9, v5
        v_and_b32 v6, 3, v2
        v_lshl_add_u32 v5, v6, 3, v5
        v_add_u32 v5, {WB}, v5
        """)
        for kp in range(4):
            p(f"s_xor_b32 s3, s18, {kp}\ns_lshl_b32 s3, s3, 6\nv_add_u32 v{20+kp}, s3, v5")
        p(f"""
        v_and_b32 v5, 15, v2
        v_lshrrev_b32 v6, 1, v5
        v_xor_b32 v6, v6, v4
        v_lshlrev_b32 v5, 7, v5
        v_add_u32 v5, s56, v5
        v_lshl_add_u32 v24, v6, 4, v5
        v_xor_b32 v6, 4, v6
        v_lshl_add_u32 v25, v6, 4, v5
        v_add_u32 v26, 65536, v24
        v_add_u32 v27, 65536, v25
        """)
        for e in range(4): p(f"v_mov_b32 v{36+e}, 0x3f803f80")
        p(f"""
        v_lshrrev_b32 v4, 4, v2
        v_lshlrev_b32 v4, 3, v4
        s_lshr_b32 s3, s18, 1
        s_lshl_b32 s3, s3, 5
        s_and_b32 s4, s18, 1
        s_lshl_b32 s4, s4, 2
        s_add_u32 s3, s3, s4
        v_add_u32 v4, s3, v4
        v_mul_u32_u24 v4, 9216, v4
        v_and_b32 v5, 15, v2
        v_lshl_add_u32 v4, v5, 4, v4
        s_lshl_b32 s3, s8, 8
        v_add_u32 v28, s3, v4
        v_add_u32 v29, {9216-1056}, v28
        v_add_u32 v30, {2*(9216-1056)}, v28
        v_add_u32 v31, {3*(9216-1056)}, v28
        s_lshr_b32 s3, s18, 1
        s_mul_i32 s3, s3, 36
        s_mul_i32 s4, s9, 6
        s_add_u32 s3, s3, s4
        s_and_b32 s4, s18, 1
        s_mul_i32 s4, s4, 3
        s_add_u32 s3, s3, s4
        s_lshl_b32 s3, s3, 10
        s_add_u32 s3, s3, {WS_HF}
        v_add_u32 v32, s3, v3
        s_mul_i32 s60, s18, {4*1056}
        s_mul_i32 s61, s18, 3072
        s_add_u32 s61, s61, 16896
        s_mov_b32 s62, 0
        s_mov_b32 s63, 0
        s_lshl_b32 s3, s8, 8
        s_and_b32 s4, s18, 1
        s_lshl_b32 s4, s4, 7
        s_add_u32 s3, s3, s4
        v_lshrrev_b32 v4, 4, v2
        v_lshl_add_u32 v4, v4, 3, s3
        v_and_b32 v5, 15, v2
        s_lshl_b32 s3, s5, 9
        s_add_u32 s3, s3, {WS_ST}
        v_lshl_add_u32 v33, v5, 3, s3
        v_and_b32 v34, 31, v2
        v_lshlrev_b32 v34, 2, v34
        v_add_u32 v34, 128, v34
        """)
        p(f"""
        v_mul_u32_u24 v5, 7282, v2
        v_lshrrev_b32 v5, 16, v5
        v_mul_u32_u24 v6, 9, v5
        v_sub_u32 v6, v2, v6
        s_lshl_b32 s3, s17, 2
        s_add_u32 s3, s3, s18
        s_mul_i32 s3, s3, {o.get('pf1rows', 1)}
        v_add_u32 v5, s3, v5
        v_mul_u32_u24 v5, 9216, v5
        v_lshl_add_u32 v5, v6, 7, v5
        s_mul_i32 s3, s16, 1152
        v_add_u32 v5, s3, v5
        v_mov_b32 v6, 0x7fff0000
        v_cmp_gt_u32 vcc, {9*o.get('pf1rows', 1)}, v2
        s_mov_b32 s11, 0
        s_nop 0
        v_cndmask_b32 v237, v6, v5, vcc
        v_add_u32 v238, {768*9216}, v237
        v_add_u32 v239, {2*768*9216}, v237
        """)
        for f in range(4): p(f"global_load_dwordx2 v[{40+2*f}:{41+2*f}], v4, s[100:101] offset:{32*f}", tag="b1")
        p(W(vm="hx"))
        X = 80
        def red32(v, t):
            for n in (8, 4, 2, 1):
                p(f"s_nop 1\nv_add_f32_dpp v{v}, v{v}, v{v} row_ror:{n} row_mask:0xf bank_mask:0xf")
            p(f"v_mov_b32 v{t}, v{v}\ns_nop 1\nv_permlane16_swap_b32 v{v}, v{t}\nv_add_f32 v{v}, v{v}, v{t}")
        def unpack():
            for t in range(9): p(f"v_lshlrev_b32 v{X+2*t}, 16, v{70+t}\nv_and_b32 v{X+2*t+1}, 0xffff0000, v{70+t}")
        def ln(first):
            p(f"v_add_f32 v100, v{X}, v{X+1}")
            for e in range(2, 18): p(f"v_add_f32 v100, v100, v{X+e}")
            red32(100, 101)
            p(f"v_mul_f32 v100, {f2u(-1.0/576):#x}, v100")
            for e in range(18): p(f"v_add_f32 v{X+e}, v100, v{X+e}")
            p(f"v_mul_f32 v102, v{X}, v{X}")
            for e in range(1, 18): p(f"v_fmac_f32 v102, v{X+e}, v{X+e}")
            red32(102, 101)
            p(f"v_mov_b32 v101, {f2u(1e-5):#x}\nv_fmac_f32 v101, {f2u(1.0/576):#x}, v102\nv_rsq_f32 v101, v101\ns_nop 0")
            for e in range(18): p(f"v_mul_f32 v{X+e}, v101, v{X+e}")
            for t in range(9): p(f"v_cvt_pk_bf16_f32 v{70+t}, v{X+2*t}, v{X+2*t+1}")
            if first:
                p(f"""v_mov_b32 v104, v100
                v_mul_f32 v105, {CS_Q:#x}, v101
                v_lshlrev_b32 v68, 3, v66
                v_add_u32 v68, {WS_ST}, v68
                v_mov_b32 v69, 0x7fff0000
                v_cmp_eq_u32 vcc, 0, v64
                s_nop 1
                v_cndmask_b32 v68, v69, v68, vcc""")
                p("buffer_store_dwordx2 v[104:105], v68, s[12:15], 0 offen sc1", tag="hst")
        unpack(); ln(True); unpack(); ln(False)
        p(f"v_mul_u32_u24 v68, 1152, v65\nv_lshl_add_u32 v68, v64, 2, v68\nv_add_u32 v68, {HSB}, v68")
        for t in range(9): p(f"ds_write_b32 v68, v{70+t} offset:{128*t}")
        p(f"""
        v_bfe_u32 v4, v0, 2, 2
        v_mul_u32_u24 v4, 1152, v4
        v_and_b32 v5, 3, v0
        v_lshl_add_u32 v4, v5, 3, v4
        v_lshrrev_b32 v5, 4, v0
        v_lshl_add_u32 v68, v5, 5, v4
        v_add_u32 v68, {HSB}, v68
        v_and_b32 v4, 15, v0
        v_lshlrev_b32 v4, 4, v4
        v_lshl_add_u32 v4, v5, 10, v4
        v_add_u32 v5, 16384, v4
        v_add_u32 v6, 32768, v4
        v_cmp_gt_u32 vcc, 64, v0
        s_lshr_b32 s3, s2, 2
        s_mul_i32 s3, s3, {36*1024}
        v_cndmask_b32 v6, v69, v6, vcc
        s_and_b32 s4, s2, 3
        s_lshl_b32 s4, s4, 8
        s_add_u32 s3, s3, s4
        s_add_u32 s3, s3, {WS_HF}
        """)
        p(W(vm=["x0", "w0"], lg=0)); p("s_barrier")
        self.stamp(p, 1)
        def qA(s, t): return 48 * s + 4 * t
        def qB(s, q): return 48 * s + 32 + 4 * q
        self.qacc = qacc = lambda t, q: 64 + (t * 4 + q) * 4
        CSA = 56
        def qreads(t):
            s = t % 2; n = t // 2; kk = t % 2; sl = n % 3
            R = [I(f"ds_read_b128 {r4('a', qB(s,q))}, v{24 + kk + (2 if sl == 2 else 0)} offset:{(sl & 1)*XS*(sl != 2) + 2048*q}") for q in range(4)]
            for tl in range(8):
                for h in range(2):
                    R.append(I(f"ds_read_b64_tr_b16 {r2('a', qA(s,tl)+2*h)}, v{20+tl//2} offset:{(t % 6)*WSL + (tl & 1)*32 + h*256}"))
            return R
        for i in range(3):
            for h in range(2): p(f"ds_read_b64_tr_b16 v[{200+4*i+2*h}:{201+4*i+2*h}], v68 offset:{512*i + 4608*h}")
        p(qreads(0))
        p(W(lg=0))
        for i in range(3):
            p(f"buffer_store_dwordx4 v[{200+4*i}:{203+4*i}], v{4+i}, s[12:15], s3 offen sc1", tag="hst")
        p(W(vm=["w1"])); p("s_barrier")
        ntw1 = " nt" if o.get("ntw1") else ""
        hs = " sc1" if o.get("sc1dma", 1) else ""
        def dmaM(n):
            b = (n % NM) * MSL
            G = [[I(f"s_add_u32 m0, s60, {b}")]]
            for q in range(4): G.append([I(f"buffer_load_dwordx4 v{28+q}, s[36:39], s62 offen offset:{1056*q}{ntw1} lds", tag=f"m{n}")])
            G.append([I(f"s_add_u32 s62, s62, {64*9216}")])
            G.append([I(f"s_add_u32 m0, s61, {b}")])
            for q in range(3): G.append([I(f"buffer_load_dwordx4 v32, s[12:15], s63 offen offset:{1024*q}{hs} lds", tag=f"m{n}")])
            G.append([I(f"s_add_u32 s63, s63, {2*36*1024}")])
            return G
        self.dmaM = dmaM
        pl, chk = self.poll("pH", 52, 34, 0, 35, 8)
        for t in range(18):
            s = t % 2; M = []
            for tl in range(8):
                for q in range(4):
                    d = r4('v', qacc(tl, q))
                    M.append(I(f"{MF} {d}, {r4('a', qA(s,tl))}, {r4('a', qB(s,q))}, {'0' if t == 0 else d}"))
                if tl < 2:
                    d = r4('v', CSA + 4 * tl)
                    M.append(I(f"{MF} {d}, {r4('a', qA(s,tl))}, v[36:39], {'0' if t == 0 else d}"))
            n = len(M); g = Gaps(n)
            if t < 17:
                need = [f"w{t+2}", f"x{(t+2)//2}"] if t + 2 < 18 else []
                if t == 4: need.append("hst")
                g.tail(n - 1, [W(vm=need or None, lg=0), I("s_barrier")])
            D = []
            if t >= 1 and (t - 1) // 2 + 3 < 9: D += dmaX((t - 1) // 2 + 3, (t - 1) % 2)
            if t + 6 < 18: D += dmaW(t + 6)
            if t == 5: D += [[I("s_lshr_b32 s3, s2, 3")], [I("s_lshl_b32 s3, s3, 2")], [I("s_add_u32 s3, s3, 128")], [I("buffer_atomic_add v9, v8, s[52:55], s3 offen sc1")]]
            if t == 10: D += [[pl]]
            if t == 12: D += [chk] + [[I(f"buffer_load_dwordx2 v[{48+2*q}:{49+2*q}], v33, s[12:15], 0 offen offset:{128*q} sc1", tag="st")] for q in range(4)]
            pr = o.get('pf1rows', 1)
            if o.get("pf1", 1) and t >= 1 and (t - 1) % pr == 0 and (t - 1) < 16:
                D = D + [[I(f"buffer_load_dword v236, v237, s[36:39], s11 offen")], [I(f"s_add_u32 s11, s11, {128*pr*9216}")]]
            if t == 13: D += dmaM(0)
            if t == 15: D += dmaM(1)
            if t == 17: D += dmaM(2)
            if D: g.spread(D, 0, n - 3)
            if t < 17: g.spread(qreads(t + 1), 0, n - 8)
            self.tr(p, "Q", t)
            p(g.weave(M))
        self.tr(p, "Q", 18); self.tr(p, "Q", 19)
        self.stamp(p, 2)
        p(f"""
        v_lshrrev_b32 v4, 4, v2
        s_lshl_b32 s3, s18, 7
        s_add_u32 s3, s3, {CSB}
        v_lshl_add_u32 v20, v4, 4, s3
        ds_write_b128 v20, v[{CSA}:{CSA+3}]
        ds_write_b128 v20, v[{CSA+4}:{CSA+7}] offset:64
        v_xor_b32 v21, 128, v20
        v_xor_b32 v22, 256, v20
        v_xor_b32 v23, 384, v20
        """)
        p(W(vm="b1"))
        for f in range(4):
            p(f"""v_lshlrev_b32 v4, 16, v{40+2*f}
            v_and_b32 v5, 0xffff0000, v{40+2*f}
            v_lshlrev_b32 v6, 16, v{41+2*f}
            v_and_b32 v7, 0xffff0000, v{41+2*f}""")
            for e in range(4): p(f"v_accvgpr_write_b32 a{240+4*f+e}, v{4+e}")
        p(f"""
        v_lshrrev_b32 v4, 2, v2
        v_and_b32 v5, 7, v4
        v_mul_u32_u24 v5, 1056, v5
        v_lshrrev_b32 v4, 3, v4
        v_lshl_add_u32 v5, v4, 8, v5
        v_and_b32 v4, 3, v2
        v_lshl_add_u32 v19, v4, 3, v5
        s_cmp_ge_u32 s17, 27
        s_cbranch_scc1 K_skip
        """)
        return p

    def core_setup(self):
        c = L(f"""
        v_lshrrev_b32 v4, 4, v2
        s_lshl_b32 s3, s18, 3
        v_add_u32 v4, s3, v4
        v_and_b32 v5, 15, v2
        v_and_b32 v6, 15, v4
        v_xor_b32 v6, v5, v6
        v_lshlrev_b32 v6, 4, v6
        v_lshl_add_u32 v10, v4, 8, v6
        v_add_u32 v4, 4, v4
        v_and_b32 v6, 15, v4
        v_xor_b32 v6, v5, v6
        v_lshlrev_b32 v6, 4, v6
        v_lshl_add_u32 v11, v4, 8, v6
        v_subrev_u32 v11, 1024, v11
        v_lshrrev_b32 v4, 4, v2
        v_lshlrev_b32 v4, 3, v4
        s_lshl_b32 s3, s18, 1
        v_add_u32 v4, s3, v4
        v_lshlrev_b32 v5, 4, v5
        v_lshl_add_u32 v12, v4, 8, v5
        v_add_u32 v12, 1024, v12
        v_add_u32 v13, {256-1056}, v12
        s_lshr_b32 s58, s19, 1
        s_lshl_b32 s58, s58, 19
        s_add_u32 s58, s58, {1536*256}
        s_sub_u32 s59, s58, 1024
        s_lshl_b32 s56, s18, 11
        s_mul_i32 s57, s18, {2*1056}
        s_add_u32 s57, s57, 8192
        v_and_b32 v4, 15, v2
        v_lshrrev_b32 v5, 4, v2
        v_lshrrev_b32 v6, 1, v5
        v_and_b32 v7, 1, v5
        v_lshl_add_u32 v5, v7, 1, v6
        v_lshlrev_b32 v7, 8, v4
        v_add_u32 v7, {CB}, v7
        """)
        for kp in range(4):
            c += L(f"""s_xor_b32 s3, s18, {kp}
            s_lshl_b32 s3, s3, 2
            v_add_u32 v6, s3, v5
            v_xor_b32 v6, v6, v4
            v_lshl_add_u32 v{14+kp}, v6, 4, v7""")
        c += L(f"v_add_u32 v18, {CB + 8192}, v19")
        for k in range(5): c += L(f"v_add_u32 v{48+k}, {3*CSL}, v{14+k}")
        c.append(L("s_cmp_lt_u32 s16, 4\ns_cselect_b32 s4, 6, 24"))
        c += L(f"""s_lshl_b32 s3, s17, 2
        s_add_u32 s3, s3, s18
        s_mul_i32 s3, s3, s4
        v_add_u32 v54, s3, v2
        v_lshlrev_b32 v54, 7, v54
        v_mov_b32 v4, 0x7fff0000
        v_cmp_gt_u32 vcc, s4, v2
        s_lshl_b32 s101, s4, 14
        s_mul_i32 s100, s101, 12
        v_cndmask_b32 v54, v4, v54, vcc
        s_and_b32 s3, s16, 3
        s_mul_i32 s100, s100, s3""")
        return c
    def dmaK(self, base, tag):
        return [[I(f"s_add_u32 m0, s56, {base}")], [I(f"buffer_load_dwordx4 v10, s[28:31], s58 offen lds", tag=tag)],
                [I(f"buffer_load_dwordx4 v11, s[28:31], s58 offen offset:1024 lds", tag=tag)], [I("s_add_u32 s58, s58, 8192")]]
    def dmaV(self, base, tag):
        return [[I(f"s_add_u32 m0, s57, {base}")], [I(f"buffer_load_dwordx4 v12, s[32:35], s59 offen lds", tag=tag)],
                [I(f"buffer_load_dwordx4 v13, s[32:35], s59 offen offset:1056 lds", tag=tag)], [I("s_add_u32 s59, s59, 8192")]]
    def dmaC(self, n):
        G = []
        if n + 1 <= 15: G += self.dmaK(CB + cs(n) * CSL, f"c{n}")
        return G + self.dmaV(CB + cs(n) * CSL, f"c{n}")
    def rdK(self, n):
        sl = cs(n); return self.readK((sl % 3) * CSL, self.KB, ar=14 if sl < 3 else 48)
    def rdV(self, n):
        sl = cs(n); return self.readV((sl % 3) * CSL, ar=18 if sl < 3 else 52)
    def pf2(self):
        return [[I("buffer_load_dword v53, v54, s[40:43], s100 offen")], [I("s_add_u32 s100, s100, s101")]]
    def qepi(self):
        qacc = self.qacc
        rd = []; ops = []
        for kp in range(4):
            T = 40 if kp % 2 == 0 else 56
            rd.append([I(f"ds_read_b128 {r4('v', T)}, v{20+kp}"), I(f"ds_read_b128 {r4('v', T+4)}, v{20+kp} offset:64")])
            L_ = []
            for q in range(4):
                for tl in range(2):
                    for e in range(4): L_.append(I(f"v_fmac_f32 v{qacc(2*kp+tl, q)+e}, v{T+4*tl+e}, v{48+2*q}"))
                for tl in range(2):
                    for e in range(4): L_.append(I(f"v_mul_f32 v{qacc(2*kp+tl, q)+e}, v{qacc(2*kp+tl, q)+e}, v{49+2*q}"))
                F = QF + (q * 4 + kp) * 4
                for tl in range(2):
                    for h in range(2):
                        r = qacc(2 * kp + tl, q) + 2 * h
                        L_.append(I(f"v_cvt_pk_bf16_f32 v{F+2*tl+h}, v{r}, v{r+1}"))
            for q in range(4):
                F = QF + (q * 4 + kp) * 4
                L_.append(I(f"v_permlane16_swap_b32 v{F}, v{F+2}")); L_.append(I(f"v_permlane16_swap_b32 v{F+1}, v{F+3}"))
            ops.append(L_)
        return rd, ops

    def partA(self):
        o = self.o; p = Prog(); dmaM = self.dmaM
        p(f"""
        s_and_b32 s3, s18, 1
        s_lshl_b32 s3, s3, 7
        v_add_u32 v24, s3, v19
        v_add_u32 v25, {2*MSL}, v24
        v_add_u32 v26, {4*MSL}, v24
        s_lshr_b32 s3, s18, 1
        s_mul_i32 s3, s3, 3072
        s_add_u32 s3, s3, 16896
        v_add_u32 v33, s3, v3
        v_add_u32 v34, {2*MSL}, v33
        v_add_u32 v35, {4*MSL}, v33
        """)
        def mA(s, f): return 28 * s + 4 * f
        def mB(s, d): return 28 * s + 16 + 4 * d
        def macc(f, d): return 192 + (f * 3 + d) * 4
        def mreads(t):
            s = t % 2; n = t // 2; kk = t % 2; sl = n % NM; off = (sl & 1) * MSL
            R = [I(f"ds_read_b128 {r4('a', mB(s,d))}, v{33+sl//2} offset:{off + kk*6144 + 1024*d}") for d in range(3)]
            for f in range(4):
                for h in range(2):
                    R.append(I(f"ds_read_b64_tr_b16 {r2('a', mA(s,f)+2*h)}, v{24+sl//2} offset:{off + kk*8448 + 32*f + 512*h}"))
            return R
        p(W(vm=["m0", "st"], lg=0)); p("s_barrier")
        rd, ops = self.qepi()
        p(mreads(0)); p(rd[0]); p(rd[1])
        p(flat(dmaM(3)))
        p(W(lg=0))
        bg = ops[0] + rd[2] + ops[1] + rd[3] + ops[2] + ops[3] + self.core_setup()
        BGN = o.get("bgn", 16)
        for t in range(64):
            n = t // 2; kk = t % 2; s = t % 2
            p.mark("B10")
            M = []
            for f in range(4):
                for d in range(3):
                    a = r4('a', macc(f, d))
                    M.append(I(f"{MF} {a}, {r4('a', mA(s,f))}, {r4('a', mB(s,d))}, {r4('a', 240+4*f) if t == 0 else a}"))
            g = Gaps(12)
            if t < 63:
                if kk == 0: g.tail(11, [W(vm=(f"m{n+1}" if n + 1 < 32 else None), lg=0), I("s_barrier")])
                else: g.tail(11, [W(lg=0)])
            D = []
            if t == 0: D = dmaM(4)
            else:
                m = (t - 1) // 2
                if m + 5 < 32:
                    G = dmaM(m + 5); D = G[:6] if kk == 1 else G[6:]
            if t == 55: D = self.dmaK(K0B, "k0")
            if t == 57: D = self.dmaC(0)
            if t == 59: D = self.dmaC(1)
            if t == 60: D = self.dmaC(2)
            if t == 61: D = self.dmaC(3)
            if t < 63: g.spread(mreads(t + 1), 0, 7)
            if D: g.spread(D, 0, 10)
            if bg:
                g.cap = 3
                take = bg[:BGN]
                rest = g.fill(take, 0, 10)
                bg = rest + bg[BGN:]
            if t % 2 == 0: self.tr(p, "M", t // 2)
            p(g.weave(M))
            if t == 54: assert not bg
        p.mark("B0")
        self.tr(p, "M", 32); self.tr(p, "M", 33)
        self.stamp(p, 3)
        p(f"""
        s_lshl_b32 s3, s8, 2
        s_and_b32 s4, s18, 1
        s_lshl_b32 s4, s4, 1
        s_add_u32 s3, s3, s4
        s_mul_i32 s3, s3, 36
        s_mul_i32 s4, s9, 6
        s_add_u32 s3, s3, s4
        s_lshr_b32 s4, s18, 1
        s_mul_i32 s4, s4, 3
        s_add_u32 s3, s3, s4
        s_lshl_b32 s3, s3, 10
        s_add_u32 s3, s3, {WS_UF}
        v_add_u32 v4, s3, v3
        v_add_u32 v5, {36*1024}, v4
        s_mov_b32 s4, {f2u(-0.10294324):#x}
        v_mov_b32 v6, {f2u(-2.3022082):#x}
        """)
        for fp in range(2):
            for d in range(3):
                U = 64 + ((fp * 3 + d) % 2) * 32; T = U + 8; O = U + 16
                for e in range(8): p(f"v_accvgpr_read_b32 v{U+e}, a{macc(2*fp + e//4, d) + e%4}")
                for e in range(8): p(f"v_mul_f32 v{T+e}, v{U+e}, v{U+e}")
                for e in range(8): p(f"v_fma_f32 v{T+e}, v{T+e}, s4, v6")
                for e in range(8): p(f"v_mul_f32 v{T+e}, v{T+e}, v{U+e}")
                for e in range(8): p(f"v_exp_f32 v{T+e}, v{T+e}")
                for e in range(8): p(f"v_add_f32 v{T+e}, 1.0, v{T+e}")
                for e in range(8): p(f"v_rcp_f32 v{T+e}, v{T+e}")
                for e in range(8): p(f"v_mul_f32 v{T+e}, v{T+e}, v{U+e}")
                for e in range(4): p(f"v_cvt_pk_bf16_f32 v{O+e}, v{T+2*e}, v{T+2*e+1}")
                p(I(f"buffer_store_dwordx4 {r4('v', O)}, v{4+fp}, s[12:15], 0 offen offset:{1024*d} sc1", cond=True))
        p("s_branch K_core")
        return p
    def partB(self):
        p = Prog()
        p("K_skip:")
        p(W(vm=0, lg=0)); p("s_barrier")
        rd, ops = self.qepi()
        for kp in range(4):
            p(rd[kp]); p(W(lg=0)); p(ops[kp][:-8]); p("s_nop 1"); p(ops[kp][-8:])
        if self.o.get("pfskip"):
            p(f"""
            s_lshr_b32 s4, s42, 2
            s_and_b32 s3, s16, 3
            s_mul_i32 s6, s3, s4
            s_add_u32 s7, s6, s4
            s_sub_u32 s3, s17, 27
            s_lshl_b32 s3, s3, 2
            s_add_u32 s3, s3, s18
            s_lshl_b32 s3, s3, 13
            s_add_u32 s6, s6, s3
            v_lshlrev_b32 v4, 7, v2
            K_pfl:
            buffer_load_dword v5, v4, s[40:43], s6 offen
            s_add_u32 s6, s6, {20*8192}
            s_cmp_lt_u32 s6, s7
            s_cbranch_scc1 K_pfl
            s_waitcnt vmcnt(0)
            """)
        p(self.core_setup())
        p(flat(self.dmaK(K0B, "k0") + self.dmaC(0) + self.dmaC(1) + self.dmaC(2) + self.dmaC(3)))
        self.stamp(p, 3)
        return p

    KB, VB, MN, LA = 128, 160, 160, 176
    def S(self, b): return 64 + 32 * b
    def P(self, b): return 128 + 16 * b
    def readK(self, off, base, ar=14):
        return [I(f"ds_read_b128 {r4('a', base+(kt*4+ks)*4)}, v{ar+ks} offset:{off+kt*4096}") for kt in range(2) for ks in range(4)]
    def readV(self, off, ar=18):
        return [I(f"ds_read_b64_tr_b16 {r2('a', self.VB+dt*4+2*h)}, v{ar} offset:{off+dt*32+h*512}") for dt in range(8) for h in range(2)]
    def QK(self, b, kbase, zero):
        M = []
        for kt in range(2):
            for ks in range(4):
                for qt in range(4):
                    d = self.S(b) + (kt * 4 + qt) * 4
                    c = ("0" if zero else r4('v', self.MN + 4 * qt)) if ks == 0 else r4('v', d)
                    M.append(I(f"{MF} {r4('v', d)}, {r4('a', kbase+(kt*4+ks)*4)}, {r4('v', QF+(qt*4+ks)*4)}, {c}"))
        return M
    def PV(self, b, zero, nm):
        M = []
        for qt in range(nm):
            d = r4('v', self.LA + 4 + 4 * qt)
            M.append(I(f"{MF} {d}, v[36:39], {r4('v', self.P(b)+qt*4)}, {'0' if zero else d}"))
        for dt in range(8):
            for qt in range(4):
                d = r4('a', (dt * 4 + qt) * 4)
                M.append(I(f"{MF} {d}, {r4('a', self.VB+dt*4)}, {r4('v', self.P(b)+qt*4)}, {'0' if zero else d}"))
        return M
    def SM(self, b, h, nm):
        U = []; E = []; A = []; C = []
        for e in range(16):
            r = self.S(b) + 16 * h + e; qt = e // 4
            U.append(I(f"v_add_f32 v{r}, v{self.MN+4*qt}, v{r}")); E.append(I(f"v_exp_f32 v{r}, v{r}"))
            A.append(I(f"v_add_f32 v{self.LA+qt}, v{self.LA+qt}, v{r}") if qt >= nm else None)
            if e % 2: C.append(I(f"v_cvt_pk_bf16_f32 v{self.P(b)+qt*4+2*h+(e%4)//2}, v{r-1}, v{r}"))
        return U, E, A, C
    def phase(self, p, M, sm, reads, D, tail, carry, sub=False, defer=False, extra=None):
        n = len(M); g = Gaps(n)
        g.tail(n - 1, tail)
        eg = None
        if sm:
            U, E, A, C = sm
            eg = [(e * (n - 2)) // 16 for e in range(16)]
            for e in range(16): g.put(eg[e], E[e], force=True)
            if sub:
                g.pre.append(U[0])
                for e in range(1, 16): g.put(eg[e] - 1, U[e], force=True)
            for e in range(8): g.put(eg[2 * e + 1] + 1, C[e])
        if reads: g.spread(reads, 0, n - 7)
        if D: g.spread(D, 0, n - 3)
        for a in carry: g.put(0, a)
        out = []
        if sm:
            for e in range(16):
                if A[e] is None: continue
                q = eg[e] + 1
                while q < n and not g.fits(q, [A[e]]): q += 1
                if q < n: g.put(q, A[e], force=True)
                elif defer: out.append(A[e])
                else: g.put(eg[e] + 1, A[e])
        if extra: extra(g)
        p(g.weave(M))
        return out
    def iter(self, p, i, carry, Dq=None, Dp=None, pvtail=None, pvextra=None, pre_pv=None):
        nm = self.o.get("nm", 2); b = i % 2
        self.tr(p, "C", 2 * i + 1)
        if i >= 1:
            if i < 15:
                carry = self.phase(p, self.QK(1 - b, self.KB, False), self.SM(b, 1, nm), self.rdV(i), Dq or [],
                                   [W(vm=f"c{i+1}", lg=0), I("s_barrier")], carry, sub=(i == 1), defer=True)
            else:
                p(self.rdV(i)); U, E, A, C = self.SM(b, 1, nm); p(E); p(C); p([a for a in A if a])
                p(pre_pv or [W(lg=0)])
        cd = self.o.get("cd", 5)
        if cd == 5:
            D = [] if i + 5 > 15 else self.dmaC(i + 5)
            if i == 0: D = self.dmaC(4) + D
        else:
            D = self.dmaC(i + cd) if 4 <= i + cd <= 15 else []
        if i < 12 and self.o.get("pf2", 1): D = self.pf2() + D
        self.tr(p, "C", 2 * i + 2)
        carry = self.phase(p, self.PV(b, i == 0, nm), self.SM(1 - b, 0, nm) if i < 15 else None,
                           self.rdK(i + 1) if i + 2 <= 15 else [], D + (Dp or []), pvtail or [W(lg=0)], carry,
                           sub=(i == 0), extra=pvextra)
        if i == 15: self.tr(p, "C", 33); self.tr(p, "C", 34)
        return carry
    def maxops(self, b, run=False):
        mx = []
        for qt in range(4):
            r0 = self.S(b) + qt * 4; r1 = r0 + 16; t = 40 + qt
            if run: mx += L(f"v_max3_f32 v{t}, v{t}, v{r0}, v{r0+1}\nv_max3_f32 v{t}, v{t}, v{r0+2}, v{r0+3}\nv_max3_f32 v{t}, v{t}, v{r1}, v{r1+1}\nv_max3_f32 v{t}, v{t}, v{r1+2}, v{r1+3}")
            else: mx += L(f"v_max3_f32 v{t}, v{r0}, v{r0+1}, v{r0+2}\nv_max3_f32 v{t}, v{t}, v{r0+3}, v{r1}\nv_max3_f32 v{t}, v{t}, v{r1+1}, v{r1+2}\nv_max_f32 v{t}, v{t}, v{r1+3}")
        return mx
    def maxfin(self):
        mx = []
        for sw in ("v_permlane16_swap_b32", "v_permlane32_swap_b32"):
            for qt in range(4): mx += L(f"v_mov_b32 v{44+qt}, v{40+qt}")
            mx += L("s_nop 0")
            for qt in range(4): mx += L(f"{sw} v{40+qt}, v{44+qt}")
            for qt in range(4): mx += L(f"v_max_f32 v{40+qt}, v{40+qt}, v{44+qt}")
        for qt in range(4):
            for e in range(4): mx += L(f"v_sub_f32 v{self.MN+4*qt+e}, 0xc2000000, v{40+qt}")
        return mx
    def partC(self):
        p = Prog(); nm = self.o.get("nm", 2)
        p("K_core:")
        p(W(vm=["k0", "c0"])); p("s_barrier"); self.stamp(p, 4); self.tr(p, "C", 0)
        for ks in range(4): p(f"v_add_u32 v{4+ks}, {K0B-CB}, v{14+ks}")
        p(self.readK(0, self.VB, ar=4))
        for qt in range(4): p(f"v_mov_b32 v{self.LA+qt}, 0")
        p(W(lg=0))
        self.phase(p, self.QK(0, self.VB, True), None, self.rdK(0), [], [W(lg=0)], [])
        M = self.QK(1, self.KB, True); g = Gaps(32, cap=3)
        g.spread(self.rdV(0), 0, 15)
        g.spread(self.maxops(0) + self.maxfin(), 4, 31)
        p(g.weave(M))
        for h in range(2):
            U, E, A, C = self.SM(0, h, nm); p(U); p(E); p(C); p([a for a in A if a])
        p(W(vm="c1", lg=0)); p("s_barrier")
        carry = []
        for i in range(13):
            p.mark("B6")
            Dp = [[I("buffer_store_dword v9, v8, s[12:15], s45 offen sc1")]] if i == 3 else None
            carry = self.iter(p, i, carry, Dp=Dp)
        p.mark("B0")
        assert not carry
        p("s_cmp_ge_u32 s16, 4\ns_cbranch_scc1 K_U")
        return p
    def lfin(self, tagname):
        nm = self.o.get("nm", 2); LA = self.LA
        c = []
        qs = list(range(nm, 4))
        for sw in ("v_permlane16_swap_b32", "v_permlane32_swap_b32"):
            for qt in qs: c += L(f"v_mov_b32 v{44+qt}, v{LA+qt}")
            c += L("s_nop 1")
            for qt in qs: c += L(f"{sw} v{LA+qt}, v{44+qt}")
            for qt in qs: c += L(f"v_add_f32 v{LA+qt}, v{LA+qt}, v{44+qt}")
        for qt in range(nm): c += L(f"v_mov_b32 v{LA+qt}, v{LA+4+4*qt}")
        c += L(f"""v_add_f32 v45, v{LA}, v{LA+1}
        v_add_f32 v46, v{LA+2}, v{LA+3}
        v_add_f32 v44, v45, v46
        v_mov_b32 v45, {self.o.get('thr', 0x5f800000):#x}
        v_cmp_nlt_f32 s[6:7], v44, v45
        s_cmp_lg_u64 s[6:7], 0
        s_cbranch_scc0 FBR_{tagname}
        s_call_b64 s[6:7], K_fallback
        FBR_{tagname}:""")
        for qt in range(4): c += L(f"v_rcp_f32 v{40+qt}, v{LA+qt}")
        return c
    def oepi(self, dst, tmp):
        out = []; i = 0
        for k in range(4):
            c = []
            for qt in range(4):
                r = tmp(i); i += 1; d = dst(k, qt)
                for e in range(8): c.append(I(f"v_accvgpr_read_b32 v{r+e}, a{((2*k+e//4)*4+qt)*4+e%4}"))
                for e in range(8): c.append(I(f"v_mul_f32 v{r+e}, v{r+e}, v{40+qt}"))
                for j in range(4): c.append(I(f"v_cvt_pk_bf16_f32 v{d+j}, v{r+2*j}, v{r+2*j+1}"))
                c.append(I(f"buffer_store_dwordx4 {r4('v', d)}, v3, s[12:15], s11 offen offset:{1024*qt} sc1", tag="ost"))
            c.append(I(f"s_add_u32 s11, s11, {128*1024}"))
            out.append(c)
        return out
    OBASE = f"""
        s_lshl_b32 s11, s19, 19
        s_lshl_b32 s4, s5, 12
        s_add_u32 s11, s11, s4
        s_add_u32 s11, s11, {WS_OF}
        """
    def acc2(self, t, u): return r4('a', 128 + (t * 4 + u) * 4) if t < 8 else r4('v', 240 + 4 * u)

    def partO(self):
        o = self.o; p = Prog()
        ntw = " nt" if o.get("ntwo") else ""
        NW = 6
        p("s_mul_i32 s3, s18, 144\nv_add_u32 v7, s3, v2\ns_and_b32 s4, s17, 3\ns_mul_i32 s4, s4, 288")
        for i in range(3):
            p(f"""v_add_u32 v4, {64*i}, v7
            v_mul_u32_u24 v5, 3641, v4
            v_lshrrev_b32 v5, 16, v5
            v_mul_u32_u24 v6, 18, v5
            v_sub_u32 v6, v4, v6
            v_mul_u32_u24 v5, 1152, v5
            v_lshl_add_u32 v6, v6, 4, v5
            v_add_u32 v{20+i}, s4, v6
            s_sub_u32 s4, s4, 1024""")
        p(f"""
        v_lshrrev_b32 v4, 2, v2
        v_mul_u32_u24 v4, 288, v4
        v_and_b32 v5, 3, v2
        v_lshl_add_u32 v23, v5, 3, v4
        v_lshlrev_b32 v24, 2, v5
        s_mul_i32 s60, s18, 2304
        s_and_b32 s54, s44, 0xffffff80
        s_add_u32 s55, s54, 16
        s_lshl_b32 s63, s5, 12
        s_add_u32 s63, s63, {WS_OF}
        """)
        def hd(i):
            if i < 4: return [I(f"s_xor_b32 s3, s19, {i}")]
            return [I(f"s_and_b32 s3, s19, 0xf8"), I(f"s_add_u32 s3, s3, {i}")]
        def dmaW(t):
            G = []
            if t % 4 == 0: G += [[x] for x in hd(t // 4)] + [[I(f"s_mul_i32 s61, s3, {128*1152}")]]
            G += [[I(f"s_add_u32 m0, s60, {(t % NW)*9216}")],
                  [I(f"buffer_load_dwordx4 v20, s[40:43], s61 offen{ntw} lds", tag=f"g{t}")],
                  [I(f"buffer_load_dwordx4 v21, s[40:43], s61 offen offset:1024{ntw} lds", tag=f"g{t}")],
                  [I("s_mov_b64 exec, 0xffff"), I(f"buffer_load_dwordx4 v22, s[40:43], s61 offen offset:2048{ntw} lds", tag=f"g{t}"), I("s_mov_b64 exec, -1")]]
            if t % 4 != 3: G += [[I(f"s_add_u32 s61, s61, {32*1152}")]]
            return G
        def Bf(t, u): return r4('v', 168 + (t * 4 + u) * 4) if t < 4 else r4('a', ((t - 4) % 8) * 16 + 4 * u)
        def ldB(t):
            G = []
            if t % 4 == 0: G += [[I(x.t.replace("s3", "s4"))] for x in hd(t // 4)] + [[I("s_lshl_b32 s4, s4, 19")], [I("s_add_u32 s62, s4, s63")]]
            for u in range(4): G.append([I(f"buffer_load_dwordx4 {Bf(t,u)}, v3, s[12:15], s62 offen offset:{1024*u} sc1", tag=f"b{t}")])
            if t % 4 != 3: G += [[I(f"s_add_u32 s62, s62, {128*1024}")]]
            return G
        def A(s, t): return 64 + 36 * s + 4 * t
        def reads(t):
            return [I(f"ds_read_b64_tr_b16 {r2('v', A(t%2,tt)+2*h)}, v23 offset:{(t % NW)*9216+h*4608+32*tt}") for tt in range(9) for h in range(2)]
        c = self.iter(p, 13, [], Dp=dmaW(0) + dmaW(1))
        c = self.iter(p, 14, c, Dp=dmaW(2) + dmaW(3))
        c = self.iter(p, 15, c, Dp=dmaW(4) + dmaW(5), pre_pv=[W(vm=["g0", "g1"], lg=0), I("s_barrier")],
                      pvextra=lambda g: g.spread(reads(0), 2, 28))
        self.stamp(p, 5)
        p(self.OBASE); p("s_nop 2"); p(self.lfin("O"))
        for ch in self.oepi(lambda k, qt: 168 + (k * 4 + qt) * 4, lambda i: 136 + (i % 4) * 8): p(ch)
        p("s_barrier")
        self.stamp(p, 6)
        pl1, chk1 = self.poll("pO1", 12, 24, "s54", 25, 1)
        pl2, chk2 = self.poll("pO2", 12, 24, "s55", 25, 1)
        nb = 4
        for t in range(32):
            p.mark("B0")
            M = [I(f"{MF} {self.acc2(tt,u)}, {r4('v', A(t%2,tt))}, {Bf(t,u)}, {'0' if t == 0 else self.acc2(tt,u)}") for tt in range(9) for u in range(4)]
            g = Gaps(36)
            if t < 31:
                need = ([f"g{t+2}"] if t + 2 < 32 else []) + ([f"b{t+1}"] if t + 1 >= 4 else []) + (["ost"] if t == 1 else [])
                tl = [W(vm=need or None, lg=0)] + ([I("s_barrier")] if t + 2 < 32 else [])
                if t == 2: tl += chk1
                g.tail(35, tl)
            D = []
            if t == 2: D += [[I("buffer_store_dword v9, v8, s[12:15], s44 offen sc1")]]
            C2 = o.get("c2", 12)
            if t == C2 - 2: D += [[pl2]]
            if t == C2: D += [chk2]
            if t >= 3:
                lim = min(32, t + 8, 16 if t < C2 else 32)
                for _ in range(2):
                    if nb < lim: D += ldB(nb); nb += 1
            if t + 6 < 32: D += dmaW(t + 6)
            if t == 2: D += [[pl1]]
            if D: g.spread(D, 0, 33)
            if t < 31: g.spread(reads(t + 1), 0, 28)
            self.tr(p, "2", t)
            p(g.weave(M))
        for t in range(32, 38): self.tr(p, "2", t)
        p("s_branch K_tail")
        return p

    def partU(self):
        o = self.o; p = Prog()
        ntw = " nt" if o.get("ntw2") else ""
        hs = " sc1" if o.get("sc1dma", 1) else ""
        SB = 9216 + 16 * 1056
        p("K_U:")
        p(f"""
        s_and_b32 s3, s17, 3
        s_mul_i32 s3, s3, 9216
        s_mul_i32 s60, s18, 2304
        s_add_u32 s3, s3, s60
        v_add_u32 v20, s3, v3
        s_and_b32 s4, s16, 3
        s_mul_i32 s61, s4, {36*36*1024}
        s_add_u32 s61, s61, {WS_UF}
        s_mul_i32 s62, s4, {1152*4096}
        s_lshl_b32 s54, s4, 8
        s_add_u32 s54, s54, {WS_FU}
        v_min_u32 v31, 53, v2
        v_lshlrev_b32 v31, 2, v31
        v_and_b32 v4, 31, v2
        v_lshlrev_b32 v4, 4, v4
        v_lshrrev_b32 v5, 5, v2
        v_lshl_add_u32 v4, v5, 16, v4
        s_lshl_b32 s3, s18, 14
        s_lshr_b32 s4, s17, 2
        s_lshl_b32 s4, s4, 9
        s_add_u32 s3, s3, s4
        v_add_u32 v21, s3, v4
        v_add_u32 v22, {4096-1056}, v21
        v_add_u32 v23, {2*(4096-1056)}, v21
        v_add_u32 v24, {3*(4096-1056)}, v21
        s_mul_i32 s63, s18, {4*1056}
        s_add_u32 s63, s63, 9216
        v_lshrrev_b32 v4, 2, v2
        v_mul_u32_u24 v4, 1056, v4
        v_and_b32 v5, 3, v2
        v_lshl_add_u32 v4, v5, 3, v4
        s_lshl_b32 s3, s18, 7
        s_add_u32 s3, s3, 9216
        v_add_u32 v25, s3, v4
        v_add_u32 v26, {2*SB}, v25
        v_add_u32 v27, {4*SB}, v25
        v_mov_b32 v28, v3
        v_add_u32 v29, {2*SB}, v3
        v_add_u32 v30, {4*SB}, v3
        """)
        sl = lambda n: n % 6
        def dma(n):
            base = sl(n) * SB; tg = f"g{n}"
            G = [[I(f"s_add_u32 m0, s63, {base}")]]
            for u in range(4): G.append([I(f"buffer_load_dwordx4 v{21+u}, s[40:43], s62 offen offset:{1056*u}{ntw} lds", tag=tg)])
            G += [[I(f"s_add_u32 m0, s60, {base}")], [I(f"s_add_u32 s62, s62, {32*4096}")],
                  [I(f"buffer_load_dwordx4 v20, s[12:15], s61 offen{hs} lds", tag=tg)],
                  [I(f"buffer_load_dwordx4 v20, s[12:15], s61 offen offset:1024{hs} lds", tag=tg)],
                  [I("s_mov_b64 exec, 0xffff"), I(f"buffer_load_dwordx4 v20, s[12:15], s61 offen offset:2048{hs} lds", tag=tg), I("s_mov_b64 exec, -1")],
                  [I(f"s_add_u32 s61, s61, {36*1024}")]]
            return G
        SET = [64, 116]
        def A(s, t): return SET[s] + 4 * t
        def B(s, u): return SET[s] + 36 + 4 * u
        def reads(t):
            s = t % 2; slot = sl(t); off = (slot & 1) * SB
            R = [I(f"ds_read_b64_tr_b16 {r2('v', B(s,u)+2*h)}, v{25+slot//2} offset:{off+h*512+32*u}") for u in range(4) for h in range(2)]
            R += [I(f"ds_read_b128 {r4('v', A(s,tt))}, v{28+slot//2} offset:{off+tt*1024}") for tt in range(9)]
            return R
        pl, chk = self.poll("pU", 12, 31, "s54", 32, 1)
        p(pl)
        c = self.iter(p, 13, [], Dp=[chk] + dma(0))
        c = self.iter(p, 14, c, Dq=dma(1), Dp=dma(2))
        c = self.iter(p, 15, c, Dp=dma(3), pre_pv=[W(vm=["g0"], lg=0), I("s_barrier")], pvextra=lambda g: g.spread(reads(0), 2, 28))
        self.stamp(p, 5)
        p(self.OBASE); p("s_nop 2"); p(self.lfin("U"))
        p(W(vm="g1")); p("s_barrier")
        self.stamp(p, 6)
        bg = [x for ch in self.oepi(lambda k, qt: 216 + ((k * 4 + qt) % 4) * 4, lambda i: 184 + (i % 4) * 8) for x in ch]
        issued = 4; flag_at = None
        for t in range(36):
            p.mark("B6")
            M = [I(f"{MF} {self.acc2(tt,u)}, {r4('v', A(t%2,tt))}, {r4('v', B(t%2,u))}, {'0' if t == 0 else self.acc2(tt,u)}") for tt in range(9) for u in range(4)]
            g = Gaps(36)
            if t < 35:
                need = ([f"g{t+2}"] if t + 2 < 36 else []) + (["ost"] if flag_at == t + 1 else [])
                g.tail(35, [W(vm=need or None, lg=0)] + ([I("s_barrier")] if t + 2 < 36 else []))
            D = []
            if flag_at == t: D += [[I("buffer_store_dword v9, v8, s[12:15], s44 offen sc1")]]
            want = min(36, t + 7)
            nd = min(2 if t in (8, 10) else 1, want - issued)
            for _ in range(nd): D += dma(issued); issued += 1
            if D: g.spread(D, 0, 33)
            if t < 35: g.spread(reads(t + 1), 0, 28)
            if bg:
                bg = g.fill(bg, 0, 34)
                if not bg: flag_at = t + 3
            self.tr(p, "2", t)
            p(g.weave(M))
        self.tr(p, "2", 36); self.tr(p, "2", 37)
        p.mark("B0")
        return p

    def partT(self):
        p = Prog()
        p("K_tail:")
        self.stamp(p, 7); self.tr(p, "T", 0)
        p(f"""
        s_lshl_b32 s3, s17, 3
        s_lshl_b32 s4, s18, 1
        s_add_u32 s3, s3, s4
        s_lshl_b32 s3, s3, 3
        s_add_u32 s3, s3, s16
        s_mul_i32 s3, s3, 9216
        s_add_u32 s3, s3, {WS_PART}
        v_add_u32 v5, 4096, v3
        v_add_u32 v6, 8192, v3
        v_mov_b32 v4, v3
        """)
        i = 0
        for h in range(2):
            for c in range(9):
                pr = ((2*(c>>1), 2*h+(c&1)), (2*(c>>1)+1, 2*h+(c&1))) if c < 8 else ((8, 2*h), (8, 2*h+1))
                r = 64 + (i % 4) * 12; i += 1
                if c < 8:
                    for j, (t, u) in enumerate(pr):
                        for x in range(4): p(f"v_accvgpr_read_b32 v{r+4*j+x}, a{128+(t*4+u)*4+x}")
                    src = r
                else: src = 240 + 8 * h
                for j in range(4): p(f"v_cvt_pk_bf16_f32 v{r+8+j}, v{src+2*j}, v{src+2*j+1}")
                p(f"buffer_store_dwordx4 {r4('v', r+8)}, v{4+c//4}, s[12:15], s3 offen offset:{(c%4)*1024} sc1", tag="pst")
            if h == 0: p(f"s_add_u32 s3, s3, {8*9216}")
        self.tr(p, "T", 1)
        p(f"""
        s_lshr_b32 s56, s17, 2
        s_lshl_b32 s56, s56, 8
        s_lshl_b32 s4, s16, 5
        s_add_u32 s56, s56, s4
        s_and_b32 s57, s17, 3
        s_mul_i32 s57, s57, 288
        s_lshl_b32 s58, s17, 3
        s_add_u32 s58, s58, s16
        s_mul_i32 s58, s58, {8*9216}
        s_add_u32 s58, s58, {WS_PART}
        s_lshl_b32 s59, s17, 7
        s_add_u32 s59, s59, {WS_FP}
        s_lshl_b32 s4, s16, 2
        s_add_u32 s60, s59, s4
        v_bfe_u32 v28, v0, 2, 4
        v_add_u32 v29, s56, v28
        v_lshlrev_b32 v29, 1, v29
        """)
        p("global_load_ushort v10, v29, s[46:47]\nglobal_load_ushort v11, v29, s[46:47] offset:32", tag="b2")
        for i in range(3):
            p(f"""v_add_u32 v12, {256*i}, v0
            v_mul_u32_u24 v13, 3641, v12
            v_lshrrev_b32 v13, 16, v13
            v_mul_u32_u24 v14, 18, v13
            v_sub_u32 v14, v12, v14
            v_add_u32 v13, s56, v13
            v_mul_u32_u24 v13, 1152, v13
            v_lshl_add_u32 v{16+i}, v14, 4, v13""")
        p(f"""v_mov_b32 v12, 0x7fff0000
        v_cmp_lt_u32 vcc, 63, v0
        v_and_b32 v30, 7, v2
        v_lshlrev_b32 v30, 2, v30
        v_cndmask_b32 v18, v18, v12, vcc""")
        for i in range(3): p(f"buffer_load_dwordx4 {r4('v', 144+4*i)}, v{16+i}, s[20:23], s57 offen", tag="x")
        p(f"""
        v_lshlrev_b32 v4, 2, v0
        v_add_u32 v5, 4096, v4
        v_add_u32 v6, 8192, v4
        v_lshrrev_b32 v14, 6, v0
        v_and_b32 v15, 1, v0
        v_lshlrev_b32 v15, 2, v15
        v_lshl_add_u32 v15, v14, 3, v15
        v_mul_u32_u24 v14, 288, v28
        v_add_u32 v15, v15, v14
        v_bfe_u32 v14, v0, 1, 1
        v_lshl_add_u32 v12, v14, 5, v15
        v_mul_u32_u24 v14, {16*288}, v14
        v_add3_u32 v13, v14, v15, 64
        s_mov_b32 s62, 0x00003f80
        s_mov_b32 s63, 0x3f800000
        """)
        self.tr(p, "T", 2)
        p(W(vm="pst")); self.tr(p, "T", 3); p("s_barrier"); self.tr(p, "T", 4)
        p("buffer_store_dword v9, v8, s[12:15], s60 offen sc1")
        pl, chk = self.poll("pP", 12, 30, "s59", 31, 1)
        p(pl); p(chk); self.tr(p, "T", 5)
        PB = 160
        for part in range(8):
            if part == 7: p(W(vm="p0"))
            for c in range(9):
                p(f"buffer_load_dword v{PB+part*9+c}, v{4+c//4}, s[12:15], s58 offen offset:{(c%4)*1024} sc1", tag=f"p{part}")
            p("s_add_u32 s58, s58, 9216")
        p(f"""v_lshlrev_b32 v10, 16, v10
        v_lshlrev_b32 v11, 16, v11
        v_and_b32 v14, 2, v0
        v_cmp_eq_u32 vcc, 0, v14
        s_nop 1
        v_cndmask_b32 v19, v11, v10, vcc""")
        SA = 104; Y = 122
        self.tr(p, "T", 6)
        for part in range(8):
            p(W(vm=f"p{part}"))
            base = SA if part < 4 else Y
            for c in range(9):
                for h in range(2):
                    d = base + 2 * c + h
                    cin = "0" if part == 0 else (f"v{19 if c == 8 else 10 + (c & 1)}" if part == 4 else f"v{d}")
                    p(f"v_dot2_f32_bf16 v{d}, v{PB+part*9+c}, s{62+h}, {cin}")
        p("s_nop 2"); self.tr(p, "T", 7)
        T = 64
        for e in range(18): p(f"v_mul_f32 v{T+e}, {f2u(-1.4426950408889634):#x}, v{Y+e}")
        for e in range(18): p(f"v_exp_f32 v{T+e}, v{T+e}")
        for e in range(18): p(f"v_add_f32 v{T+e}, 1.0, v{T+e}")
        for e in range(18): p(f"v_rcp_f32 v{T+e}, v{T+e}")
        for e in range(18): p(f"v_mul_f32 v{SA+e}, v{SA+e}, v{Y+e}")
        for e in range(18): p(f"v_mul_f32 v{T+e}, v{T+e}, v{SA+e}")
        for c in range(9):
            p(f"v_cvt_pk_bf16_f32 v{T+c*2}, v{T+2*c}, v{T+2*c+1}")
            if c < 8: p(f"ds_write_b32 v12, v{T+2*c} offset:{(c&1)*16*288 + (c>>1)*64}")
            else: p(f"ds_write_b32 v13, v{T+2*c} offset:192")
        p("v_lshlrev_b32 v4, 4, v0\ns_waitcnt lgkmcnt(0)\ns_barrier")
        for i in range(3): p(f"ds_read_b128 {r4('v', 84+4*i)}, v4 offset:{4096*i}")
        p("s_waitcnt lgkmcnt(0)")
        for i in range(3):
            for k in range(4):
                x = 144 + 4 * i + k; t = 84 + 4 * i + k
                p(f"""v_lshlrev_b32 v96, 16, v{x}
                v_and_b32 v97, 0xffff0000, v{x}
                v_lshlrev_b32 v98, 16, v{t}
                v_and_b32 v99, 0xffff0000, v{t}
                v_add_f32 v96, v96, v98
                v_add_f32 v97, v97, v99
                v_cvt_pk_bf16_f32 v{t}, v96, v97""")
            p(f"buffer_store_dwordx4 {r4('v', 84+4*i)}, v{16+i}, s[48:51], s57 offen")
        if self.o.get("dbgts"):
            p("""s_waitcnt vmcnt(0)
            s_memrealtime s[66:67]
            s_waitcnt lgkmcnt(0)
            s_mov_b32 s54, 64
            s_mov_b32 s55, 0x20000
            v_mov_b32 v4, s64
            v_mov_b32 v5, s66
            s_lshl_b32 s3, s2, 3
            buffer_store_dwordx2 v[4:5], v8, s[52:55], s3 offen""")
        if self.o.get("trace"):
            self.tr(p, "T", 8); p("s_waitcnt vmcnt(0)"); self.tr(p, "T", 9); self.tr(p, "T", 10)
            p(f"s_lshl_b32 s3, s2, 10\ns_add_u32 s3, s3, {WS_TS}\nv_lshlrev_b32 v4, 2, v0\nbuffer_store_dword v1, v4, s[12:15], s3 offen")
        if self.ts:
            p("s_waitcnt vmcnt(0)"); self.stamp(p, 8)
            p(f"s_waitcnt lgkmcnt(0)\ns_mul_i32 s3, s2, {16*NST}\ns_add_u32 s3, s3, {WS_TS}")
            for i in range(NST):
                for e in range(4): p(f"v_mov_b32 v{4+e}, s{64+4*i+e}")
                p(f"buffer_store_dwordx4 v[4:7], v8, s[12:15], s3 offen offset:{16*i}\ns_nop 1")
        p("s_endpgm")
        return p

    def partF(self):
        nm = self.o.get("nm", 2); LA = self.LA
        p = Prog()
        FB = FBB
        p(f"""
        K_fallback:
        s_waitcnt vmcnt(0) lgkmcnt(0)
        s_mul_i32 s56, s18, 8448
        s_add_u32 s56, s56, {FB}
        v_lshrrev_b32 v4, 4, v2
        v_and_b32 v5, 15, v2
        """)
        for q in range(4):
            p(f"""v_add_u32 v6, {4*q}, v4
            v_xor_b32 v7, v6, v5
            v_lshlrev_b32 v7, 4, v7
            v_lshl_add_u32 v{48+q}, v6, 8, v7""")
        p(f"""
        v_lshlrev_b32 v6, 11, v4
        v_lshl_add_u32 v52, v5, 4, v6
        s_sub_u32 s3, s56, {CB}
        v_add_u32 v53, s3, v14
        v_add_u32 v54, s3, v15
        v_add_u32 v55, s3, v16
        v_add_u32 v56, s3, v17
        v_add_u32 v57, s56, v19
        s_lshr_b32 s57, s19, 1
        s_lshl_b32 s57, s57, 19
        s_add_u32 s57, s57, {1536*256}
        """)
        def loadK():
            for q in range(8):
                p(f"s_add_u32 m0, s56, {1024*q}\ns_add_u32 s3, s58, {4096*(q//4)}\nbuffer_load_dwordx4 v{48+q%4}, s[28:31], s3 offen lds")
            p("s_waitcnt vmcnt(0)")
            p(self.readK(0, self.KB, ar=53)); p("s_waitcnt lgkmcnt(0)")
        for qt in range(4): p(f"v_mov_b32 v{40+qt}, 0xff800000")
        p("s_mov_b32 s58, s57\ns_mov_b32 s59, 16\nFB_l1:")
        loadK()
        p(self.QKf(True)); p("s_nop 7")
        p(self.maxf())
        p("s_add_u32 s58, s58, 8192\ns_sub_u32 s59, s59, 1\ns_cmp_lg_u32 s59, 0\ns_cbranch_scc1 FB_l1")
        p(self.maxfin())
        for qt in range(4): p(f"v_mov_b32 v{LA+qt}, 0")
        for i in range(128): p(f"v_accvgpr_write_b32 a{i}, 0")
        p("s_mov_b32 s58, s57\ns_mov_b32 s59, 16\nFB_l2:")
        loadK()
        p(self.QKf(False))
        for q in range(8):
            p(f"s_add_u32 m0, s56, {1056*q}\ns_add_u32 s3, s58, {256*q}\nbuffer_load_dwordx4 v52, s[32:35], s3 offen lds")
        SF = 116
        for e in range(32): p(f"v_exp_f32 v{SF+e}, v{SF+e}")
        for e in range(32): p(f"v_add_f32 v{LA+(e%16)//4}, v{LA+(e%16)//4}, v{SF+e}")
        PF = 148
        def pf(qt): return PF + 4 * qt if qt < 3 else 180
        for e in range(1, 32, 2):
            qt = (e % 16) // 4; h = e // 16
            p(f"v_cvt_pk_bf16_f32 v{pf(qt)+2*h+(e%4)//2}, v{SF+e-1}, v{SF+e}")
        p("s_waitcnt vmcnt(0)")
        p(self.readV(0, ar=57)); p("s_waitcnt lgkmcnt(0)")
        for dt in range(8):
            for qt in range(4):
                d = r4('a', (dt * 4 + qt) * 4)
                p(f"{MF} {d}, {r4('a', self.VB+dt*4)}, {r4('v', pf(qt))}, {d}")
        p("s_add_u32 s58, s58, 8192\ns_sub_u32 s59, s59, 1\ns_cmp_lg_u32 s59, 0\ns_cbranch_scc1 FB_l2")
        for sw in ("v_permlane16_swap_b32", "v_permlane32_swap_b32"):
            for qt in range(4): p(f"v_mov_b32 v{44+qt}, v{LA+qt}")
            p("s_nop 1")
            for qt in range(4): p(f"{sw} v{LA+qt}, v{44+qt}")
            for qt in range(4): p(f"v_add_f32 v{LA+qt}, v{LA+qt}, v{44+qt}")
        p("s_setpc_b64 s[6:7]")
        return p
    def QKf(self, zero):
        M = []
        for kt in range(2):
            for ks in range(4):
                for qt in range(4):
                    d = 116 + (kt * 4 + qt) * 4
                    c = ("0" if zero else r4('v', self.MN + 4 * qt)) if ks == 0 else r4('v', d)
                    M.append(I(f"{MF} {r4('v', d)}, {r4('a', self.KB+(kt*4+ks)*4)}, {r4('v', QF+(qt*4+ks)*4)}, {c}"))
        return M
    def maxf(self):
        mx = []
        for qt in range(4):
            r0 = 116 + qt * 4; r1 = r0 + 16; t = 40 + qt
            mx += L(f"v_max3_f32 v{t}, v{t}, v{r0}, v{r0+1}\nv_max3_f32 v{t}, v{t}, v{r0+2}, v{r0+3}\nv_max3_f32 v{t}, v{t}, v{r1}, v{r1+1}\nv_max3_f32 v{t}, v{t}, v{r1+2}, v{r1+3}")
        return mx

    def build(self):
        P0 = self.part0().s; PA = self.partA().s; PB = self.partB().s; PC = self.partC().s
        PO = self.partO().s; PU = self.partU().s; PT = self.partT().s; PF = self.partF().s
        seg = {}
        bad = 0
        for n1, x1 in (("A", PA), ("B", PB)):
            for n2, x2 in (("O", PO), ("U", PU)):
                parts = [("0", P0), (n1, x1), ("C", PC), (n2, x2), ("T", PT)]
                st = []
                for nme, x in parts: st += [I(f"SEG_{nme}:")] + x
                st = resolve(st)
                bad += check(st, n1 + n2)
                cur = None; d = {}
                for ins in st:
                    if ins.t.startswith("SEG_"): cur = ins.t[4:-1]; d[cur] = []
                    else: d[cur].append(ins)
                for k, v in d.items():
                    if k in seg: assert [x.t for x in seg[k]] == [x.t for x in v], f"segment {k} differs on path {n1}{n2}"
                    else: seg[k] = v
        bad += check(PF, "F")
        assert not bad
        body = []
        for k in "0ABCOUT": body += fold(seg[k], "s10", "K" + k)
        for _, sp in self.spins: body += sp
        body += PF
        return body

def build(fname, opts={}, ts=False):
    g = Gen(opts, ts)
    body = g.build()
    name = KNAME + "_kernel"
    out = ["; @launch grid=(256,1,1) block=(256,1,1) lds=163840", '.amdgcn_target "amdgcn-amd-amdhsa--gfx950"\n.text',
           kernel_header(name) + text(body) + "K_end:\n  s_endpgm", '.section .rodata,"a"', ".p2align 6",
           kernel_desc(name, 512, sgpr=102, accum=256).replace(".end_amdhsa_kernel", "  .amdhsa_float_denorm_mode_32 3\n.end_amdhsa_kernel")]
    open(fname, "w").write("\n".join(out) + "\n")

if __name__ == "__main__":
    build("v3.s"); build("v3_ts.s", ts=True); build("v3_fb.s", {"thr": 0x3f800000})
    for ph in "QMC2T": build(f"v3_tr{ph}.s", {"trace": ph})
    build("v3_cd3_trC.s", {"trace": "C", "cd": 3}); build("v3_cd2_trC.s", {"trace": "C", "cd": 2})
    build("v3_dbg.s", {"dbgts": 1})
    build("v3_sk_ts.s", {"pfskip": 1, "pf2": 0}, ts=True)
    build("v3_r2_trQ.s", {"trace": "Q", "pf1rows": 2}); build("v3_n_trQ.s", {"trace": "Q", "pf1": 0})
```

```python
import re
TRANS = ("v_exp", "v_rcp", "v_rsq", "v_log", "v_sqrt", "v_sin", "v_cos")

class I:
    __slots__ = ("t", "tag", "cond", "vm", "lg")
    def __init__(self, t, tag=None, cond=False, vm=None, lg=None):
        self.t = t.strip(); self.tag = tag; self.cond = cond; self.vm = vm; self.lg = lg
    def op(self): return self.t.split()[0] if self.t else ""
    def is_vm(self):
        o = self.op(); return o.startswith("buffer_") or o.startswith("global_")
    def is_ds(self): return self.op().startswith("ds_")
    def is_smem(self):
        o = self.op(); return o.startswith("s_load") or o.startswith("s_memtime") or o.startswith("s_memrealtime")

def W(vm=None, lg=None):
    return I("WAIT", vm=vm, lg=lg)

def L(x, tag=None):
    out = []
    for l in x.strip("\n").split("\n"):
        l = l.split(";")[0].strip()
        if l: out.append(I(l, tag))
    return out

class Prog:
    def __init__(self):
        self.s = []
    def __call__(self, x, tag=None):
        if isinstance(x, I): self.s.append(x)
        elif isinstance(x, str): self.s.extend(L(x, tag))
        else:
            for y in x: self(y, tag)
    def mark(self, name): self.s.append(I("MARK " + name))

def resolve(stream):
    vm = []; ds = []
    out = []
    retired = -1
    for ins in stream:
        if ins.t == "WAIT":
            parts = []
            if ins.vm is not None:
                if ins.vm == 0: n = 0; retired = len(vm) - 1
                else:
                    tags = ins.vm if isinstance(ins.vm, (list, tuple, set)) else [ins.vm]
                    for tg in tags: assert any(t == tg for t, c in vm), f"wait on unissued tag {tg}"
                    idx = max([i for i, (t, c) in enumerate(vm) if t in tags])
                    if idx <= retired: n = None
                    else:
                        n = min(63, sum(1 for t, c in vm[idx + 1:] if not c)); retired = idx
                if n is not None:
                    parts.append(f"vmcnt({n})")
            if ins.lg is not None:
                if ins.lg == 0: n = 0
                else:
                    tags = ins.lg if isinstance(ins.lg, (list, tuple, set)) else [ins.lg]
                    idx = max([i for i, t in enumerate(ds) if t in tags], default=None)
                    n = None if idx is None else min(15, len(ds) - idx - 1)
                if n is not None: parts.append(f"lgkmcnt({n})")
            if parts: out.append(I("s_waitcnt " + " ".join(parts)))
            continue
        if ins.is_vm(): vm.append((ins.tag, ins.cond))
        if ins.is_ds(): ds.append(ins.tag)
        out.append(ins)
    return out

def weave(M, slots):
    out = list(slots.get(-1, []))
    for i, m in enumerate(M):
        out.append(m); out.extend(slots.get(i, []))
    return out

def klass(ins):
    o = ins.op()
    if o == "WAIT" or o.startswith("s_") or o.endswith(":"): return 0
    if ins.is_vm() or ins.is_ds(): return 1
    return 2
def vcost(ins):
    if klass(ins) == 0: return 0
    return 2 if ins.op().startswith(TRANS + ('v_permlane',)) else 1

class Gaps:
    def __init__(self, n, cap=2):
        self.n = n; self.cap = cap
        self.it = [[[], [], [], []] for _ in range(n)]
        self.vu = [0] * n; self.su = [0] * n; self.lock = [False] * n
        self.pre = []
    def _cls(self, items):
        ks = [klass(x) for x in items if klass(x)]
        return ks[0] if ks else 0
    def _need(self, items):
        c = self._cls(items)
        if c == 0: return 0, len(items)
        v = sum(vcost(x) for x in items); ns = [x for x in items if klass(x) == 0 and not x.t.endswith(":")]
        lead = 1 if klass(items[0]) == 0 else 0
        return v + len(ns) - lead, lead
    def fits(self, p, items):
        if self.lock[p]: return False
        v, s = self._need(items)
        if s and self._cls(items) and (self.su[p] or self.it[p][1]): return False
        extra_s = max(0, self.su[p] + s - 1)
        return self.vu[p] + v + extra_s <= self.cap
    def put(self, g, items, force=False, lim=None):
        if isinstance(items, I): items = [items]
        g = max(0, min(g, self.n - 1)); p = g
        lim = self.n if lim is None else min(self.n, max(lim, g + 1))
        if not force:
            while p < lim and not self.fits(p, items): p += 1
            if p >= lim:
                cand = [q for q in range(g, lim) if not self.lock[q]] or [self.n - 1]
                p = min(cand, key=lambda q: self.vu[q] + max(0, self.su[q] - 1))
        v, s = self._need(items)
        self.vu[p] += v; self.su[p] += s
        self.it[p][self._cls(items)].extend(items)
        return p
    def tail(self, g, items, lock=True):
        self.it[g][3].extend(items)
        if lock: self.lock[g] = True
        else: self.su[g] += len(items)
    def spread(self, groups, lo, hi, after=None):
        n = len(groups); last = after
        for i, gr in enumerate(groups):
            if isinstance(gr, I): gr = [gr]
            g = lo + (i * (hi - lo + 1)) // n
            if last is not None:
                lp, lgr = last
                same_ok = self._cls(gr) >= self._cls(lgr) and "m0" not in lgr[-1].t and not (lgr[-1].op().startswith(TRANS))
                g = max(g, lp if same_ok else lp + 1)
                assert g < self.n, "ordered spread overflow"
            nxt = lo + ((i + 1) * (hi - lo + 1)) // n
            last = (self.put(g, gr, lim=min(hi + 2, nxt + 2)), gr)
        return last
    def fill(self, items, lo=0, hi=None, dense=False):
        hi = self.n - 1 if hi is None else hi
        p = lo; k = 0; last = None
        while k < len(items):
            gr = items[k] if isinstance(items[k], list) else [items[k]]
            if last is not None:
                lp, lgr = last
                same_ok = self._cls(gr) >= self._cls(lgr) and "m0" not in lgr[-1].t and (dense or not lgr[-1].op().startswith(TRANS))
                p = max(p, lp if same_ok else lp + 1)
            while p <= hi and not self.fits(p, gr): p += 1
            if p > hi: break
            self.put(p, gr, force=True); last = (p, gr); k += 1; self.lastfill = p
        return items[k:]
    def over(self): return sum(max(0, self.vu[p] + max(0, self.su[p] - 1) - 2) for p in range(self.n))
    def weave(self, M):
        assert len(M) == self.n
        out = list(self.pre)
        for i, m in enumerate(M):
            out.append(m)
            for c in range(4): out.extend(self.it[i][c])
        return out

def fold(stream, cnt_sreg, prefix):
    blocks = []; cur = []
    for ins in stream:
        if ins.op() == "MARK":
            blocks.append(cur); cur = [ins]
        else: cur.append(ins)
    blocks.append(cur)
    txt = ["\n".join(x.t for x in b if x.op() != "MARK") for b in blocks]
    per = [int(b[0].t.split()[1][1:]) if b and b[0].op() == "MARK" else 0 for b in blocks]
    out = []; i = 0; nl = 0
    while i < len(blocks):
        p = per[i]
        reps = 1
        if p:
            while i + (reps + 1) * p <= len(blocks) and all(txt[i + k] == txt[i + reps * p + k] for k in range(p)): reps += 1
        if reps >= 2:
            lab = f"{prefix}_L{nl}"; nl += 1
            out.append(I(f"s_mov_b32 {cnt_sreg}, {reps}")); out.append(I(f"{lab}:"))
            body = [x for k in range(p) for x in blocks[i + k] if x.op() != "MARK"]
            out.extend(body)
            out.extend(L(f"s_sub_u32 {cnt_sreg}, {cnt_sreg}, 1\ns_cmp_lg_u32 {cnt_sreg}, 0\ns_cbranch_scc1 {lab}"))
            i += reps * p
        else:
            out.extend(x for x in blocks[i] if x.op() != "MARK"); i += 1
    return out

_reg = re.compile(r"\b([vas])(?:\[(\d+):(\d+)\]|(\d+))(?![\w])")
def regs(s):
    r = set()
    for m in _reg.finditer(s):
        k = m.group(1)
        if m.group(2): r.update((k, i) for i in range(int(m.group(2)), int(m.group(3)) + 1))
        else: r.add((k, int(m.group(4))))
    if re.search(r"\bvcc\b", s): r.add(("s", "vcc"))
    if re.search(r"\bm0\b", s): r.add(("s", "m0"))
    if re.search(r"\bexec\b", s): r.add(("s", "exec"))
    return r
def split_ops(t):
    o = t.split(None, 1)
    if len(o) == 1: return o[0], []
    return o[0], [x.strip() for x in o[1].split(",")]
TRANS = ("v_exp", "v_rcp", "v_rsq", "v_log", "v_sqrt", "v_sin", "v_cos")
def info(ins):
    op, a = split_ops(ins.t)
    d = dict(op=op, kind="other", w=set(), r=set())
    if op.startswith("v_mfma"):
        d.update(kind="mfma", w=regs(a[0]), ab=regs(a[1]) | regs(a[2]), c=regs(a[3]), passes=4 if "16x16x32" in op else 8)
        d["r"] = d["ab"] | d["c"]
    elif op.startswith("v_"):
        d["kind"] = "valu"; d["trans"] = op.startswith(TRANS)
        d["w"] = regs(a[0]); d["r"] = set().union(*[regs(x) for x in a[1:]]) if len(a) > 1 else set()
        if op.startswith(("v_permlane16_swap", "v_permlane32_swap")): d["w"] |= regs(a[1]); d["r"] |= regs(a[0]); d["perm"] = True
        if op.startswith(("v_fmac", "v_dot2c")): d["r"] |= regs(a[0])
        if op.startswith(("v_add_co", "v_addc_co", "v_sub_co")): d["w"] |= regs(a[1])
        if "dpp" in op or "row_" in ins.t or "quad_perm" in ins.t: d["dpp"] = True; d["r"] |= regs(a[0])
        if op.startswith(("v_readfirstlane", "v_readlane")): d["rl"] = True
    elif op.startswith("ds_"):
        d["kind"] = "ds"
        if "read" in op or "bpermute" in op: d["w"] = regs(a[0]); d["r"] = set().union(*[regs(x) for x in a[1:]])
        else: d["r"] = set().union(*[regs(x) for x in a])
    elif op.startswith(("buffer_", "global_")):
        d["kind"] = "vm"
        if " lds" in ins.t or "_lds_" in op: d["r"] = regs(ins.t) | {("s", "m0")}; d["dma"] = True
        elif "load" in op: d["w"] = regs(a[0]); d["r"] = set().union(*[regs(x) for x in a[1:]])
        else:
            d["r"] = regs(ins.t)
            if "x4" in op or "x3" in op: d["wide"] = regs(a[0] if op.startswith("buffer_") else a[1])
    elif op.startswith("s_"):
        d["kind"] = "salu"
        if a and not op.startswith(("s_cmp", "s_cbranch", "s_branch", "s_waitcnt", "s_nop", "s_barrier", "s_setprio", "s_sleep")):
            d["w"] = regs(a[0]); d["r"] = set().union(*[regs(x) for x in a[1:]]) if len(a) > 1 else set()
    d["ws"] = (int(a[0]) + 1) if op == "s_nop" else (0 if (op.endswith(":") or op == "MARK") else 1)
    return d
def check(stream, name=""):
    inf = [info(x) for x in stream]
    bad = 0
    for j, c in enumerate(inf):
        if c["ws"] == 0: continue
        dist = 0
        for i in range(j - 1, max(-1, j - 24), -1):
            p = inf[i]
            need = 0; why = ""
            def upd(n, w):
                nonlocal need, why
                if n > need: need, why = n, w
            if p["kind"] == "mfma":
                big = 8 if p["passes"] == 4 else 12
                if c["kind"] in ("valu", "ds", "vm") and (p["w"] & (c["r"] | c["w"])): upd(big, "mfmaD->use")
                if c["kind"] == "mfma":
                    if p["w"] & c["ab"]: upd(big, "mfmaD->AB")
                    if (p["w"] & c["c"]) and p["w"] != c["c"]: upd(big - 2, "mfmaD->C partial")
                if c["kind"] == "valu" and (p["c"] & c["w"]): upd(3 if p["passes"] == 4 else 7, "mfmaC WAR")
            if p["kind"] == "valu":
                vw = {x for x in p["w"] if x[0] != "s"}; sw = {x for x in p["w"] if x[0] == "s"}
                if c["kind"] == "mfma" and (vw & c["r"]): upd(2, "valu->mfma")
                if c["kind"] == "valu":
                    if p.get("trans") and (vw & c["r"]): upd(1, "trans->valu")
                    if (c.get("perm") or c.get("dpp")) and (vw & c["r"]): upd(2, "valu->perm/dpp")
                    if c.get("rl") and (vw & c["r"]): upd(1, "valu->readlane")
                    if sw & c["r"]: upd(2, "valu sgpr->valu")
                if c["kind"] == "vm" and (sw & c["r"]): upd(5, "valu sgpr->vmem")
            if p["kind"] == "salu" and ("s", "m0") in p["w"] and c.get("dma"): upd(1, "m0->dma")
            if p["kind"] == "vm" and p.get("wide") and c["kind"] == "valu" and (p["wide"] & c["w"]): upd(2, "store data WAR")
            if need > dist:
                print(f"HAZARD[{name}] {why}: need {need} have {dist}: '{stream[i].t}' -> '{stream[j].t}'"); bad += 1
            dist += p["ws"]
            if dist > 12: break
    return bad

def text(stream):
    return "\n".join((x.t if x.t.endswith(":") else "  " + x.t) for x in stream if x.op() != "MARK") + "\n"
```

```python
import sys, struct
from fw2 import *
from asmlib import kernel_header, kernel_desc, KNAME

WS_OF = 0
WS_UF = 16 << 20
WS_HF = 22 << 20
WS_ST = 25 << 20
WS_FO = WS_ST + 65536
WS_FU = WS_FO + 4096
WS_FP = WS_FU + 4096
WS_PART = 26 << 20
WS_TS = 60 << 20
WS_SIZE = 64 << 20
MF = "v_mfma_f32_16x16x32_bf16"
def f2u(x): return struct.unpack("<I", struct.pack("<f", x))[0]
CS_Q = f2u(128 ** -0.5 * 1.4426950408889634)
def r4(k, i): return f"{k}[{i}:{i+3}]"
def r2(k, i): return f"{k}[{i}:{i+1}]"
def srd(d, lo, nbytes): return f"s_mov_b32 s{d}, s{lo}\ns_mov_b32 s{d+1}, s{lo+1}\ns_mov_b32 s{d+2}, {nbytes}\ns_mov_b32 s{d+3}, 0x20000"
def flat(G):
    out = []
    for g in G:
        out.extend(g)
        if "m0" in g[-1].t: out.append(I("s_nop 0"))
    return out

XS = 32768; WB = 98304; WSL = 8448
HSB = 148992; CSB = 158208
MSL = 29184; NM = 4
TOP = 104448; LOW = 53760; FBB = 104448
KA = 116736; VA = 133120; K0B = 150016
NI = 9
T0 = 64 - 6 * NI
def kblk(n):
    if n == 0 or n == 15: return K0B
    if n <= NI + 3: return KA + (n % 2) * 8192
    return LOW + (n - 12) * 8448
def vblk(n):
    if n <= NI + 1 or n >= 14: return VA + (n % 2) * 8448
    if n == 13: return TOP
    return LOW + (n - 7) * 8448
QF = 192
MIX = 1
NST = 7

class Gen:
    def __init__(self, opts, ts):
        self.o = opts; self.ts = ts; self.spins = []
    def tr(self, p, ph, idx):
        if self.o.get("trace") != ph or idx > 63: return
        if idx > 0: p(f"s_waitcnt lgkmcnt(0)\nv_writelane_b32 v1, s96, {idx-1}")
        p("s_memtime s[96:97]")
        self.lasttr = idx
    def stamp(self, p, i):
        if self.ts: p(f"s_memtime s[{64+4*i}:{65+4*i}]\ns_memrealtime s[{66+4*i}:{67+4*i}]")
    def poll(self, name, srdn, vaddr, soff, vdst, expect):
        cmpop = "v_cmp_gt_u32"
        ld = f"buffer_load_dword v{vdst}, v{vaddr}, s[{srdn}:{srdn+3}], {soff} offen sc1"
        chk = [W(vm=name), I(f"{cmpop} s[6:7], {expect}, v{vdst}"), I("s_cmp_lg_u64 s[6:7], 0"), I(f"s_cbranch_scc1 SP_{name}"), I(f"RT_{name}:")]
        if name not in [s[0] for s in self.spins]:
            self.spins.append((name, L(f"""SP_{name}:
            s_mov_b32 s98, 0x80000
            SQ_{name}:
            {ld}
            s_sub_u32 s98, s98, 1
            s_cbranch_scc1 RT_{name}
            s_waitcnt vmcnt(0)
            {cmpop} s[6:7], {expect}, v{vdst}
            s_cmp_lg_u64 s[6:7], 0
            s_cbranch_scc1 SQ_{name}
            s_branch RT_{name}""")))
        return I(ld, tag=name), chk

    def part0(self):
        o = self.o; p = Prog()
        p("s_cmp_ge_u32 s2, 256\ns_cbranch_scc1 K_end")
        self.stamp(p, 0)
        if o.get("dbgts"): p("s_memrealtime s[64:65]")
        p(f"""
        s_load_dwordx8 s[20:27], s[0:1], 0
        s_load_dwordx2 s[40:41], s[0:1], 32
        s_load_dwordx4 s[36:39], s[0:1], 48
        s_load_dwordx8 s[44:51], s[0:1], 64
        s_load_dwordx2 s[12:13], s[0:1], 96
        s_getpc_b64 s[10:11]
        K_pc:
        s_lshr_b32 s63, s2, 3
        s_lshl_b32 s3, s63, 12
        v_lshl_add_u32 v4, v0, 4, s3
        v_min_u32 v4, K_end - K_pc - 16, v4
        global_load_dwordx4 v[240:243], v4, s[10:11]
        """)
        self.tr(p, "A", 0)
        p(f"""
        v_and_b32 v2, 63, v0
        v_lshrrev_b32 v3, 6, v0
        s_and_b32 s16, s2, 3
        v_readfirstlane_b32 s18, v3
        s_bfe_u32 s4, s2, 0x10002
        s_lshl1_add_u32 s62, s16, s4
        s_and_b32 s3, s63, 4
        s_add_u32 s16, s16, s3
        s_lshr_b32 s17, s63, 3
        s_lshl2_add_u32 s17, s4, s17
        s_and_b32 s3, s63, 3
        s_lshl2_add_u32 s17, s17, s3
        s_and_b32 s19, s16, 3
        s_lshl_b32 s19, s19, 3
        s_lshr_b32 s3, s16, 2
        s_lshl_b32 s3, s3, 2
        s_add_u32 s19, s19, s3
        s_and_b32 s3, s17, 3
        s_add_u32 s19, s19, s3
        s_lshr_b32 s5, s17, 2
        s_lshl_b32 s5, s5, 2
        s_add_u32 s5, s5, s18
        v_lshlrev_b32 v3, 4, v2
        v_lshrrev_b32 v4, 3, v2
        v_and_b32 v5, 7, v2
        v_lshrrev_b32 v6, 1, v4
        v_xor_b32 v6, v6, v5
        v_mul_u32_u24 v4, 1152, v4
        s_mul_i32 s3, s5, {64*1152}
        v_add_u32 v4, s3, v4
        v_lshl_add_u32 v10, v6, 4, v4
        v_xor_b32 v6, 4, v6
        v_lshl_add_u32 v11, v6, 4, v4
        v_add_u32 v11, {8*1152-1024}, v11
        """)
        for q in range(2, 8):
            p(f"v_add_u32 v{10+q}, {(q & ~1)*8*1152 - ((q & 3) - (q & 1))*1024}, v{10+(q&1)}")
        p(f"""
        v_lshrrev_b32 v4, 4, v2
        v_and_b32 v5, 1, v4
        v_lshlrev_b32 v5, 2, v5
        v_lshrrev_b32 v4, 1, v4
        v_lshl_add_u32 v4, v4, 4, v5
        s_and_b32 s3, s18, 1
        s_lshl_b32 s3, s3, 1
        s_lshr_b32 s4, s18, 1
        s_lshl_b32 s4, s4, 3
        s_add_u32 s3, s3, s4
        v_add_u32 v4, s3, v4
        v_lshlrev_b32 v4, 13, v4
        v_and_b32 v5, 15, v2
        v_lshl_add_u32 v4, v5, 4, v4
        s_lshl_b32 s3, s19, 8
        v_add_u32 v18, s3, v4
        v_add_u32 v19, {8192-1056}, v18
        s_lshl_b32 s56, s18, 13
        s_mul_i32 s57, s18, {2*1056}
        s_mov_b32 s58, 0
        s_mov_b32 s59, 0
        v_and_b32 v196, 31, v0
        v_lshrrev_b32 v197, 5, v0
        v_and_b32 v198, 3, v197
        v_lshrrev_b32 v199, 2, v197
        v_lshl_add_u32 v198, v199, 4, v198
        s_lshr_b32 s3, s2, 2
        s_lshl_b32 s3, s3, 5
        s_and_b32 s4, s2, 3
        s_lshl_b32 s4, s4, 2
        s_add_u32 s3, s3, s4
        v_add_u32 v198, s3, v198
        v_mul_u32_u24 v199, 1152, v198
        v_lshl_add_u32 v199, v196, 2, v199
        s_waitcnt lgkmcnt(0)
        {srd(28, 22, 16*2048*256)}
        {srd(32, 24, 16*2048*256)}
        {srd(24, 26, 576*8192)}
        s_mov_b32 s22, {2048*1152}
        s_mov_b32 s23, 0x20000
        """)
        self.tr(p, "A", 1)
        def dmaX(h):
            n = h // 2; half = h % 2
            G = [[I(f"s_add_u32 m0, s56, {(n % 3)*XS + half*4096}")]]
            for q in range(4):
                G.append([I(f"buffer_load_dwordx4 v{10+4*half+q}, s[20:23], s58 offen offset:{1024*q} lds", tag=f"x{n}")])
            if half: G.append([I("s_add_u32 s58, s58, 128")])
            return G
        def dmaW(t):
            return [[I(f"s_add_u32 m0, s57, {WB + (t % 6)*WSL}")],
                    [I(f"buffer_load_dwordx4 v18, s[24:27], s59 offen lds", tag=f"w{t}")],
                    [I(f"buffer_load_dwordx4 v19, s[24:27], s59 offen offset:1056 lds", tag=f"w{t}")],
                    [I(f"s_add_u32 s59, s59, {32*8192}")]]
        HR = 202
        for t in range(9): p(f"buffer_load_dword v{HR+t}, v199, s[20:23], 0 offen offset:{128*t}", tag="hx")
        p(flat(dmaW(0) + dmaX(0) + dmaX(1) + dmaW(1)))
        self.tr(p, "A", 2)
        p(f"""
        s_mov_b32 s14, {WS_SIZE}
        s_mov_b32 s15, 0x20000
        s_mov_b32 s100, s38
        s_mov_b32 s101, s39
        s_mov_b32 s38, {2048*9216}
        s_mov_b32 s39, 0x20000
        s_cmp_ge_u32 s63, 27
        s_cselect_b32 s6, s40, s12
        s_cselect_b32 s7, s41, s13
        s_cselect_b32 s92, {4096*1152}, s14
        s_mov_b32 s0, s44
        s_mov_b32 s1, s45
        s_cmp_lt_u32 s16, 4
        s_cselect_b32 s40, s40, s44
        s_cselect_b32 s41, s41, s45
        s_mov_b32 s3, {4608*4096}
        s_cselect_b32 s42, {4096*1152}, s3
        s_mov_b32 s43, 0x20000
        {srd(52, 50, 256)}
        s_mov_b32 s50, {2048*1152}
        s_mov_b32 s51, 0x20000
        v_mov_b32 v201, 0x7fff0000
        v_cmp_eq_u32 vcc, 0, v0
        v_mov_b32 v9, 1
        v_mov_b32 v7, 0
        v_cndmask_b32 v8, v201, v7, vcc
        s_min_u32 s3, s63, 26
        s_mul_i32 s4, s62, 27
        s_add_u32 s3, s3, s4
        s_mul_i32 s8, s3, 10923
        s_lshr_b32 s8, s8, 16
        s_mul_i32 s4, s8, 6
        s_sub_u32 s9, s3, s4
        s_lshr_b32 s4, s62, 1
        s_mul_i32 s4, s4, 10
        s_add_u32 s3, s3, s4
        s_lshl_b32 s3, s3, 2
        s_add_u32 s45, s3, {WS_FU}
        s_lshl_b32 s4, s2, 2
        s_add_u32 s4, s4, {WS_FU + 1024}
        s_cmp_ge_u32 s63, 27
        s_cselect_b32 s45, s4, s45
        s_cselect_b32 s94, 0x7f000000, 0
        s_lshr_b32 s3, s19, 3
        s_lshl_b32 s3, s3, 3
        s_lshr_b32 s4, s17, 2
        s_add_u32 s3, s3, s4
        s_lshl_b32 s3, s3, 5
        s_and_b32 s4, s19, 7
        s_add_u32 s3, s3, s4
        s_lshl_b32 s3, s3, 2
        s_add_u32 s44, s3, {WS_FO}
        s_lshl_b32 s95, s17, 5
        s_add_u32 s95, s95, s16
        s_lshl_b32 s95, s95, 2
        s_add_u32 s95, s95, {WS_FP}
        v_lshrrev_b32 v4, 4, v2
        v_bfe_u32 v5, v2, 2, 2
        v_and_b32 v6, 1, v4
        v_lshl_add_u32 v5, v6, 2, v5
        v_mul_u32_u24 v5, 1056, v5
        v_lshrrev_b32 v6, 1, v4
        v_lshl_add_u32 v5, v6, 9, v5
        v_and_b32 v6, 3, v2
        v_lshl_add_u32 v5, v6, 3, v5
        v_add_u32 v5, {WB}, v5
        """)
        for kp in range(4):
            p(f"s_xor_b32 s3, s18, {kp}\ns_lshl_b32 s3, s3, 6\nv_add_u32 v{20+kp}, s3, v5")
        p(f"""
        v_and_b32 v5, 15, v2
        v_lshrrev_b32 v6, 1, v5
        v_xor_b32 v6, v6, v4
        v_lshlrev_b32 v5, 7, v5
        v_add_u32 v5, s56, v5
        v_lshl_add_u32 v24, v6, 4, v5
        v_xor_b32 v6, 4, v6
        v_lshl_add_u32 v25, v6, 4, v5
        v_add_u32 v26, 65536, v24
        v_add_u32 v27, 65536, v25
        """)
        for e in range(4): p(f"v_mov_b32 v{36+e}, 0x3f803f80")
        p(f"""
        v_lshrrev_b32 v4, 4, v2
        v_lshlrev_b32 v4, 3, v4
        s_lshr_b32 s3, s18, 1
        s_lshl_b32 s3, s3, 5
        s_and_b32 s4, s18, 1
        s_lshl_b32 s4, s4, 2
        s_add_u32 s3, s3, s4
        v_add_u32 v4, s3, v4
        v_mul_u32_u24 v4, 9216, v4
        v_and_b32 v5, 15, v2
        v_lshl_add_u32 v4, v5, 4, v4
        s_lshl_b32 s3, s8, 8
        v_add_u32 v28, s3, v4
        v_add_u32 v29, {9216-1056}, v28
        v_add_u32 v30, {2*(9216-1056)}, v28
        v_add_u32 v31, {3*(9216-1056)}, v28
        s_lshr_b32 s3, s18, 1
        s_mul_i32 s3, s3, 36
        s_mul_i32 s4, s9, 6
        s_add_u32 s3, s3, s4
        s_and_b32 s4, s18, 1
        s_mul_i32 s4, s4, 3
        s_add_u32 s3, s3, s4
        s_lshl_b32 s3, s3, 10
        s_add_u32 s3, s3, {WS_HF}
        v_add_u32 v32, s3, v3
        s_cmp_lt_u32 s63, 27
        s_cbranch_scc1 K_nosk
        s_sub_u32 s3, s63, 27
        s_lshl_b32 s3, s3, 3
        s_add_u32 s3, s3, s62
        s_mul_i32 s4, s18, 40
        s_add_u32 s3, s3, s4
        s_lshl_b32 s4, s3, 12
        s_add_u32 s4, s4, {o.get("ahead", 8)*64*9216 + 4096}
        s_cmp_ge_u32 s3, 144
        s_cselect_b32 s4, 0x7f000000, s4
        v_cmp_gt_u32 vcc, 8, v2
        v_lshlrev_b32 v4, 7, v2
        v_add_u32 v5, s4, v4
        v_cndmask_b32 v5, v201, v5, vcc
        v_subrev_u32 v28, 4096, v5
        v_subrev_u32 v29, {4096+32}, v5
        v_subrev_u32 v30, {4096+64}, v5
        v_subrev_u32 v31, {4096+96}, v5
        s_sub_u32 s3, 159, s3
        s_cmp_ge_u32 s3, 24
        s_cselect_b32 s4, {2048*1152 - 24*3072}, 0
        s_cmp_ge_u32 s3, 48
        s_cselect_b32 s4, 0x7f000000, s4
        s_mul_i32 s3, s3, 3072
        s_add_u32 s4, s4, s3
        v_add_u32 v5, s4, v4
        v_cndmask_b32 v32, v201, v5, vcc
        K_nosk:
        s_mul_i32 s60, s18, {4*1056}
        s_mul_i32 s61, s18, 3072
        s_add_u32 s61, s61, 16896
        v_and_b32 v5, 15, v2
        s_lshl_b32 s3, s5, 9
        s_add_u32 s3, s3, {WS_ST}
        v_lshl_add_u32 v33, v5, 3, s3
        v_lshlrev_b32 v192, 2, v2
        s_lshl_b32 s3, s63, 2
        s_add_u32 s3, s3, s18
        s_mul_i32 s3, s3, 9216
        s_mul_i32 s4, s62, 1152
        s_add_u32 s3, s3, s4
        s_mov_b32 s62, 0
        s_mov_b32 s63, 0
        v_lshl_add_u32 v5, v2, 7, s3
        v_cmp_gt_u32 vcc, 9, v2
        s_mov_b32 s11, 0
        s_lshl_b32 s3, s8, 8
        v_cndmask_b32 v237, v201, v5, vcc
        s_and_b32 s4, s18, 1
        s_lshl_b32 s4, s4, 7
        s_add_u32 s3, s3, s4
        v_lshrrev_b32 v4, 4, v2
        v_lshl_add_u32 v233, v4, 3, s3
        v_lshlrev_b32 v200, 3, v198
        v_add_u32 v200, {WS_ST}, v200
        v_cmp_eq_u32 vcc, 0, v196
        v_mul_u32_u24 v195, 1152, v197
        v_lshl_add_u32 v195, v196, 2, v195
        v_cndmask_b32 v200, v201, v200, vcc
        v_add_u32 v195, {HSB}, v195
        v_bfe_u32 v4, v0, 2, 2
        v_mul_u32_u24 v4, 1152, v4
        v_and_b32 v5, 3, v0
        v_lshl_add_u32 v4, v5, 3, v4
        v_lshrrev_b32 v5, 4, v0
        v_lshl_add_u32 v194, v5, 5, v4
        v_add_u32 v194, {HSB}, v194
        v_and_b32 v4, 15, v0
        v_lshlrev_b32 v4, 4, v4
        v_lshl_add_u32 v4, v5, 10, v4
        s_lshr_b32 s3, s2, 2
        s_mul_i32 s3, s3, {36*1024}
        s_and_b32 s4, s2, 3
        s_lshl_b32 s4, s4, 8
        s_add_u32 s3, s3, s4
        s_add_u32 s3, s3, {WS_HF}
        v_add_u32 v238, s3, v4
        v_cmp_gt_u32 vcc, 64, v0
        v_add_u32 v239, 16384, v238
        v_add_u32 v211, 32768, v238
        v_cndmask_b32 v211, v201, v211, vcc
        s_and_b32 s93, s2, 0xfc
        """)
        self.tr(p, "A", 3)
        p(flat(dmaX(2) + dmaW(2) + dmaX(3) + dmaW(3)))
        self.tr(p, "A", 4)
        X = 212; h = [W(vm="hx")]
        def red32(vs, ts):
            c = []
            for n in (8, 4, 2, 1):
                c += L(f"s_nop {2 - len(vs)}")
                for v in vs: c += L(f"v_add_f32_dpp v{v}, v{v}, v{v} row_ror:{n} row_mask:0xf bank_mask:0xf")
            for v, t in zip(vs, ts): c += L(f"v_mov_b32 v{t}, v{v}")
            c += L("s_nop 1")
            for v, t in zip(vs, ts): c += L(f"v_permlane16_swap_b32 v{v}, v{t}")
            for v, t in zip(vs, ts): c += L(f"v_add_f32 v{v}, v{v}, v{t}")
            return c
        def unpack():
            c = []
            for t in range(9): c += L(f"v_lshlrev_b32 v{X+2*t}, 16, v{HR+t}\nv_and_b32 v{X+2*t+1}, 0xffff0000, v{HR+t}")
            return c
        xp = lambda t: r2('v', X + 2 * t)
        h += unpack() + L(f"v_pk_add_f32 v[230:231], {xp(0)}, {xp(1)}")
        for t in range(2, 9): h += L(f"v_pk_add_f32 v[230:231], v[230:231], {xp(t)}")
        h += L("v_add_f32 v234, v230, v231")
        h += red32([234], [230]) + L(f"v_mul_f32 v234, {f2u(-1.0/576):#x}, v234")
        for t in range(9): h += L(f"v_pk_add_f32 {xp(t)}, {xp(t)}, v[234:235] op_sel_hi:[1,0]")
        h += L(f"v_pk_mul_f32 v[230:231], {xp(0)}, {xp(0)}")
        for t in range(1, 9): h += L(f"v_pk_fma_f32 v[230:231], {xp(t)}, {xp(t)}, v[230:231]")
        h += L("v_add_f32 v231, v230, v231")
        h += red32([231], [230])
        h += L(f"v_mov_b32 v230, {f2u(1e-5):#x}\nv_fmac_f32 v230, {f2u(1.0/576):#x}, v231\nv_rsq_f32 v230, v230\ns_nop 0")
        for t in range(9): h += L(f"v_pk_mul_f32 {xp(t)}, {xp(t)}, v[230:231] op_sel_hi:[1,0]")
        for t in range(9): h += L(f"v_cvt_pk_bf16_f32 v{HR+t}, v{X+2*t}, v{X+2*t+1}")
        h += L(f"v_mul_f32 v235, {CS_Q:#x}, v230")
        h += unpack() + L(f"v_pk_add_f32 v[230:231], {xp(0)}, {xp(1)}\nv_pk_mul_f32 v[244:245], {xp(0)}, {xp(0)}\nv_pk_fma_f32 v[244:245], {xp(1)}, {xp(1)}, v[244:245]")
        for t in range(2, 9): h += L(f"v_pk_add_f32 v[230:231], v[230:231], {xp(t)}\nv_pk_fma_f32 v[244:245], {xp(t)}, {xp(t)}, v[244:245]")
        h += L("v_add_f32 v231, v230, v231\nv_add_f32 v232, v244, v245")
        h += red32([231, 232], [230, 193])
        h += L(f"""v_mul_f32 v231, {f2u(-1.0/576):#x}, v231
        v_mov_b32 v230, {f2u(1e-5):#x}
        v_fmac_f32 v230, {f2u(1.0/576):#x}, v232
        v_fma_f32 v230, -v231, v231, v230
        v_rsq_f32 v230, v230
        s_nop 0
        v_mul_f32 v231, v231, v230""")
        for t in range(9): h += L(f"v_pk_fma_f32 {xp(t)}, {xp(t)}, v[230:231], v[230:231] op_sel:[0,0,1] op_sel_hi:[1,0,1]")
        for t in range(9): h += L(f"v_cvt_pk_bf16_f32 v{HR+t}, v{X+2*t}, v{X+2*t+1}")
        for t in range(9): h += L(f"ds_write_b32 v195, v{HR+t} offset:{128*t}")
        p(h)
        hrd = [I(f"ds_read_b64_tr_b16 v[{244+4*i+2*k}:{245+4*i+2*k}], v194 offset:{512*i + 4608*k}") for i in range(3) for k in range(2)]
        hst = [[I(f"buffer_store_dwordx4 v[{244+4*i}:{247+4*i}], v{(238, 239, 211)[i]}, s[12:15], 0 offen sc1", tag="hst")] for i in range(3)]

        hst += [[I("buffer_store_dwordx2 v[234:235], v200, s[12:15], 0 offen sc1", tag="hst")]]
        hst += [[I(f"buffer_store_dword v7, v8, s[12:15], {sr} offen sc1", tag="hst")] for sr in ("s44", "s45", "s95")]
        if o.get("touch", 1): p("TOUCH_1:")
        p("ALIGN:")
        p(W(vm=["x0", "w0"], lg=0)); self.tr(p, "A", 5); p("s_barrier"); self.tr(p, "A", 6)
        self.stamp(p, 1)
        def qA(s, t): return 48 * s + 4 * t
        def qB(s, q): return 48 * s + 32 + 4 * q
        self.qacc = qacc = lambda t, q: 64 + (t * 4 + q) * 4
        CSA = 56
        def qreads(t):
            s = t % 2; n = t // 2; kk = t % 2; sl = n % 3
            R = [I(f"ds_read_b128 {r4('a', qB(s,q))}, v{24 + kk + (2 if sl == 2 else 0)} offset:{(sl & 1)*XS*(sl != 2) + 2048*q}") for q in range(4)]
            for tl in range(8):
                for hh in range(2):
                    R.append(I(f"ds_read_b64_tr_b16 {r2('a', qA(s,tl)+2*hh)}, v{20+tl//2} offset:{(t % 6)*WSL + (tl & 1)*32 + hh*256}"))
            return R
        p(qreads(0)); p(hrd)
        p(W(vm=["w1"], lg=0)); p("s_barrier"); self.tr(p, "A", 7); self.tr(p, "A", 8)
        hs = " sc1" if o.get("sc1dma", 1) else ""
        def dmaM(n):
            b = (n % NM) * MSL if n < NM else "s93"
            G = [[I(f"s_add_u32 m0, s60, {b}")]]
            for q in range(4): G.append([I(f"buffer_load_dwordx4 v{28+q}, s[36:39], s62 offen offset:{1056*q} lds", tag=f"m{n}")])
            G.append([I(f"s_add_u32 s62, s62, {64*9216}")])
            G.append([I(f"s_add_u32 m0, s61, {b}")])
            for q in range(3): G.append([I(f"buffer_load_dwordx4 v32, s[24:27], s63 offen offset:{1024*q}{hs} lds", tag=f"m{n}")])
            G.append([I(f"s_add_u32 s63, s63, {2*36*1024}")])
            return G
        self.dmaM = dmaM
        pl, chk = self.poll("pH", 52, 192, 0, 193, 4)
        nx = 4; nw = 4; bg = None
        CH = o.get("ch", 14)
        for t in range(18):
            s = t % 2; M = []
            for tl in range(8):
                for q in range(4):
                    d = r4('v', qacc(tl, q))
                    M.append(I(f"{MF} {d}, {r4('a', qA(s,tl))}, {r4('a', qB(s,q))}, {'0' if t == 0 else d}"))
                if tl < 2:
                    d = r4('v', CSA + 4 * tl)
                    M.append(I(f"{MF} {d}, {r4('a', qA(s,tl))}, v[36:39], {'0' if t == 0 else d}"))
            n = len(M); g = Gaps(n)
            if t < 17:
                need = [f"w{t+2}", f"x{(t+2)//2}"] if t + 2 < 18 else []
                if t == 2: need.append("hst")
                g.tail(n - 1, [W(vm=need or None, lg=0), I("s_barrier")])
            D = []
            for _ in range(2 if t == 0 else 1):
                if nx < 18 and nx <= t + 5: D += dmaX(nx); nx += 1
            for _ in range(2 if t in (1, 2) else 1):
                if nw < 18 and nw <= t + 6: D += dmaW(nw); nw += 1
            if t == 4: D += [[I(f"global_load_dwordx2 v[{40+2*f}:{41+2*f}], v233, s[100:101] offset:{32*f}")] for f in range(4)]
            if t == 0: D = hst + D
            if t == 3: D = [[I("buffer_atomic_add v9, v8, s[52:55], s93 offen sc1")]] + D
            if t == 12: D = [[I("s_mov_b32 s24, s6")], [I("s_mov_b32 s25, s7")], [I("s_mov_b32 s26, s92")]] + D
            if t == CH - 2: D += [[pl]]
            if t == 13: D += dmaM(0)[:6]
            if t == CH: D += [chk] + dmaM(0)[6:] + [[I(f"buffer_load_dwordx2 v[{48+2*q}:{49+2*q}], v33, s[12:15], 0 offen offset:{128*q} sc1", tag="st")] for q in range(4)]
            if t == 15: D += dmaM(1)
            if t == 17: D += dmaM(2) + self.dmaK(0)
            if t in o.get("pf1", (3, 6, 9, 12)): D = D + self.pf1("v237", "v236")
            if D: g.spread(D, 0, n - 3)
            if t < 17: g.spread(qreads(t + 1), 0, n - 8)
            if t == 13:
                bg = self.core_setup()
                for f in range(4):
                    bg += L(f"""v_lshlrev_b32 v4, 16, v{40+2*f}
                    v_and_b32 v5, 0xffff0000, v{40+2*f}
                    v_lshlrev_b32 v6, 16, v{41+2*f}
                    v_and_b32 v7, 0xffff0000, v{41+2*f}""")
                    for e in range(4): bg += L(f"v_accvgpr_write_b32 a{240+4*f+e}, v{4+e}")
            if 13 <= t <= 16: bg = g.fill(bg, 0, n - 2)
            if t == 17:
                fin = L(f"""
                v_lshrrev_b32 v4, 4, v2
                s_lshl_b32 s3, s18, 7
                s_add_u32 s3, s3, {CSB}
                v_lshl_add_u32 v20, v4, 4, s3
                v_xor_b32 v21, 128, v20
                v_xor_b32 v22, 256, v20
                v_xor_b32 v23, 384, v20
                s_and_b32 s3, s18, 1
                s_lshl_b32 s3, s3, 7
                v_add_u32 v26, s3, v19
                s_lshr_b32 s3, s18, 1
                s_mul_i32 s3, s3, 3072
                s_add_u32 s3, s3, 16896
                v_add_u32 v27, s3, v3
                v_mov_b32 v24, v26
                v_mov_b32 v25, v27
                s_mov_b32 s92, 0""")
                assert not g.fill(fin, 0, 18)
                g.put(20, I(f"ds_write_b128 v20, v[{CSA}:{CSA+3}]")); g.put(22, I(f"ds_write_b128 v20, v[{CSA+4}:{CSA+7}] offset:64"))
            self.tr(p, "Q", t)
            p(g.weave(M))
        assert not bg
        self.tr(p, "Q", 18); self.tr(p, "Q", 19)
        self.stamp(p, 2)
        return p

    def core_setup(self):
        c = L(f"""
        v_lshrrev_b32 v4, 4, v2
        s_lshl_b32 s3, s18, 3
        v_add_u32 v4, s3, v4
        v_and_b32 v5, 15, v2
        v_and_b32 v6, 15, v4
        v_xor_b32 v6, v5, v6
        v_lshlrev_b32 v6, 4, v6
        v_lshl_add_u32 v10, v4, 8, v6
        v_add_u32 v4, 4, v4
        v_and_b32 v6, 15, v4
        v_xor_b32 v6, v5, v6
        v_lshlrev_b32 v6, 4, v6
        v_lshl_add_u32 v11, v4, 8, v6
        v_subrev_u32 v11, 1024, v11
        v_lshrrev_b32 v4, 4, v2
        v_lshlrev_b32 v4, 3, v4
        s_lshl_b32 s3, s18, 1
        v_add_u32 v4, s3, v4
        v_lshlrev_b32 v5, 4, v5
        v_lshl_add_u32 v12, v4, 8, v5
        v_add_u32 v12, 1024, v12
        v_add_u32 v13, {256-1056}, v12
        s_lshr_b32 s58, s19, 1
        s_lshl_b32 s58, s58, 19
        s_add_u32 s58, s58, {1536*256}
        s_sub_u32 s59, s58, 1024
        s_lshl_b32 s56, s18, 11
        s_mul_i32 s57, s18, {2*1056}
        v_and_b32 v4, 15, v2
        v_lshrrev_b32 v5, 4, v2
        v_lshrrev_b32 v6, 1, v5
        v_and_b32 v7, 1, v5
        v_lshl_add_u32 v5, v7, 1, v6
        v_lshlrev_b32 v7, 8, v4
        v_add_u32 v7, {TOP}, v7
        """)
        for kp in range(4):
            c += L(f"""s_xor_b32 s3, s18, {kp}
            s_lshl_b32 s3, s3, 2
            v_add_u32 v6, s3, v5
            v_xor_b32 v6, v6, v4
            v_lshl_add_u32 v{14+kp}, v6, 4, v7""")
        c += L(f"""v_lshrrev_b32 v4, 2, v2
        v_and_b32 v5, 7, v4
        v_mul_u32_u24 v5, 1056, v5
        v_lshrrev_b32 v4, 3, v4
        v_lshl_add_u32 v5, v4, 8, v5
        v_and_b32 v4, 3, v2
        v_lshl_add_u32 v19, v4, 3, v5
        v_add_u32 v18, {TOP}, v19""")
        c += L(f"""s_lshr_b32 s3, s16, 2
        s_lshl1_add_u32 s3, s17, s3
        s_lshl2_add_u32 s3, s3, s18
        s_mul_i32 s3, s3, 11
        v_add_u32 v34, s3, v2
        v_lshlrev_b32 v34, 7, v34
        v_mov_b32 v4, 0x7fff0000
        v_cmp_gt_u32 vcc, 11, v2
        s_and_b32 s3, s16, 3
        s_mul_i32 s100, s3, {1152*4096}
        v_cndmask_b32 v34, v4, v34, vcc""")
        return c
    def dmaK(self, n):
        return [[I(f"s_add_u32 m0, s56, {kblk(n)}")], [I(f"buffer_load_dwordx4 v10, s[28:31], s58 offen lds", tag=f"k{n}")],
                [I(f"buffer_load_dwordx4 v11, s[28:31], s58 offen offset:1024 lds", tag=f"k{n}")], [I("s_add_u32 s58, s58, 8192")]]
    def dmaV(self, n):
        return [[I(f"s_add_u32 m0, s57, {vblk(n)}")], [I(f"buffer_load_dwordx4 v12, s[32:35], s59 offen lds", tag=f"v{n}")],
                [I(f"buffer_load_dwordx4 v13, s[32:35], s59 offen offset:1056 lds", tag=f"v{n}")], [I("s_add_u32 s59, s59, 8192")]]
    def rdK(self, n, base=None):
        a = kblk(n)
        return self.readK(a - (TOP if a >= TOP else LOW), self.KB if base is None else base, ar=14 if a >= TOP else 20)
    def rdV(self, n):
        a = vblk(n)
        return self.readV(a - (TOP if a >= TOP else LOW), ar=18 if a >= TOP else 24)
    def pf1(self, a="v33", d="v35"):
        return [[I(f"buffer_load_dword {d}, {a}, s[36:39], s11 offen")], [I(f"s_add_u32 s11, s11, {128*9216}")]]
    def pf2(self):
        return [[I("buffer_load_dword v35, v34, s[24:27], s100 offen")], [I(f"s_add_u32 s100, s100, {88*4096}")]]
    def pf3(self):
        return [[I("buffer_load_dword v35, v33, s[40:43], s101 offen")], [I(f"s_add_u32 s101, s101, {512*1152}")]]
    def nm(self, i):
        if i < NI: return 0
        return self.o.get("nm", 2)
    def qepi(self):
        qacc = self.qacc
        rd = []; burst = []; bg = []
        for kp in range(4):
            T = 192 + 8 * kp
            rd += [I(f"ds_read_b128 {r4('v', T)}, v{20+kp}"), I(f"ds_read_b128 {r4('v', T+4)}, v{20+kp} offset:64")]
        for tl in range(8):
            for q in range(4):
                for h in range(2):
                    r = r2('v', qacc(tl, q) + 2 * h)
                    burst.append(I(f"v_pk_fma_f32 {r}, {r2('v', 192+4*tl+2*h)}, {r2('v', 48+2*q)}, {r} op_sel_hi:[1,0,1]"))
            for q in range(4):
                for h in range(2):
                    r = r2('v', qacc(tl, q) + 2 * h)
                    burst.append(I(f"v_pk_mul_f32 {r}, {r}, {r2('v', 48+2*q)} op_sel:[0,1] op_sel_hi:[1,1]"))
        for kp in range(4):
            for q in range(4):
                F = QF + (q * 4 + kp) * 4
                for tl in range(2):
                    for h in range(2):
                        r = qacc(2 * kp + tl, q) + 2 * h
                        bg.append(I(f"v_cvt_pk_bf16_f32 v{F+2*tl+h}, v{r}, v{r+1}"))
            for q in range(4):
                F = QF + (q * 4 + kp) * 4
                bg.append(I(f"v_permlane16_swap_b32 v{F}, v{F+2}")); bg.append(I(f"v_permlane16_swap_b32 v{F+1}, v{F+3}"))
        return rd, burst, bg

    KB, VB, MN, LA, OA = 128, 160, 160, 60, 176
    def S(self, b): return 64 + 32 * b
    def P(self, b): return 128 + 16 * b
    def readK(self, off, base, ar=14):
        return [I(f"ds_read_b128 {r4('a', base+(kt*4+ks)*4)}, v{ar+ks} offset:{off+kt*4096}") for kt in range(2) for ks in range(4)]
    def readV(self, off, ar=18):
        return [I(f"ds_read_b64_tr_b16 {r2('a', self.VB+dt*4+2*h)}, v{ar} offset:{off+dt*32+h*512}") for dt in range(8) for h in range(2)]
    def QK(self, b, kbase, zero):
        M = []
        for kt in range(2):
            for ks in range(4):
                for qt in range(4):
                    d = self.S(b) + (kt * 4 + qt) * 4
                    c = ("0" if zero else r4('v', self.MN + 4 * qt)) if ks == 0 else r4('v', d)
                    M.append(I(f"{MF} {r4('v', d)}, {r4('a', kbase+(kt*4+ks)*4)}, {r4('v', QF+(qt*4+ks)*4)}, {c}"))
        return M
    def PV(self, b, zero, nm, zo=False):
        M = []
        for qt in range(nm):
            d = r4('v', self.OA + 4 * qt)
            M.append(I(f"{MF} {d}, v[36:39], {r4('v', self.P(b)+qt*4)}, {'0' if zo else d}"))
        for dt in range(8):
            for qt in range(4):
                d = r4('a', (dt * 4 + qt) * 4)
                M.append(I(f"{MF} {d}, {r4('a', self.VB+dt*4)}, {r4('v', self.P(b)+qt*4)}, {'0' if zero else d}"))
        return M
    def SM(self, b, h, nm):
        U = []; E = []; A = []; C = []
        for e in range(16):
            r = self.S(b) + 16 * h + e; qt = e // 4
            U.append(I(f"v_add_f32 v{r}, v{self.MN+4*qt}, v{r}")); E.append(I(f"v_exp_f32 v{r}, v{r}"))
            A.append(I(f"v_add_f32 v{self.LA+qt}, v{self.LA+qt}, v{r}") if qt >= nm else None)
            if e % 2: C.append(I(f"v_cvt_pk_bf16_f32 v{self.P(b)+qt*4+2*h+(e%4)//2}, v{r-1}, v{r}"))
        return U, E, A, C
    def phase(self, p, M, sm, reads, D, tail, carry, sub=False, defer=False, extra=None):
        n = len(M); g = Gaps(n)
        g.tail(n - 1, tail)
        eg = None
        if sm:
            U, E, A, C = sm
            eg = [(e * (n - 2)) // 16 for e in range(16)]
            for e in range(16): g.put(eg[e], E[e], force=True)
            if sub:
                g.pre.append(U[0])
                for e in range(1, 16): g.put(eg[e] - 1, U[e], force=True)
            for e in range(8): g.put(eg[2 * e + 1] + 1, C[e])
        if reads: g.spread(reads, 0, n - 7)
        if D: g.spread(D, 0, n - 3)
        for a in carry: g.put(0, a)
        out = []
        if sm:
            for e in range(16):
                if A[e] is None: continue
                q = eg[e] + 1
                while q < n and not g.fits(q, [A[e]]): q += 1
                if q < n: g.put(q, A[e], force=True)
                elif defer: out.append(A[e])
                else: g.put(eg[e] + 1, A[e])
        if extra: extra(g)
        p(g.weave(M))
        return out
    def iter(self, p, i, carry, Dq=None, Dp=None, pvtail=None, pvextra=None, pre_pv=None, qextra=None, need=()):
        b = i % 2
        self.tr(p, "C", 2 * i + 2)
        if i < 15:
            nd = [f"v{i+1}"] + ([f"k{i+2}"] if i + 2 <= 15 else []) + list(need)
            carry = self.phase(p, self.QK(1 - b, self.KB, False), self.SM(b, 1, self.nm(i)), self.rdV(i), (Dq or []) + (self.pf2() if self.o.get("pf2", 1) else []),
                               [W(vm=nd, lg=0), I("s_barrier")], carry, defer=True, extra=qextra)
        else:
            p(self.rdV(i)); U, E, A, C = self.SM(b, 1, self.nm(i)); p(E); p(C); p([a for a in A if a])
            p(pre_pv or [W(lg=0)])
        D = []
        if self.o.get("pf2", 1): D = self.pf2()
        self.tr(p, "C", 2 * i + 3)
        carry = self.phase(p, self.PV(b, False, self.nm(i), zo=(i == NI)), self.SM(1 - b, 0, self.nm(i + 1)) if i < 15 else None,
                           self.rdK(i + 2) if i + 2 <= 15 else [], (Dp or []) + D, pvtail or [W(lg=0)], carry, extra=pvextra)
        if i == 15: self.tr(p, "C", 34); self.tr(p, "C", 35)
        return carry
    def maxops(self, b, run=False):
        mx = []
        for qt in range(4):
            r0 = self.S(b) + qt * 4; r1 = r0 + 16; t = 40 + qt
            if run: mx += L(f"v_max3_f32 v{t}, v{t}, v{r0}, v{r0+1}\nv_max3_f32 v{t}, v{t}, v{r0+2}, v{r0+3}\nv_max3_f32 v{t}, v{t}, v{r1}, v{r1+1}\nv_max3_f32 v{t}, v{t}, v{r1+2}, v{r1+3}")
            else: mx += L(f"v_max3_f32 v{t}, v{r0}, v{r0+1}, v{r0+2}\nv_max3_f32 v{t}, v{t}, v{r0+3}, v{r1}\nv_max3_f32 v{t}, v{t}, v{r1+1}, v{r1+2}\nv_max_f32 v{t}, v{t}, v{r1+3}")
        return mx
    def maxfin(self):
        mx = []
        for sw in ("v_permlane16_swap_b32", "v_permlane32_swap_b32"):
            for qt in range(4): mx += L(f"v_mov_b32 v{44+qt}, v{40+qt}")
            mx += L("s_nop 0")
            for qt in range(4): mx += L(f"{sw} v{40+qt}, v{44+qt}")
            for qt in range(4): mx += L(f"v_max_f32 v{40+qt}, v{40+qt}, v{44+qt}")
        for qt in range(4):
            for e in range(4): mx += L(f"v_sub_f32 v{self.MN+4*qt+e}, 0xc2000000, v{40+qt}")
        return mx
    def macc(self, f, d): return 192 + (f * 3 + d) * 4
    def mA(self, t, f): return ('a', 28 * (t % 2) + 4 * f) if t < T0 else ('a', 240 + 4 * f)
    def mB(self, t, d): return ('a', 28 * (t % 2) + 16 + 4 * d) if t < T0 else ('v', 48 + 4 * d)
    def mrdA(self, t, f):
        k, r = self.mA(t, f)
        return [I(f"ds_read_b64_tr_b16 {r2(k, r+2*h)}, v24 offset:{(t%2)*8448 + 32*f + 512*h}", tag="mr") for h in range(2)]
    def mrdB(self, t):
        return [I(f"ds_read_b128 {r4(*self.mB(t,d))}, v25 offset:{(t%2)*6144 + 1024*d}", tag="mr") for d in range(3)]
    def mmf(self, t):
        M = []
        for f in range(4):
            for d in range(3):
                a = r4('a', self.macc(f, d))
                M.append(I(f"{MF} {a}, {r4(*self.mA(t,f))}, {r4(*self.mB(t,d))}, {r4('a', 240+4*f) if t == 0 else a}"))
        return M
    def madv(self):
        return [[I("s_mov_b32 s93, s92")], [I(f"s_add_u32 s92, s92, {MSL}")], L(f"s_cmp_eq_u32 s92, {NM*MSL}\ns_cselect_b32 s92, 0, s92"),
                [I("v_add_u32 v24, s92, v26")], [I("v_add_u32 v25, s92, v27")]]
    def gelu(self):
        c = L(f"""
        s_lshl_b32 s3, s8, 2
        s_and_b32 s4, s18, 1
        s_lshl_b32 s4, s4, 1
        s_add_u32 s3, s3, s4
        s_mul_i32 s3, s3, 36
        s_mul_i32 s4, s9, 6
        s_add_u32 s3, s3, s4
        s_lshr_b32 s4, s18, 1
        s_mul_i32 s4, s4, 3
        s_add_u32 s3, s3, s4
        s_lshl_b32 s3, s3, 10
        s_add_u32 s3, s3, {WS_UF}
        s_add_u32 s3, s3, s94
        v_add_u32 v25, s3, v3
        v_add_u32 v26, {36*1024}, v25
        v_mov_b32 v28, {f2u(-0.10294324):#x}
        v_mov_b32 v29, {f2u(-2.3022082):#x}
        v_mov_b32 v30, 1.0
        """)
        for k in range(5): c += L(f"v_subrev_u32 v{20+k}, {TOP-LOW}, v{14+k}")
        c += L(f"s_mov_b32 s24, s0\ns_mov_b32 s25, s1\ns_mov_b32 s26, {4608*4096}")
        setup = c; c = []
        U = 40; T = 48; O = 56
        for fp in range(2):
            for d in range(3):
                for e in range(8): c += L(f"v_accvgpr_read_b32 v{U+e}, a{self.macc(2*fp + e//4, d) + e%4}")
                for e in range(0, 8, 2): c += L(f"v_pk_mul_f32 {r2('v',T+e)}, {r2('v',U+e)}, {r2('v',U+e)}")
                for e in range(0, 8, 2): c += L(f"v_pk_fma_f32 {r2('v',T+e)}, {r2('v',T+e)}, v[28:29], v[28:29] op_sel:[0,0,1] op_sel_hi:[1,0,1]")
                for e in range(0, 8, 2): c += L(f"v_pk_mul_f32 {r2('v',T+e)}, {r2('v',T+e)}, {r2('v',U+e)}")
                for e in range(8): c += L(f"v_exp_f32 v{T+e}, v{T+e}")
                for e in range(0, 8, 2): c += L(f"v_pk_add_f32 {r2('v',T+e)}, {r2('v',T+e)}, v[30:31] op_sel_hi:[1,0]")
                for e in range(8): c += L(f"v_rcp_f32 v{T+e}, v{T+e}")
                for e in range(0, 8, 2): c += L(f"v_pk_mul_f32 {r2('v',T+e)}, {r2('v',T+e)}, {r2('v',U+e)}")
                for e in range(4): c += L(f"v_cvt_pk_bf16_f32 v{O+e}, v{T+2*e}, v{T+2*e+1}")
                c.append(I(f"buffer_store_dwordx4 {r4('v', O)}, v{25+fp}, s[12:15], 0 offen offset:{1024*d} sc1", tag="ust"))
        return setup, c
    def force(self, g, items, lo, hi):
        while True:
            import copy
            g2 = copy.deepcopy(g)
            if not g2.fill(items, lo, hi, dense=True): break
            g.cap += 1
        g.fill(items, lo, hi, dense=True)
    def iterM(self, p, i):
        b = i % 2; dmaM = self.dmaM
        Q = self.QK(1 - b, self.KB, False); Pm = self.PV(b, i == 0, 0)
        ch = [Q[:11], Q[11:22], Q[22:], Pm[:11], Pm[11:22], Pm[22:]]
        M = []; c0 = []; m0 = []
        for j in range(6):
            c0.append(len(M)); M += ch[j]; m0.append(len(M)); M += self.mmf(T0 + 6 * i + j)
        n = len(M); g = Gaps(n)
        half = c0[3]
        for j in range(6):
            t = T0 + 6 * i + j
            if j % 2:
                need = [f"m{t//2+1}"] + ([f"k{i+2}"] if j == 3 else []) + ([f"v{i+1}"] if j == 5 else [])
                g.tail(m0[j] - 1, [W(vm=need, lg=["mr"] + (["kr"] if j == 5 else [])), I("s_barrier")])
            else: g.put(m0[j] - 1, W(lg="mr"), force=True)
        g.put(half - 1, W(lg="vr"), force=True)
        for j in range(6):
            t = T0 + 6 * i + j
            last = g.spread(self.mrdA(t, 3) + self.mrdB(t), c0[j], c0[j] + 4)
            if j % 2: g.spread(self.madv(), c0[j] + 5, m0[j] - 2, after=last)
            for f in range(3): g.spread(self.mrdA(t + 1, f), m0[j] + 3 * f + 3, m0[j] + 3 * f + 4)
        pf = lambda: (self.pf2() if self.o.get("pf2", 1) else [])
        t0 = T0 + 6 * i
        g.spread(dmaM(t0 // 2 + 3)[6:] + self.dmaK(i + 3), 0, m0[1] - 3)
        g.spread(dmaM(t0 // 2 + 4), m0[1], m0[3] - 3)
        g.spread(dmaM(t0 // 2 + 5) + self.dmaV(i + 2), m0[3], m0[5] - 3)
        g.spread(dmaM(t0 // 2 + 6)[:6], m0[5], n - 2)
        todo = []
        for (lo, hi, sm) in ((0, half - 4, self.SM(b, 1, 0)), (half, n - 3, self.SM(1 - b, 0, self.nm(i + 1)))):
            U, E, A, C = sm; eg = []
            for e in range(16):
                q = lo + (e * (hi - lo)) // 16
                if eg: q = max(q, eg[-1] + 1)
                eg.append(g.put(q, E[e], lim=hi + 1))
            for e in range(8): g.put(eg[2 * e + 1] + 1, C[e], lim=hi + 3)
            todo += [(eg[e] + 1, A[e]) for e in range(16) if A[e]]
        R = self.rdV(i)
        for r in R: r.tag = "vr"
        g.spread(R, 4, half - 7)
        R = self.rdK(i + 2)
        for r in R: r.tag = "kr"
        g.spread(R, m0[3] + 1, m0[5] - 6)
        for q, a in todo: g.put(q, a)
        self.over = g.over()
        self.tr(p, "C", 2 * i + 2); self.tr(p, "C", 2 * i + 3)
        p(g.weave(M))
    def partC(self):
        p = Prog(); dmaM = self.dmaM
        self.tr(p, "S", 0)
        p(W(vm=["m0", "st"], lg=0)); p("s_barrier")
        self.tr(p, "S", 1)
        self.tr(p, "C", 0)
        rd, burst, bg = self.qepi()
        def mreads(t): return self.mrdB(t) + [x for f in range(4) for x in self.mrdA(t, f)]
        for r in rd: r.tag = "cs"
        p(rd); p(mreads(0))
        Dl = flat(dmaM(3) + self.dmaK(1) + self.dmaV(0) + self.dmaK(2) + self.dmaV(1))
        p(Dl[:6]); Dl = [x for x in Dl[6:] if x.t != "s_nop 0"]
        p(W(lg="cs")); self.tr(p, "S", 2)
        for k, x in enumerate(burst):
            p(x)
            if k % 5 == 4 and Dl: p(Dl.pop(0))
        assert not Dl
        p(W(lg=0))
        NS0 = T0 - 4
        per = (len(bg) + NS0 - 1) // NS0
        U0, E0, A0, C0 = self.SM(0, 0, 0); U1 = self.SM(0, 1, 0)[0]
        bg2 = self.maxops(0) + self.maxfin() + U0 + E0 + C0 + A0 + U1
        extraD = {}
        for t in range(T0):
            if t == NS0:
                self.tr(p, "C", 1)
                M = self.QK(0, self.VB, True); g = Gaps(32)
                g.spread(self.rdK(1), 0, 24)
                for qt in range(4): g.put(qt, I(f"v_mov_b32 v{self.LA+qt}, 0"))
                p(g.weave(M))
            M = self.mmf(t); g = Gaps(12)
            if t % 2 == 0:
                need = [f"m{t//2+1}"] + {NS0 - 2: ["k0", "k1"], T0 - 2: ["v0"]}.get(t, [])
                g.tail(11, [W(vm=need, lg=0), I("s_barrier")])
            elif t < T0 - 1: g.tail(11, [W(lg=0)])
            D = []
            if t >= 1:
                G = dmaM((t - 1) // 2 + 4); D = G[:6] if t % 2 else G[6:]
            D = D + extraD.get(t, [])
            if t < T0 - 1:
                last = g.spread(mreads(t + 1), 0, 6)
                if t % 2 == 0: g.spread(self.madv(), 7, 10, after=last)
            else:
                for f in range(3): g.spread(self.mrdA(T0, f), 2 * f, 2 * f + 1)
            if t == NS0 - 1: g.spread(self.rdK(0, base=self.VB), 0, 7)
            if D: g.spread(D, 0, 10)
            if t < NS0:
                self.force(g, bg[:per], 0, 10); bg = bg[per:]
            else:
                k = (len(bg2) + T0 - 1 - t) // (T0 - t)
                self.force(g, bg2[:k], 3 if t == NS0 else 0, 10); bg2 = bg2[k:]
            self.tr(p, "S", 3 + t)
            p(g.weave(M))
        self.tr(p, "S", 3 + T0); self.tr(p, "S", 4 + T0)
        for i in range(NI):
            p.mark("B2")
            self.iterM(p, i)
        p.mark("B0")
        setup, ge = self.gelu()
        self.tr(p, "G", 0)
        p(setup)
        p(f"""s_getpc_b64 s[6:7]
        K_pc2:
        s_lshr_b32 s3, s2, 3
        s_lshl_b32 s3, s3, 11
        v_lshl_add_u32 v4, v0, 3, s3
        v_min_u32 v4, K_end - K_pc2 - 16, v4
        global_load_dwordx2 v[6:7], v4, s[6:7]""")
        self.tr(p, "G", 1); gi = 2
        nst = 0
        for k, x in enumerate(ge):
            if x.tag == "ust":
                nst += 1
                if nst == 2: p(W(vm="m35", lg=0)); p("s_barrier")
            p(x)
            if x.tag == "ust":
                if nst == 2: p(flat(self.dmaK(12) + self.dmaV(11)))
                if nst == 6 and self.o.get("pf2", 1): p([y for g in self.pf2() for y in g])
                self.tr(p, "G", gi); gi += 1
        if self.o.get("touch", 1): p("TOUCH_2:")
        self.tr(p, "G", gi)
        c = self.iter(p, 9, [], Dq=self.dmaK(13) + self.dmaV(12), Dp=self.dmaK(14) + self.dmaV(13))
        c = self.iter(p, 10, c, need=["ust"], Dp=[[I("buffer_store_dword v9, v8, s[12:15], s45 offen sc1")]] + self.dmaK(15) + self.dmaV(14) + self.dmaV(15))
        c = self.iter(p, 11, c)
        c = self.iter(p, 12, c)
        assert not c
        p("s_cmp_ge_u32 s16, 4\ns_cbranch_scc1 K_U")
        return p
    def lfin(self, tagname):
        LA = self.LA
        c = []
        qs = list(range(4))
        for sw in ("v_permlane16_swap_b32", "v_permlane32_swap_b32"):
            for qt in qs: c += L(f"v_mov_b32 v{44+qt}, v{LA+qt}")
            c += L("s_nop 0")
            for qt in qs: c += L(f"{sw} v{LA+qt}, v{44+qt}")
            for qt in qs: c += L(f"v_add_f32 v{LA+qt}, v{LA+qt}, v{44+qt}")
        for qt in range(self.nm(15)): c += L(f"v_add_f32 v{LA+qt}, v{LA+qt}, v{self.OA+4*qt}")
        c += L(f"""v_add_f32 v45, v{LA}, v{LA+1}
        v_add_f32 v46, v{LA+2}, v{LA+3}
        v_add_f32 v44, v45, v46
        v_mov_b32 v45, {self.o.get('thr', 0x5f800000):#x}
        v_cmp_nlt_f32 s[6:7], v44, v45
        s_cmp_lg_u64 s[6:7], 0
        s_cbranch_scc0 FBR_{tagname}
        s_call_b64 s[6:7], K_fallback
        FBR_{tagname}:""")
        for qt in range(4): c += L(f"v_rcp_f32 v{40+qt}, v{LA+qt}")
        return c
    def oepi(self, dst, tmp, pk):
        out = []; i = 0
        for k in range(4):
            for qt in range(4):
                c = []
                r = tmp(i); i += 1; d = dst(k, qt)
                for e in range(8): c.append(I(f"v_accvgpr_read_b32 v{r+e}, a{((2*k+e//4)*4+qt)*4+e%4}"))
                if pk:
                    sel = "op_sel_hi:[1,0]" if qt % 2 == 0 else "op_sel:[0,1] op_sel_hi:[1,1]"
                    for e in range(0, 8, 2): c.append(I(f"v_pk_mul_f32 {r2('v', r+e)}, {r2('v', r+e)}, {r2('v', 40+(qt&2))} {sel}"))
                else:
                    for e in range(8): c.append(I(f"v_mul_f32 v{r+e}, v{r+e}, v{40+qt}"))
                for j in range(4): c.append(I(f"v_cvt_pk_bf16_f32 v{d+j}, v{r+2*j}, v{r+2*j+1}"))
                c.append(I(f"buffer_store_dwordx4 {r4('v', d)}, v3, s[12:15], s11 offen offset:{1024*qt} sc1", tag=f"ost{k}"))
                if qt == 3: c.append(I(f"s_add_u32 s11, s11, {128*1024}"))
                out.append(c)
        return out
    def tailprep(self):
        c = L(f"""
        s_lshl_b32 s92, s17, 3
        s_lshl_b32 s93, s18, 1
        s_add_u32 s92, s92, s93
        s_lshl_b32 s92, s92, 3
        s_add_u32 s92, s92, s16
        s_mul_i32 s92, s92, 9216
        s_add_u32 s92, s92, {WS_PART}
        s_add_u32 s93, s92, {8*9216}
        v_mov_b32 v44, v3
        v_add_u32 v45, 4096, v3
        v_add_u32 v46, 8192, v3
        s_lshr_b32 s56, s17, 2
        s_lshl_b32 s56, s56, 8
        s_lshl_b32 s57, s16, 5
        s_add_u32 s56, s56, s57
        s_and_b32 s57, s17, 3
        s_mul_i32 s57, s57, 288
        s_lshl_b32 s58, s17, 3
        s_add_u32 s58, s58, s16
        s_mul_i32 s58, s58, {8*9216}
        s_add_u32 s58, s58, {WS_PART}
        s_lshl_b32 s59, s17, 7
        s_add_u32 s59, s59, {WS_FP}
        s_lshl_b32 s94, s16, 2
        s_add_u32 s94, s59, s94
        s_add_u32 s95, s59, 16
        """)
        for i in range(3):
            c += L(f"""v_add_u32 v4, {256*i}, v0
            v_mul_u32_u24 v5, 3641, v4
            v_lshrrev_b32 v5, 16, v5
            v_mul_u32_u24 v6, 18, v5
            v_sub_u32 v6, v4, v6
            v_add_u32 v5, s56, v5
            v_mul_u32_u24 v5, 1152, v5
            v_lshl_add_u32 v{16+i}, v6, 4, v5""")
        c += L(f"""v_mov_b32 v4, 0x7fff0000
        v_cmp_lt_u32 vcc, 63, v0
        v_and_b32 v47, 7, v2
        v_lshlrev_b32 v47, 2, v47
        v_cndmask_b32 v18, v18, v4, vcc
        v_bfe_u32 v4, v0, 2, 4
        v_add_u32 v5, s56, v4
        v_lshlrev_b32 v19, 1, v5
        v_lshrrev_b32 v6, 6, v0
        v_and_b32 v7, 1, v0
        v_lshlrev_b32 v7, 2, v7
        v_lshl_add_u32 v7, v6, 3, v7
        v_bfe_u32 v6, v0, 1, 1
        v_mul_u32_u24 v4, 288, v4
        v_add_u32 v4, v4, v7
        v_lshl_add_u32 v12, v6, 5, v4
        v_mul_u32_u24 v13, {16*288}, v6
        v_add3_u32 v13, v13, v4, 64
        v_mul_u32_u24 v5, 1152, v5
        v_add_u32 v5, v5, v7
        v_lshl_add_u32 v10, v6, 5, v5
        v_add_u32 v11, {16*1152}, v10
        v_mul_u32_u24 v14, {16*1152}, v6
        v_add_u32 v14, v14, v5
        v_lshlrev_b32 v15, 2, v0""")
        return c
    def final_block(self, p, FA, Bk, rdA):
        order = [8, 0, 1, 2, 3, 4, 5]
        M = []; done = {}
        for n_, t in enumerate(order):
            for ks in range(3):
                for u in range(4): M.append(I(f"{MF} {self.acc2(t,u)}, {FA(n_ % 2, ks)}, {Bk(ks,u)}, {self.acc2(t,u)}"))
            for u in range(4): done[(t, u)] = len(M) - 1
        for u in range(4):
            for t in (6, 7):
                for ks in range(3): M.append(I(f"{MF} {self.acc2(t,u)}, {FA((t + 1) % 2, ks)}, {Bk(ks,u)}, {self.acc2(t,u)}"))
            done[(7, u)] = len(M) - 1
        n = len(M); g = Gaps(n)
        seq = order + [6, 7]
        for n_ in range(1, 9):
            R = rdA(seq[n_], n_ % 2)
            for r in R: r.tag = f"fa{n_}"
            lo = 12 * (n_ - 1)
            if n_ < 8:
                g.spread(R, lo, lo + 5); g.put(lo + 11, W(lg=f"fa{n_}"), force=True)
            else:
                g.spread(R, lo - 4 if len(R) == 3 else lo - 8, lo - 1 if False else lo, staged=True) if False else None
        R = rdA(7, 0); per = len(R) // 3
        for ks in range(3):
            for r in R[ks * per:(ks + 1) * per]:
                r.tag = "fa8"; g.put(72 + 4 * ks + 3, r, force=True)
        g.put(86, W(lg="fa8"), force=True)
        chunks = []
        ci = 0
        def chunk(pr, h, c):
            nonlocal ci
            r = 64 + (ci % 4) * 12; ci += 1; ops = []
            if c < 8:
                for j, (t, u) in enumerate(pr):
                    for x in range(4): ops.append(I(f"v_accvgpr_read_b32 v{r+4*j+x}, a{128+(t*4+u)*4+x}"))
                src = r
            else: src = 240 + 8 * h
            for j in range(4): ops.append(I(f"v_cvt_pk_bf16_f32 v{r+8+j}, v{src+2*j}, v{src+2*j+1}"))
            ops.append(I(f"buffer_store_dwordx4 {r4('v', r+8)}, v{44+c//4}, s[12:15], s{92+h} offen offset:{(c%4)*1024} sc1", tag="pst"))
            return ops
        pos = 0; rest = []
        L_ = [(done[(8, 3)], chunk(None, 0, 8)), (done[(8, 3)], chunk(None, 1, 8))]
        for tp in range(4):
            for u in range(4): L_.append((done[(2 * tp + 1, u)], chunk(((2*tp, u), (2*tp+1, u)), u >> 1, 2 * tp + (u & 1))))
        g.cap = 3
        for d, ops in L_:
            if rest: rest += ops; continue
            lo = max(pos, d + 4)
            r_ = g.fill(ops, lo, n - 1) if lo < n else ops
            pos = g.lastfill + 1 if len(r_) < len(ops) else pos
            rest = r_
        p(g.weave(M)); p("s_nop 7"); p(rest)
    OBASE = f"""
        s_lshl_b32 s11, s19, 19
        s_lshl_b32 s4, s5, 12
        s_add_u32 s11, s11, s4
        s_add_u32 s11, s11, {WS_OF}
        """
    def acc2(self, t, u): return r4('a', 128 + (t * 4 + u) * 4) if t < 8 else r4('v', 240 + 4 * u)

    def partO(self):
        o = self.o; p = Prog()
        ntw = " nt" if o.get("ntwo") else ""
        NW = 6
        p("K_O:")
        p("s_mul_i32 s3, s18, 144\nv_add_u32 v7, s3, v2\ns_and_b32 s4, s17, 3\ns_mul_i32 s4, s4, 288")
        for i in range(3):
            p(f"""v_add_u32 v4, {64*i}, v7
            v_mul_u32_u24 v5, 3641, v4
            v_lshrrev_b32 v5, 16, v5
            v_mul_u32_u24 v6, 18, v5
            v_sub_u32 v6, v4, v6
            v_mul_u32_u24 v5, 1152, v5
            v_lshl_add_u32 v6, v6, 4, v5
            v_add_u32 v{20+i}, s4, v6
            s_sub_u32 s4, s4, 1024""")
        p(f"""
        v_lshrrev_b32 v4, 2, v2
        v_mul_u32_u24 v4, 288, v4
        v_and_b32 v5, 3, v2
        v_lshl_add_u32 v23, v5, 3, v4
        v_lshlrev_b32 v24, 2, v5
        s_mul_i32 s60, s18, 2304
        s_and_b32 s54, s44, 0xffffff80
        s_add_u32 s55, s54, 16
        s_and_b32 s99, s19, 0xf8
        v_mov_b32 v26, 2
        v_mov_b32 v27, 4
        s_lshl_b32 s63, s5, 12
        s_add_u32 s63, s63, {WS_OF}
        """)
        A_ = lambda k: [(h_, k) for h_ in (1, 2, 3)]
        B_ = lambda k: [(h_, k) for h_ in (4, 5, 6, 7)]
        ORD = [(0, k) for k in range(4)] + A_(0) + A_(1) + B_(0) + A_(2) + A_(3) + B_(1) + B_(2) + B_(3)
        def kk(t): return ORD[t]
        def k32(t, r):
            hsel, k = kk(t)
            a = [I(f"s_xor_b32 {r}, s19, {hsel}")] if hsel < 4 else [I(f"s_add_u32 {r}, s99, {hsel}")]
            return [a, [I(f"s_lshl2_add_u32 {r}, {r}, {k}")]]
        def dmaW(t):
            G = []
            G += k32(t, "s3") + [[I(f"s_mul_i32 s61, s3, {32*1152}")]]
            G += [[I(f"s_add_u32 m0, s60, {(t % NW)*9216}")],
                  [I(f"buffer_load_dwordx4 v20, s[40:43], s61 offen{ntw} lds", tag=f"g{t}")],
                  [I(f"buffer_load_dwordx4 v21, s[40:43], s61 offen offset:1024{ntw} lds", tag=f"g{t}")],
                  [I("s_mov_b64 exec, 0xffff"), I(f"buffer_load_dwordx4 v22, s[40:43], s61 offen offset:2048{ntw} lds", tag=f"g{t}"), I("s_mov_b64 exec, -1")]]
            return G
        def Bf(t, u): return r4('v', 168 + (t * 4 + u) * 4) if t < 4 else r4('a', ((t - 4) % 8) * 16 + 4 * u)
        def ldB(t):
            G = []
            G += k32(t, "s4") + [[I("s_lshl_b32 s4, s4, 17")], [I("s_add_u32 s62, s4, s63")]]
            for u in range(4): G.append([I(f"buffer_load_dwordx4 {Bf(t,u)}, v3, s[12:15], s62 offen offset:{1024*u} sc1", tag=f"b{t}")])
            return G
        def A(s, t): return 64 + 36 * s + 4 * t
        def reads(t):
            return [I(f"ds_read_b64_tr_b16 {r2('v', A(t%2,tt)+2*h)}, v23 offset:{(t % NW)*9216+h*4608+32*tt}") for tt in range(9) for h in range(2)]
        c = self.iter(p, 13, [], Dp=dmaW(0) + dmaW(1))
        c = self.iter(p, 14, c, Dp=dmaW(2) + dmaW(3))
        c = self.iter(p, 15, c, Dp=dmaW(4) + dmaW(5), pre_pv=[W(vm=["g0", "g1"], lg=0), I("s_barrier")],
                      pvextra=lambda g: g.spread(reads(0), 2, 28))
        self.stamp(p, 3)
        p(self.OBASE); p("s_nop 2"); p(self.lfin("O"))
        late = []
        for ci, ch in enumerate(self.oepi(lambda k, qt: 168 + (k * 4 + qt) * 4, lambda i: 136 + (i % 4) * 8, True)):
            if ci < 8: p(ch)
            else:
                p([x for x in ch if klass(x) == 2]); late += [[x] for x in ch if klass(x) != 2]
        p("s_barrier")
        self.stamp(p, 4)
        nb = 4
        FA = lambda buf, ks: r4('v', 136 + buf * 12 + ks * 4)
        def rdA(tt, buf):
            return [I(f"ds_read_b64_tr_b16 {r2('v', 136+buf*12+ks*4+2*h)}, v23 offset:{((29+ks) % NW)*9216+h*4608+32*tt}") for ks in range(3) for h in range(2)]
        bg = self.tailprep()
        F1 = o.get("f1", 1); L0 = o.get("l0", 4); F2 = o.get("f2", 7); DB = o.get("db", 4)
        REQ = {4: ("s54", 2), 10: ("s55", 1), 14: ("s54", 4), 20: ("s55", 2), 24: ("s55", 3), 28: ("s55", 4)}
        P = {n_: self.poll(f"pO{n_}", 12, 24, sr, 25, v_) for n_, (sr, v_) in REQ.items()}
        ckstep = {n_: (F1 + 2 if n_ == 4 else min(n_ - DB, 24)) for n_ in REQ}
        plstep = {n_: (F1 + 1 if n_ == 4 else ckstep[n_] - 1) for n_ in REQ}
        for t in range(29):
            M = [I(f"{MF} {self.acc2(tt,u)}, {r4('v', A(t%2,tt))}, {Bf(t,u)}, {'0' if t == 0 else self.acc2(tt,u)}") for tt in range(9) for u in range(4)]
            g = Gaps(36)
            need = ([f"g{t+2}"] if t < 27 else (["g31"] if t == 27 else [])) + ([f"b{t+1}" if t < 28 else "b31"] if t + 1 >= 4 else [])
            if t == F1: need.append("ost1")
            if t == F2: need.append("ost3")
            g.tail(35, [W(vm=need or None, lg=0)] + ([I("s_barrier")] if t < 28 else []))
            D = []; Dend = []
            if t == F1 + 1: D += [[I("buffer_store_dword v26, v8, s[12:15], s44 offen sc1")]]
            if t == F2 + 1: D += [[I("buffer_store_dword v27, v8, s[12:15], s44 offen sc1")]]
            for n_ in REQ:
                if plstep[n_] == t:
                    if n_ == 4: Dend += [[P[n_][0]]]
                    else: D += [[P[n_][0]]]
            if t >= F1 + 2:
                for _ in range(2):
                    if nb < 32 and (nb <= t + DB or (t >= 24 and nb < t + 8)):
                        if nb in REQ:
                            assert ckstep[nb] <= t, (nb, t)
                            D += [P[nb][1]]
                        D += ldB(nb); nb += 1
            if L0 <= t < L0 + 3: Dend += late[(0, 3, 7, 10)[t - L0]:(0, 3, 7, 10)[t - L0 + 1]]
            if t + 6 < 32: D += dmaW(t + 6)
            D += Dend
            if D: g.spread(D, 0, 33)
            g.spread(reads(t + 1) if t < 28 else rdA(8, 0), 0, 28)
            if t >= 20: bg = g.fill(bg, 0, 34)
            self.tr(p, "2", t)
            p(g.weave(M))
        assert not bg
        self.tr(p, "2", 29)
        self.final_block(p, FA, lambda ks, u: Bf(29 + ks, u), rdA)
        for t in range(30, 38): self.tr(p, "2", t)
        p("s_branch K_tail")
        return p

    def partU(self):
        o = self.o; p = Prog()
        ntw = " nt" if o.get("ntw2") else ""
        hs = " sc1" if o.get("sc1dma", 1) else ""
        SB = 9216 + 16 * 1056
        p("K_U:")
        p(f"""
        s_and_b32 s3, s17, 3
        s_mul_i32 s3, s3, 9216
        s_mul_i32 s60, s18, 2304
        s_add_u32 s3, s3, s60
        v_add_u32 v20, s3, v3
        s_and_b32 s4, s16, 3
        s_mul_i32 s61, s4, {36*36*1024}
        s_add_u32 s61, s61, {WS_UF}
        s_mul_i32 s62, s4, {1152*4096}
        s_lshl_b32 s54, s4, 8
        s_add_u32 s54, s54, {WS_FU}
        v_min_u32 v31, 53, v2
        v_lshlrev_b32 v31, 2, v31
        v_and_b32 v4, 31, v2
        v_lshlrev_b32 v4, 4, v4
        v_lshrrev_b32 v5, 5, v2
        v_lshl_add_u32 v4, v5, 16, v4
        s_lshl_b32 s3, s18, 14
        s_lshr_b32 s4, s17, 2
        s_lshl_b32 s4, s4, 9
        s_add_u32 s3, s3, s4
        v_add_u32 v21, s3, v4
        v_add_u32 v22, {4096-1056}, v21
        v_add_u32 v23, {2*(4096-1056)}, v21
        v_add_u32 v24, {3*(4096-1056)}, v21
        s_mul_i32 s63, s18, {4*1056}
        s_add_u32 s63, s63, 9216
        v_lshrrev_b32 v4, 2, v2
        v_mul_u32_u24 v4, 1056, v4
        v_and_b32 v5, 3, v2
        v_lshl_add_u32 v4, v5, 3, v4
        s_lshl_b32 s3, s18, 7
        s_add_u32 s3, s3, 9216
        v_add_u32 v25, s3, v4
        v_add_u32 v26, {2*SB}, v25
        v_add_u32 v27, {4*SB}, v25
        v_mov_b32 v28, v3
        v_mov_b32 v33, 2
        v_add_u32 v29, {2*SB}, v3
        v_add_u32 v30, {4*SB}, v3
        """)
        sl = lambda n: n % 6
        def dma(n):
            base = sl(n) * SB; tg = f"g{n}"
            G = [[I(f"s_add_u32 m0, s63, {base}")]]
            for u in range(4): G.append([I(f"buffer_load_dwordx4 v{21+u}, s[40:43], s62 offen offset:{1056*u}{ntw} lds", tag=tg)])
            G += [[I(f"s_add_u32 m0, s60, {base}")], [I(f"s_add_u32 s62, s62, {32*4096}")],
                  [I(f"buffer_load_dwordx4 v20, s[12:15], s61 offen{hs} lds", tag=tg)],
                  [I(f"buffer_load_dwordx4 v20, s[12:15], s61 offen offset:1024{hs} lds", tag=tg)],
                  [I("s_mov_b64 exec, 0xffff"), I(f"buffer_load_dwordx4 v20, s[12:15], s61 offen offset:2048{hs} lds", tag=tg), I("s_mov_b64 exec, -1")],
                  [I(f"s_add_u32 s61, s61, {36*1024}")]]
            return G
        SET = [64, 116]
        def A(s, t): return SET[s] + 4 * t
        def B(s, u): return SET[s] + 36 + 4 * u
        def reads(t):
            s = t % 2; slot = sl(t); off = (slot & 1) * SB
            R = [I(f"ds_read_b64_tr_b16 {r2('v', B(s,u)+2*h)}, v{25+slot//2} offset:{off+h*512+32*u}") for u in range(4) for h in range(2)]
            R += [I(f"ds_read_b128 {r4('v', A(s,tt))}, v{28+slot//2} offset:{off+tt*1024}") for tt in range(9)]
            return R
        pl, chk = self.poll("pU", 12, 31, "s54", 32, 1)
        p(pl)
        c = self.iter(p, 13, [], Dp=[chk] + dma(0))
        c = self.iter(p, 14, c, Dq=dma(1), Dp=dma(2))
        c = self.iter(p, 15, c, Dp=dma(3), pre_pv=[W(vm=["g0"], lg=0), I("s_barrier")], pvextra=lambda g: g.spread(reads(0), 2, 28))
        self.stamp(p, 3)
        p(self.OBASE); p("s_nop 2"); p(self.lfin("U"))
        p(W(vm="g1")); p("s_barrier")
        self.stamp(p, 4)
        och = self.oepi(lambda k, qt: 216 + ((k * 4 + qt) % 4) * 4, lambda i: 184 + (i % 4) * 8, False)
        issued = 4; fl = {}
        FA = lambda buf, ks: r4('v', 116 + buf * 12 + ks * 4)
        FB_ = lambda ks, u: 168 + ks * 16 + u * 4
        def rdA(tt, buf):
            return [I(f"ds_read_b128 {FA(buf, ks)}, v{28+sl(33+ks)//2} offset:{(sl(33+ks) & 1)*SB+tt*1024}") for ks in range(3)]
        rdBf = [I(f"ds_read_b64_tr_b16 {r2('v', FB_(ks,u)+2*h)}, v{25+sl(33+ks)//2} offset:{(sl(33+ks) & 1)*SB+h*512+32*u}") for ks in range(3) for u in range(4) for h in range(2)]
        bg = self.tailprep()
        OST = o.get("ost", (0, 1, 2, 3, 5, 7, 8, 10, 11, 13, 14, 16, 17, 18, 20, 21))
        p("v_mov_b32 v48, 3\nv_mov_b32 v49, 4")
        for t in range(33):
            p.mark("B6")
            M = [I(f"{MF} {self.acc2(tt,u)}, {r4('v', A(t%2,tt))}, {r4('v', B(t%2,u))}, {'0' if t == 0 else self.acc2(tt,u)}") for tt in range(9) for u in range(4)]
            g = Gaps(36)
            need = ([f"g{t+2}"] if t < 31 else (["g35"] if t == 31 else [])) + ([f"ost{fl[t+1]}"] if t + 1 in fl else [])
            g.tail(35, [W(vm=need or None, lg=0)] + ([I("s_barrier")] if t < 32 else []))
            D = []
            if t in fl: D += [[I(f"buffer_store_dword v{(9, 33, 48, 49)[fl[t]]}, v8, s[12:15], s44 offen sc1")]]
            want = min(36, t + 7)
            nd = min(2 if t in o.get("cu", (4, 6)) else 1, want - issued)
            for _ in range(nd): D += dma(issued); issued += 1
            if D: g.spread(D, 0, 33)
            g.spread(reads(t + 1) if t < 32 else rdBf + rdA(8, 0), 0, 28)
            if t in OST:
                assert not g.fill(och.pop(0), 0, 34)
                if len(och) % 4 == 0: fl[t + 3] = 3 - len(och) // 4
            if t >= 29: bg = g.fill(bg, 0, 34)
            self.tr(p, "2", t)
            p(g.weave(M))
        p.mark("B0")
        assert not bg
        self.tr(p, "2", 33)
        self.final_block(p, FA, lambda ks, u: r4('v', FB_(ks, u)), rdA)
        for t in range(34, 38): self.tr(p, "2", t)
        return p

    def partT(self):
        p = Prog()
        p("K_tail:")
        self.stamp(p, 5); self.tr(p, "T", 0)
        XR = 144
        for c in range(9):
            a, off = (f"v{10 + (c & 1)}", 64 * (c >> 1)) if c < 8 else ("v14", 256)
            p(f"buffer_load_dword v{XR+c}, {a}, s[20:23], s57 offen offset:{off}", tag="x")
        p("global_load_ushort v20, v19, s[46:47]\nglobal_load_ushort v21, v19, s[46:47] offset:32", tag="x")
        p(f"""
        v_add_u32 v5, 4096, v15
        v_add_u32 v6, 8192, v15
        v_mov_b32 v4, v15
        s_mov_b32 s62, 0x00003f80
        s_mov_b32 s63, 0x3f800000
        v_mov_b32 v24, {f2u(-1.4426950408889634):#x}
        v_mov_b32 v25, 1.0
        """)
        self.tr(p, "T", 1)
        p(W(vm="pst")); self.tr(p, "T", 2); p("s_barrier")
        p("buffer_store_dword v9, v8, s[12:15], s94 offen sc1")
        PB = 160
        def loads(parts):
            for part in parts:
                for c in range(9):
                    p(f"buffer_load_dword v{PB+part*9+c}, v{4+c//4}, s[12:15], s58 offen offset:{(c%4)*1024} sc1", tag=f"p{part}")
                p("s_add_u32 s58, s58, 9216")
        pl, chk = self.poll("pP1", 12, 47, "s59", 31, 1)
        p(pl)
        p(W(vm="x"))
        p(f"""v_lshlrev_b32 v20, 16, v20
        v_lshlrev_b32 v21, 16, v21
        v_and_b32 v7, 2, v0
        v_cmp_eq_u32 vcc, 0, v7""")
        for c in range(9): p(f"v_lshlrev_b32 v{84+2*c}, 16, v{XR+c}\nv_and_b32 v{85+2*c}, 0xffff0000, v{XR+c}")
        p("v_cndmask_b32 v22, v21, v20, vcc")
        p(chk); self.tr(p, "T", 3)
        loads(range(7)); self.tr(p, "T", 4)
        p(W(vm="p0")); self.tr(p, "T", 5)
        loads(range(7, 8))
        SA = 104; Y = 122
        self.tr(p, "T", 6)
        for part in range(8):
            p(W(vm=f"p{part}"))
            base = SA if part < 4 else Y
            for c in range(9):
                for h in range(2):
                    d = base + 2 * c + h
                    cin = "0" if part == 0 else (f"v{22 if c == 8 else 20 + (c & 1)}" if part == 4 else f"v{d}")
                    p(f"v_dot2_f32_bf16 v{d}, v{PB+part*9+c}, s{62+h}, {cin}")
        p("s_nop 2"); self.tr(p, "T", 7)
        T = 64
        for e in range(0, 18, 2): p(f"v_pk_mul_f32 {r2('v',T+e)}, {r2('v',Y+e)}, v[24:25] op_sel_hi:[1,0]")
        for e in range(18):
            p(f"v_exp_f32 v{T+e}, v{T+e}")
            if e % 2: p(f"v_pk_mul_f32 {r2('v',SA+e-1)}, {r2('v',SA+e-1)}, {r2('v',Y+e-1)}")
        for e in range(0, 18, 2): p(f"v_pk_add_f32 {r2('v',T+e)}, {r2('v',T+e)}, v[24:25] op_sel:[0,1] op_sel_hi:[1,1]")
        for e in range(18): p(f"v_rcp_f32 v{T+e}, v{T+e}")
        for e in range(0, 18, 2): p(f"v_pk_fma_f32 {r2('v',T+e)}, {r2('v',T+e)}, {r2('v',SA+e)}, {r2('v',84+e)}")
        for c in range(9): p(f"v_cvt_pk_bf16_f32 v{T+c*2}, v{T+2*c}, v{T+2*c+1}")
        for c in range(9):
            if c < 8: p(f"ds_write_b32 v12, v{T+2*c} offset:{(c&1)*16*288 + (c>>1)*64}")
            else: p(f"ds_write_b32 v13, v{T+2*c} offset:192")
        p("v_lshlrev_b32 v4, 4, v0\ns_waitcnt lgkmcnt(0)\ns_barrier")
        for i in range(3): p(f"ds_read_b128 {r4('v', 84+4*i)}, v4 offset:{4096*i}", tag=f"o{i}")
        for i in range(3):
            p(W(lg=f"o{i}"))
            p(f"buffer_store_dwordx4 {r4('v', 84+4*i)}, v{16+i}, s[48:51], s57 offen")
        if self.o.get("dbgts"):
            p("""s_waitcnt vmcnt(0)
            s_memrealtime s[66:67]
            s_waitcnt lgkmcnt(0)
            s_mov_b32 s54, 64
            s_mov_b32 s55, 0x20000
            v_mov_b32 v4, s64
            v_mov_b32 v5, s66
            s_lshl_b32 s3, s2, 3
            buffer_store_dwordx2 v[4:5], v8, s[52:55], s3 offen""")
        if self.o.get("trace"):
            self.tr(p, "T", 8); p("s_waitcnt vmcnt(0)"); self.tr(p, "T", 9); self.tr(p, "T", 10)
            p(f"s_lshl_b32 s3, s2, 10\ns_add_u32 s3, s3, {WS_TS}\nv_lshlrev_b32 v4, 2, v0\nbuffer_store_dword v1, v4, s[12:15], s3 offen")
        if self.ts:
            p("s_waitcnt vmcnt(0)"); self.stamp(p, 6)
            p(f"s_waitcnt lgkmcnt(0)\ns_mul_i32 s3, s2, {16*NST}\ns_add_u32 s3, s3, {WS_TS}")
            for i in range(NST):
                for e in range(4): p(f"v_mov_b32 v{4+e}, s{64+4*i+e}")
                p(f"buffer_store_dwordx4 v[4:7], v8, s[12:15], s3 offen offset:{16*i}\ns_nop 1")
        p("s_endpgm")
        return p

    def partF(self):
        nm = self.o.get("nm", 2); LA = self.LA
        p = Prog()
        FB = FBB
        p(f"""
        K_fallback:
        s_waitcnt vmcnt(0) lgkmcnt(0)
        s_mul_i32 s56, s18, 8448
        s_add_u32 s56, s56, {FB}
        v_lshrrev_b32 v4, 4, v2
        v_and_b32 v5, 15, v2
        """)
        for q in range(4):
            p(f"""v_add_u32 v6, {4*q}, v4
            v_xor_b32 v7, v6, v5
            v_lshlrev_b32 v7, 4, v7
            v_lshl_add_u32 v{48+q}, v6, 8, v7""")
        p(f"""
        v_lshlrev_b32 v6, 11, v4
        v_lshl_add_u32 v52, v5, 4, v6
        s_sub_u32 s3, s56, {TOP}
        v_add_u32 v53, s3, v14
        v_add_u32 v54, s3, v15
        v_add_u32 v55, s3, v16
        v_add_u32 v56, s3, v17
        v_add_u32 v57, s56, v19
        s_lshr_b32 s57, s19, 1
        s_lshl_b32 s57, s57, 19
        s_add_u32 s57, s57, {1536*256}
        """)
        def loadK():
            for q in range(8):
                p(f"s_add_u32 m0, s56, {1024*q}\ns_add_u32 s3, s58, {4096*(q//4)}\nbuffer_load_dwordx4 v{48+q%4}, s[28:31], s3 offen lds")
            p("s_waitcnt vmcnt(0)")
            p(self.readK(0, self.KB, ar=53)); p("s_waitcnt lgkmcnt(0)")
        for qt in range(4): p(f"v_mov_b32 v{40+qt}, 0xff800000")
        p("s_mov_b32 s58, s57\ns_mov_b32 s59, 16\nFB_l1:")
        loadK()
        p(self.QKf(True)); p("s_nop 7")
        p(self.maxf())
        p("s_add_u32 s58, s58, 8192\ns_sub_u32 s59, s59, 1\ns_cmp_lg_u32 s59, 0\ns_cbranch_scc1 FB_l1")
        p(self.maxfin())
        for qt in range(4): p(f"v_mov_b32 v{LA+qt}, 0")
        for i in range(128): p(f"v_accvgpr_write_b32 a{i}, 0")
        p("s_mov_b32 s58, s57\ns_mov_b32 s59, 16\nFB_l2:")
        loadK()
        p(self.QKf(False))
        for q in range(8):
            p(f"s_add_u32 m0, s56, {1056*q}\ns_add_u32 s3, s58, {256*q}\nbuffer_load_dwordx4 v52, s[32:35], s3 offen lds")
        SF = 116
        for e in range(32): p(f"v_exp_f32 v{SF+e}, v{SF+e}")
        for e in range(32): p(f"v_add_f32 v{LA+(e%16)//4}, v{LA+(e%16)//4}, v{SF+e}")
        PF = 148
        def pf(qt): return PF + 4 * qt if qt < 3 else 180
        for e in range(1, 32, 2):
            qt = (e % 16) // 4; h = e // 16
            p(f"v_cvt_pk_bf16_f32 v{pf(qt)+2*h+(e%4)//2}, v{SF+e-1}, v{SF+e}")
        p("s_waitcnt vmcnt(0)")
        p(self.readV(0, ar=57)); p("s_waitcnt lgkmcnt(0)")
        for dt in range(8):
            for qt in range(4):
                d = r4('a', (dt * 4 + qt) * 4)
                p(f"{MF} {d}, {r4('a', self.VB+dt*4)}, {r4('v', pf(qt))}, {d}")
        p("s_add_u32 s58, s58, 8192\ns_sub_u32 s59, s59, 1\ns_cmp_lg_u32 s59, 0\ns_cbranch_scc1 FB_l2")
        for sw in ("v_permlane16_swap_b32", "v_permlane32_swap_b32"):
            for qt in range(4): p(f"v_mov_b32 v{44+qt}, v{LA+qt}")
            p("s_nop 1")
            for qt in range(4): p(f"{sw} v{LA+qt}, v{44+qt}")
            for qt in range(4): p(f"v_add_f32 v{LA+qt}, v{LA+qt}, v{44+qt}")
        p("s_setpc_b64 s[6:7]")
        return p
    def QKf(self, zero):
        M = []
        for kt in range(2):
            for ks in range(4):
                for qt in range(4):
                    d = 116 + (kt * 4 + qt) * 4
                    c = ("0" if zero else r4('v', self.MN + 4 * qt)) if ks == 0 else r4('v', d)
                    M.append(I(f"{MF} {r4('v', d)}, {r4('a', self.KB+(kt*4+ks)*4)}, {r4('v', QF+(qt*4+ks)*4)}, {c}"))
        return M
    def maxf(self):
        mx = []
        for qt in range(4):
            r0 = 116 + qt * 4; r1 = r0 + 16; t = 40 + qt
            mx += L(f"v_max3_f32 v{t}, v{t}, v{r0}, v{r0+1}\nv_max3_f32 v{t}, v{t}, v{r0+2}, v{r0+3}\nv_max3_f32 v{t}, v{t}, v{r1}, v{r1+1}\nv_max3_f32 v{t}, v{t}, v{r1+2}, v{r1+3}")
        return mx

    def build(self):
        P0 = self.part0().s; PC = self.partC().s
        PO = self.partO().s; PU = self.partU().s; PT = self.partT().s; PF = self.partF().s
        seg = {}
        bad = 0
        for n2, x2 in (("O", PO), ("U", PU)):
            parts = [("0", P0), ("C", PC), (n2, x2), ("T", PT)]
            st = []
            for nme, x in parts: st += [I(f"SEG_{nme}:")] + x
            st = resolve(st)
            bad += check(st, n2)
            cur = None; d = {}
            for ins in st:
                if ins.t.startswith("SEG_"): cur = ins.t[4:-1]; d[cur] = []
                else: d[cur].append(ins)
            for k, v in d.items():
                if k in seg: assert [x.t for x in seg[k]] == [x.t for x in v], f"segment {k} differs on path {n2}"
                else: seg[k] = v
        bad += check(PF, "F")
        assert not bad
        body = []
        for k in "0COUT": body += fold(seg[k], "s10", "K" + k)
        for _, sp in self.spins: body += sp
        body += PF
        return body

import subprocess, os, re as _re
def wrap(body):
    name = KNAME + "_kernel"
    t = text(body).replace("ALIGN:", "  s_branch K_main\n.p2align 12\nK_main:")
    out = ["; @launch grid=(256,1,1) block=(256,1,1) lds=163840", '.amdgcn_target "amdgcn-amd-amdhsa--gfx950"\n.text',
           kernel_header(name) + t + "K_end:\n  s_endpgm", '.section .rodata,"a"', ".p2align 6",
           kernel_desc(name, 512, sgpr=102, accum=256).replace(".end_amdhsa_kernel", "  .amdhsa_float_denorm_mode_32 3\n.end_amdhsa_kernel")]
    return "\n".join(out) + "\n"
def sizes(body):
    open("_sz.s", "w").write(wrap(body))
    subprocess.run(["clang", "-x", "assembler", "-target", "amdgcn-amd-amdhsa", "-mcpu=gfx950", "-c", "_sz.s", "-o", "_sz.o"], check=True)
    d = subprocess.run(["llvm-objdump", "-d", "--mcpu=gfx950", "_sz.o"], capture_output=True, text=True).stdout
    d = d[d.index("<K_main>:"):]
    return [4 * len(m.group(1).split()) for m in _re.finditer(r"// [0-9A-F]{12}: ((?:[0-9A-F]{8} ?)+)", d)]
def add_touch(body):
    def entry(n, heads):
        c = ["s_mov_b64 exec, 0"]
        if n == 2: c += ["s_cmp_ge_u32 s16, 4", "s_cbranch_scc1 TE_2U"]
        def lad(hs):
            r = []
            for w in range(3): r += [f"s_cmp_eq_u32 s18, {w}", f"s_cbranch_scc1 {hs[w]}"]
            return r + [f"s_branch {hs[3]}"]
        c += lad(heads[0])
        if n == 2: c += ["TE_2U:"] + lad(heads[1])
        c += [f"TR_{n}:", "s_mov_b64 exec, -1"]
        return [I(x) for x in c]
    def expand(b, H):
        out = []
        for x in b:
            if x.t.startswith("TOUCH_"): out += entry(int(x.t[6]), H[int(x.t[6])])
            else: out.append(x)
        return out
    dummy = {1: [["TR_1"] * 4], 2: [["TR_2"] * 4] * 2}
    b1 = expand(body, dummy)
    sz = sizes(b1)
    k0 = [x.t for x in b1].index("ALIGN:")
    out = list(b1[:k0 + 1]); addr = 0; si = 0; page = 0; pend = False
    pts = ["1"]; region = "1"
    out += [I("TP_0:"), I("TPB_0")]; addr += 4
    for x in b1[k0 + 1:]:
        lab = x.t.endswith(":")
        if lab:
            if x.t == "TR_1:": region = "1"
            if x.t == "TR_2:": region = "2c"
            if x.t == "K_O:": region = "O"
            if x.t == "K_U:": region = "U"
            if x.t == "K_tail:": region = "T"
            if x.t.startswith("SP_") or x.t == "K_fallback:": region = "x"
            out.append(x)
            if x.t in ("K_U:", "K_tail:"):
                pts.append(region); out += [I(f"TP_{len(pts)-1}:"), I(f"TPB_{len(pts)-1}")]; addr += 4
            continue
        out.append(x); addr += sz[si]; si += 1
        if addr // 4096 > page: page = addr // 4096; pend = True
        if pend and region not in ("pre", "x"):
            off = addr % 4096
            ok = x.op().startswith("v_mfma") or off >= 40
            if "exec, 0xffff" in x.t or x.op() in ("s_cmp_eq_u32", "s_cmp_lg_u32", "s_branch") : ok = ok and False
            if ok:
                assert off <= 60, off
                pts.append(region); out += [I(f"TP_{len(pts)-1}:"), I(f"TPB_{len(pts)-1}")]; addr += 4; pend = False
        elif pend: pend = False
    nxt = {}; H = {}
    def chain(ids, ret):
        heads = []
        for w in range(4):
            c = ids[w::4]
            for a, b_ in zip(c, c[1:] + [None]): nxt[a] = f"TP_{b_}" if b_ is not None else ret[w]
            heads.append(f"TP_{c[0]}" if c else ret[w])
        return heads
    sel = lambda r: [i for i, q in enumerate(pts) if q in r]
    H[1] = [chain(sel(("1",)), ["TR_1"] * 4)]
    com = chain(sel(("2c", "T")), ["TR_2"] * 4)[::-1]
    H[2] = [chain(sel(("O",)), com), chain(sel(("U",)), com)]
    res = []; skip = 0
    ent = {n: entry(n, H[n]) for n in (1, 2)}
    dm = {n: [y.t for y in entry(n, dummy[n])] for n in (1, 2)}
    k = 0
    while k < len(out):
        x = out[k]
        done = False
        if x.t == "s_mov_b64 exec, 0":
            for n in (2, 1):
                if [y.t for y in out[k:k + len(dm[n])]] == dm[n]:
                    res += ent[n]; k += len(dm[n]); done = True; break
            assert done, "touch point inside entry code"
            continue
        if x.t.startswith("TPB_"): res.append(I(f"s_cbranch_execz {nxt[int(x.t[4:])]}"))
        else: res.append(x)
        k += 1
    return res, pts
def build(fname, opts={}, ts=False):
    g = Gen(opts, ts)
    body = g.build()
    if opts.get("touch", 1):
        body, pts = add_touch(body)
    open(fname, "w").write(wrap(body))

if __name__ == "__main__":
    build("v11.s"); build("v11_ts.s", ts=True); build("v11_fb.s", {"thr": 0x3f800000})
    for ph in "AQSGC2T": build(f"v11_tr{ph}.s", {"trace": ph})
```

```python
import sys, struct
from fw2 import *
from asmlib import kernel_header, kernel_desc, KNAME

WS_OF = 0
WS_UF = 16 << 20
WS_HF = 22 << 20
WS_ST = 25 << 20
WS_FO = WS_ST + 65536
WS_FU = WS_FO + 4096
WS_FP = WS_FU + 4096
WS_PART = 26 << 20
WS_TS = 60 << 20
WS_SIZE = 64 << 20
MF = "v_mfma_f32_16x16x32_bf16"
def f2u(x): return struct.unpack("<I", struct.pack("<f", x))[0]
CS_Q = f2u(128 ** -0.5 * 1.4426950408889634)
def r4(k, i): return f"{k}[{i}:{i+3}]"
def r2(k, i): return f"{k}[{i}:{i+1}]"
def srd(d, lo, nbytes): return f"s_mov_b32 s{d}, s{lo}\ns_mov_b32 s{d+1}, s{lo+1}\ns_mov_b32 s{d+2}, {nbytes}\ns_mov_b32 s{d+3}, 0x20000"
def flat(G):
    out = []
    for g in G:
        out.extend(g)
        if "m0" in g[-1].t: out.append(I("s_nop 0"))
    return out

XS = 32768; WB = 98304; WSL = 8448
HSB = 148992; CSB = 158208
MSL = 29184; NM = 5; MB = 0
CB = 58368; CSL = 16640; K0B = 75008; FBB = 104448; TOP = CB
def cs(n): return (n + 2) % 6
def kblk(n): return K0B if n == 0 else CB + cs(n - 1) * CSL
def vblk(n): return CB + cs(n) * CSL + 8192
QF = 192
MIX = 1
NST = 7

class Gen:
    def __init__(self, opts, ts):
        self.o = opts; self.ts = ts; self.spins = []
    def tr(self, p, ph, idx):
        if self.o.get("trace") != ph or idx > 63: return
        if idx > 0: p(f"s_waitcnt lgkmcnt(0)\nv_writelane_b32 v1, s96, {idx-1}")
        p("s_memtime s[96:97]")
        self.lasttr = idx
    def stamp(self, p, i):
        if self.ts: p(f"s_memtime s[{64+4*i}:{65+4*i}]\ns_memrealtime s[{66+4*i}:{67+4*i}]")
    def poll(self, name, srdn, vaddr, soff, vdst, expect):
        cmpop = "v_cmp_gt_u32"
        ld = f"buffer_load_dword v{vdst}, v{vaddr}, s[{srdn}:{srdn+3}], {soff} offen sc1"
        chk = [W(vm=name), I(f"{cmpop} s[6:7], {expect}, v{vdst}"), I("s_cmp_lg_u64 s[6:7], 0"), I(f"s_cbranch_scc1 SP_{name}"), I(f"RT_{name}:")]
        if name not in [s[0] for s in self.spins]:
            self.spins.append((name, L(f"""SP_{name}:
            s_mov_b32 s98, 0x80000
            SQ_{name}:
            s_sleep {self.o.get('slp', 4)}
            {ld}
            s_sub_u32 s98, s98, 1
            s_cbranch_scc1 RT_{name}
            s_waitcnt vmcnt(0)
            {cmpop} s[6:7], {expect}, v{vdst}
            s_cmp_lg_u64 s[6:7], 0
            s_cbranch_scc1 SQ_{name}
            s_branch RT_{name}""")))
        return I(ld, tag=name), chk

    def w0poll(self, pl, chk, nme):
        pl.cond = True
        return [I("s_cmp_lg_u32 s18, 0"), I(f"s_cbranch_scc1 W0_{nme}"), pl, I("s_waitcnt vmcnt(0)")] + chk[1:] + [I(f"W0_{nme}:"), I("s_barrier")]

    def part0(self):
        o = self.o; p = Prog()
        p("s_cmp_ge_u32 s2, 256\ns_cbranch_scc1 K_end")
        self.stamp(p, 0)
        if o.get("dbgts"): p("s_memrealtime s[64:65]")
        p(f"""
        s_load_dwordx8 s[20:27], s[0:1], 0
        s_load_dwordx2 s[40:41], s[0:1], 32
        s_load_dwordx4 s[36:39], s[0:1], 48
        s_load_dwordx8 s[44:51], s[0:1], 64
        s_load_dwordx2 s[12:13], s[0:1], 96
        s_getpc_b64 s[10:11]
        K_pc:
        s_lshr_b32 s63, s2, 3
        s_lshl_b32 s3, s63, 12
        v_lshl_add_u32 v4, v0, 4, s3
        v_min_u32 v4, K_end - K_pc - 16, v4
        global_load_dwordx4 v[240:243], v4, s[10:11]
        """)
        self.tr(p, "A", 0)
        p(f"""
        v_and_b32 v2, 63, v0
        v_lshrrev_b32 v3, 6, v0
        s_and_b32 s16, s2, 3
        v_readfirstlane_b32 s18, v3
        s_bfe_u32 s4, s2, 0x10002
        s_lshl1_add_u32 s62, s16, s4
        s_and_b32 s3, s63, 4
        s_add_u32 s16, s16, s3
        s_lshr_b32 s17, s63, 3
        s_lshl2_add_u32 s17, s4, s17
        s_and_b32 s3, s63, 3
        s_lshl2_add_u32 s17, s17, s3
        s_and_b32 s19, s16, 3
        s_lshl_b32 s19, s19, 3
        s_lshr_b32 s3, s16, 2
        s_lshl_b32 s3, s3, 2
        s_add_u32 s19, s19, s3
        s_and_b32 s3, s17, 3
        s_add_u32 s19, s19, s3
        s_lshr_b32 s5, s17, 2
        s_lshl_b32 s5, s5, 2
        s_add_u32 s5, s5, s18
        v_lshlrev_b32 v3, 4, v2
        v_lshrrev_b32 v4, 3, v2
        v_and_b32 v5, 7, v2
        v_lshrrev_b32 v6, 1, v4
        v_xor_b32 v6, v6, v5
        v_mul_u32_u24 v4, 1152, v4
        s_mul_i32 s3, s5, {64*1152}
        v_add_u32 v4, s3, v4
        v_lshl_add_u32 v10, v6, 4, v4
        v_xor_b32 v6, 4, v6
        v_lshl_add_u32 v11, v6, 4, v4
        v_add_u32 v11, {8*1152-1024}, v11
        """)
        for q in range(2, 8):
            p(f"v_add_u32 v{10+q}, {(q & ~1)*8*1152 - ((q & 3) - (q & 1))*1024}, v{10+(q&1)}")
        p(f"""
        v_lshrrev_b32 v4, 4, v2
        v_and_b32 v5, 1, v4
        v_lshlrev_b32 v5, 2, v5
        v_lshrrev_b32 v4, 1, v4
        v_lshl_add_u32 v4, v4, 4, v5
        s_and_b32 s3, s18, 1
        s_lshl_b32 s3, s3, 1
        s_lshr_b32 s4, s18, 1
        s_lshl_b32 s4, s4, 3
        s_add_u32 s3, s3, s4
        v_add_u32 v4, s3, v4
        v_lshlrev_b32 v4, 13, v4
        v_and_b32 v5, 15, v2
        v_lshl_add_u32 v4, v5, 4, v4
        s_lshl_b32 s3, s19, 8
        v_add_u32 v18, s3, v4
        v_add_u32 v19, {8192-1056}, v18
        s_lshl_b32 s56, s18, 13
        s_mul_i32 s57, s18, {2*1056}
        s_mov_b32 s58, 0
        s_mov_b32 s59, 0
        v_and_b32 v196, 31, v0
        v_lshrrev_b32 v197, 5, v0
        v_and_b32 v198, 3, v197
        v_lshrrev_b32 v199, 2, v197
        v_lshl_add_u32 v198, v199, 4, v198
        s_lshr_b32 s3, s2, 2
        s_lshl_b32 s3, s3, 5
        s_and_b32 s4, s2, 3
        s_lshl_b32 s4, s4, 2
        s_add_u32 s3, s3, s4
        v_add_u32 v198, s3, v198
        v_mul_u32_u24 v199, 1152, v198
        v_lshl_add_u32 v199, v196, 2, v199
        s_waitcnt lgkmcnt(0)
        {srd(28, 22, 16*2048*256)}
        {srd(32, 24, 16*2048*256)}
        {srd(24, 26, 576*8192)}
        s_mov_b32 s22, {2048*1152}
        s_mov_b32 s23, 0x20000
        """)
        self.tr(p, "A", 1)
        ntq = " nt" if o.get("ntq", 0) else ""
        def dmaX(h):
            n = h // 2; half = h % 2
            G = [[I(f"s_add_u32 m0, s56, {(n % 3)*XS + half*4096}")]]
            for q in range(4):
                G.append([I(f"buffer_load_dwordx4 v{10+4*half+q}, s[20:23], s58 offen offset:{1024*q}{ntq} lds", tag=f"x{n}")])
            if half: G.append([I("s_add_u32 s58, s58, 128")])
            return G
        def dmaW(t):
            return [[I(f"s_add_u32 m0, s57, {WB + (t % 6)*WSL}")],
                    [I(f"buffer_load_dwordx4 v18, s[24:27], s59 offen{ntq} lds", tag=f"w{t}")],
                    [I(f"buffer_load_dwordx4 v19, s[24:27], s59 offen offset:1056{ntq} lds", tag=f"w{t}")],
                    [I(f"s_add_u32 s59, s59, {32*8192}")]]
        HR = 202
        for t in range(9): p(f"buffer_load_dword v{HR+t}, v199, s[20:23], 0 offen offset:{128*t}", tag="hx")
        p(flat(dmaW(0) + dmaX(0) + dmaX(1) + dmaW(1)))
        self.tr(p, "A", 2)
        p(f"""
        s_mov_b32 s14, {WS_SIZE}
        s_mov_b32 s15, 0x20000
        s_mov_b32 s100, s38
        s_mov_b32 s101, s39
        s_mov_b32 s38, {2048*9216}
        s_mov_b32 s39, 0x20000
        s_mov_b32 s6, s44
        s_mov_b32 s7, s45
        s_cmp_lt_u32 s16, 4
        s_cselect_b32 s40, s40, s44
        s_cselect_b32 s41, s41, s45
        s_mov_b32 s3, {4608*4096}
        s_cselect_b32 s42, {4096*1152}, s3
        s_mov_b32 s43, 0x20000
        {srd(52, 50, 256)}
        s_mov_b32 s50, {2048*1152}
        s_mov_b32 s51, 0x20000
        v_mov_b32 v201, 0x7fff0000
        v_cmp_eq_u32 vcc, 0, v0
        v_mov_b32 v9, 1
        v_mov_b32 v7, 0
        v_cndmask_b32 v8, v201, v7, vcc
        s_min_u32 s3, s63, 26
        s_mul_i32 s4, s62, 27
        s_add_u32 s3, s3, s4
        s_mul_i32 s8, s3, 10923
        s_lshr_b32 s8, s8, 16
        s_mul_i32 s4, s8, 6
        s_sub_u32 s9, s3, s4
        s_lshr_b32 s4, s62, 1
        s_mul_i32 s4, s4, 10
        s_add_u32 s3, s3, s4
        s_lshl_b32 s3, s3, 2
        s_add_u32 s45, s3, {WS_FU}
        s_lshl_b32 s4, s2, 2
        s_add_u32 s4, s4, {WS_FU + 1024}
        s_cmp_ge_u32 s63, 27
        s_cselect_b32 s45, s4, s45
        s_cselect_b32 s94, 0x7f000000, 0
        s_lshr_b32 s3, s19, 3
        s_lshl_b32 s3, s3, 3
        s_lshr_b32 s4, s17, 2
        s_add_u32 s3, s3, s4
        s_lshl_b32 s3, s3, 5
        s_and_b32 s4, s19, 7
        s_add_u32 s3, s3, s4
        s_lshl_b32 s3, s3, 2
        s_add_u32 s44, s3, {WS_FO}
        s_lshl_b32 s95, s17, 5
        s_add_u32 s95, s95, s16
        s_lshl_b32 s95, s95, 2
        s_add_u32 s95, s95, {WS_FP}
        v_lshrrev_b32 v4, 4, v2
        v_bfe_u32 v5, v2, 2, 2
        v_and_b32 v6, 1, v4
        v_lshl_add_u32 v5, v6, 2, v5
        v_mul_u32_u24 v5, 1056, v5
        v_lshrrev_b32 v6, 1, v4
        v_lshl_add_u32 v5, v6, 9, v5
        v_and_b32 v6, 3, v2
        v_lshl_add_u32 v5, v6, 3, v5
        v_add_u32 v5, {WB}, v5
        """)
        for kp in range(4):
            p(f"s_xor_b32 s3, s18, {kp}\ns_lshl_b32 s3, s3, 6\nv_add_u32 v{20+kp}, s3, v5")
        p(f"""
        v_and_b32 v5, 15, v2
        v_lshrrev_b32 v6, 1, v5
        v_xor_b32 v6, v6, v4
        v_lshlrev_b32 v5, 7, v5
        v_add_u32 v5, s56, v5
        v_lshl_add_u32 v24, v6, 4, v5
        v_xor_b32 v6, 4, v6
        v_lshl_add_u32 v25, v6, 4, v5
        v_add_u32 v26, 65536, v24
        v_add_u32 v27, 65536, v25
        """)
        for e in range(4): p(f"v_mov_b32 v{36+e}, 0x3f803f80")
        p(f"""
        v_lshrrev_b32 v4, 4, v2
        v_lshlrev_b32 v4, 3, v4
        s_lshr_b32 s3, s18, 1
        s_lshl_b32 s3, s3, 5
        s_and_b32 s4, s18, 1
        s_lshl_b32 s4, s4, 2
        s_add_u32 s3, s3, s4
        v_add_u32 v4, s3, v4
        v_mul_u32_u24 v4, 9216, v4
        v_and_b32 v5, 15, v2
        v_lshl_add_u32 v4, v5, 4, v4
        s_lshl_b32 s3, s8, 8
        s_add_u32 s3, s3, s94
        v_add_u32 v28, s3, v4
        v_add_u32 v29, {9216-1056}, v28
        v_add_u32 v30, {2*(9216-1056)}, v28
        v_add_u32 v31, {3*(9216-1056)}, v28
        s_lshr_b32 s3, s18, 1
        s_mul_i32 s3, s3, 36
        s_mul_i32 s4, s9, 6
        s_add_u32 s3, s3, s4
        s_and_b32 s4, s18, 1
        s_mul_i32 s4, s4, 3
        s_add_u32 s3, s3, s4
        s_lshl_b32 s3, s3, 10
        s_add_u32 s3, s3, {WS_HF}
        s_add_u32 s3, s3, s94
        v_add_u32 v32, s3, v3
        s_mul_i32 s60, s18, {4*1056}
        s_mul_i32 s61, s18, 3072
        s_add_u32 s61, s61, 16896
        v_and_b32 v5, 15, v2
        s_lshl_b32 s3, s5, 9
        s_add_u32 s3, s3, {WS_ST}
        v_lshl_add_u32 v33, v5, 3, s3
        v_lshlrev_b32 v192, 2, v2
        s_lshl2_add_u32 s99, s63, s18
        s_mul_i32 s3, s99, 9216
        s_mul_i32 s4, s62, 9
        s_lshr_b32 s4, s4, 1
        s_lshl_b32 s4, s4, 8
        s_add_u32 s3, s3, s4
        s_mov_b32 s62, 0
        s_mov_b32 s63, 0
        v_lshl_add_u32 v5, v2, 7, s3
        v_cmp_gt_u32 vcc, 10, v2
        s_mov_b32 s11, 0
        s_lshl_b32 s3, s8, 8
        v_cndmask_b32 v237, v201, v5, vcc
        s_and_b32 s4, s18, 1
        s_lshl_b32 s4, s4, 7
        s_add_u32 s3, s3, s4
        v_lshrrev_b32 v4, 4, v2
        v_lshl_add_u32 v233, v4, 3, s3
        v_lshlrev_b32 v200, 3, v198
        v_add_u32 v200, {WS_ST}, v200
        v_cmp_eq_u32 vcc, 0, v196
        v_mul_u32_u24 v195, 1152, v197
        v_lshl_add_u32 v195, v196, 2, v195
        v_cndmask_b32 v200, v201, v200, vcc
        v_add_u32 v195, {HSB}, v195
        v_bfe_u32 v4, v0, 2, 2
        v_mul_u32_u24 v4, 1152, v4
        v_and_b32 v5, 3, v0
        v_lshl_add_u32 v4, v5, 3, v4
        v_lshrrev_b32 v5, 4, v0
        v_lshl_add_u32 v194, v5, 5, v4
        v_add_u32 v194, {HSB}, v194
        v_and_b32 v4, 15, v0
        v_lshlrev_b32 v4, 4, v4
        v_lshl_add_u32 v4, v5, 10, v4
        s_lshr_b32 s3, s2, 2
        s_mul_i32 s3, s3, {36*1024}
        s_and_b32 s4, s2, 3
        s_lshl_b32 s4, s4, 8
        s_add_u32 s3, s3, s4
        s_add_u32 s3, s3, {WS_HF}
        v_add_u32 v238, s3, v4
        v_cmp_gt_u32 vcc, 64, v0
        v_add_u32 v239, 16384, v238
        v_add_u32 v211, 32768, v238
        v_cndmask_b32 v211, v201, v211, vcc
        s_and_b32 s93, s2, 0xfc
        """)
        self.tr(p, "A", 3)
        p(flat(dmaX(2) + dmaW(2) + dmaX(3) + dmaW(3)))
        self.tr(p, "A", 4)
        X = 212; h = [W(vm="hx")]
        def red32(vs, ts):
            c = []
            for n in (8, 4, 2, 1):
                c += L(f"s_nop {2 - len(vs)}")
                for v in vs: c += L(f"v_add_f32_dpp v{v}, v{v}, v{v} row_ror:{n} row_mask:0xf bank_mask:0xf")
            for v, t in zip(vs, ts): c += L(f"v_mov_b32 v{t}, v{v}")
            c += L("s_nop 1")
            for v, t in zip(vs, ts): c += L(f"v_permlane16_swap_b32 v{v}, v{t}")
            for v, t in zip(vs, ts): c += L(f"v_add_f32 v{v}, v{v}, v{t}")
            return c
        def unpack():
            c = []
            for t in range(9): c += L(f"v_lshlrev_b32 v{X+2*t}, 16, v{HR+t}\nv_and_b32 v{X+2*t+1}, 0xffff0000, v{HR+t}")
            return c
        xp = lambda t: r2('v', X + 2 * t)
        h += unpack() + L(f"v_pk_add_f32 v[230:231], {xp(0)}, {xp(1)}")
        for t in range(2, 9): h += L(f"v_pk_add_f32 v[230:231], v[230:231], {xp(t)}")
        h += L("v_add_f32 v234, v230, v231")
        h += red32([234], [230]) + L(f"v_mul_f32 v234, {f2u(-1.0/576):#x}, v234")
        for t in range(9): h += L(f"v_pk_add_f32 {xp(t)}, {xp(t)}, v[234:235] op_sel_hi:[1,0]")
        h += L(f"v_pk_mul_f32 v[230:231], {xp(0)}, {xp(0)}")
        for t in range(1, 9): h += L(f"v_pk_fma_f32 v[230:231], {xp(t)}, {xp(t)}, v[230:231]")
        h += L("v_add_f32 v231, v230, v231")
        h += red32([231], [230])
        h += L(f"v_mov_b32 v230, {f2u(1e-5):#x}\nv_fmac_f32 v230, {f2u(1.0/576):#x}, v231\nv_rsq_f32 v230, v230\ns_nop 0")
        for t in range(9): h += L(f"v_pk_mul_f32 {xp(t)}, {xp(t)}, v[230:231] op_sel_hi:[1,0]")
        for t in range(9): h += L(f"v_cvt_pk_bf16_f32 v{HR+t}, v{X+2*t}, v{X+2*t+1}")
        h += L(f"v_mul_f32 v235, {CS_Q:#x}, v230")
        h += unpack() + L(f"v_pk_add_f32 v[230:231], {xp(0)}, {xp(1)}\nv_pk_mul_f32 v[244:245], {xp(0)}, {xp(0)}\nv_pk_fma_f32 v[244:245], {xp(1)}, {xp(1)}, v[244:245]")
        for t in range(2, 9): h += L(f"v_pk_add_f32 v[230:231], v[230:231], {xp(t)}\nv_pk_fma_f32 v[244:245], {xp(t)}, {xp(t)}, v[244:245]")
        h += L("v_add_f32 v231, v230, v231\nv_add_f32 v232, v244, v245")
        h += red32([231, 232], [230, 193])
        h += L(f"""v_mul_f32 v231, {f2u(-1.0/576):#x}, v231
        v_mov_b32 v230, {f2u(1e-5):#x}
        v_fmac_f32 v230, {f2u(1.0/576):#x}, v232
        v_fma_f32 v230, -v231, v231, v230
        v_rsq_f32 v230, v230
        s_nop 0
        v_mul_f32 v231, v231, v230""")
        for t in range(9): h += L(f"v_pk_fma_f32 {xp(t)}, {xp(t)}, v[230:231], v[230:231] op_sel:[0,0,1] op_sel_hi:[1,0,1]")
        for t in range(9): h += L(f"v_cvt_pk_bf16_f32 v{HR+t}, v{X+2*t}, v{X+2*t+1}")
        for t in range(9): h += L(f"ds_write_b32 v195, v{HR+t} offset:{128*t}")
        p(h)
        hrd = [I(f"ds_read_b64_tr_b16 v[{244+4*i+2*k}:{245+4*i+2*k}], v194 offset:{512*i + 4608*k}") for i in range(3) for k in range(2)]
        hst = [[I(f"buffer_store_dwordx4 v[{244+4*i}:{247+4*i}], v{(238, 239, 211)[i]}, s[12:15], 0 offen sc1", tag="hst")] for i in range(3)]

        hst += [[I("buffer_store_dwordx2 v[234:235], v200, s[12:15], 0 offen sc1", tag="hst")]]
        hst += [[I(f"buffer_store_dword v7, v8, s[12:15], {sr} offen sc1", tag="hst")] for sr in ("s44", "s45", "s95")]
        if o.get("touch", 1): p("TOUCH_1:")
        p("ALIGN:")
        p(W(vm=["x0", "w0"], lg=0)); self.tr(p, "A", 5); p("s_barrier"); self.tr(p, "A", 6)
        self.stamp(p, 1)
        def qA(s, t): return 48 * s + 4 * t
        def qB(s, q): return 48 * s + 32 + 4 * q
        self.qacc = qacc = lambda t, q: 64 + (t * 4 + q) * 4
        CSA = 56
        def qreads(t):
            s = t % 2; n = t // 2; kk = t % 2; sl = n % 3
            R = [I(f"ds_read_b128 {r4('a', qB(s,q))}, v{24 + kk + (2 if sl == 2 else 0)} offset:{(sl & 1)*XS*(sl != 2) + 2048*q}") for q in range(4)]
            for tl in range(8):
                for hh in range(2):
                    R.append(I(f"ds_read_b64_tr_b16 {r2('a', qA(s,tl)+2*hh)}, v{20+tl//2} offset:{(t % 6)*WSL + (tl & 1)*32 + hh*256}"))
            return R
        p(qreads(0)); p(hrd)
        p(W(vm=["w1"], lg=0)); p("s_barrier"); self.tr(p, "A", 7); self.tr(p, "A", 8)
        hs = " sc1" if o.get("sc1dma", 1) else ""
        def dmaM(n):
            b = n * MSL if n < NM else "s93"
            G = [[I(f"s_add_u32 m0, s60, {b}")]]
            for q in range(4): G.append([I(f"buffer_load_dwordx4 v{28+q}, s[36:39], s62 offen offset:{1056*q} lds", tag=f"m{n}")])
            G.append([I(f"s_add_u32 s62, s62, {64*9216}")])
            G.append([I(f"s_add_u32 m0, s61, {b}")])
            for q in range(3): G.append([I(f"buffer_load_dwordx4 v32, s[12:15], s63 offen offset:{1024*q}{hs} lds", tag=f"m{n}")])
            G.append([I(f"s_add_u32 s63, s63, {2*36*1024}")])
            return G
        self.dmaM = dmaM
        pl, chk = self.poll("pH", 52, 192, 0, 193, 4)
        nx = 4; nw = 4; bg = None
        CH = o.get("ch", 14)
        for t in range(18):
            s = t % 2; M = []
            for tl in range(8):
                for q in range(4):
                    d = r4('v', qacc(tl, q))
                    M.append(I(f"{MF} {d}, {r4('a', qA(s,tl))}, {r4('a', qB(s,q))}, {'0' if t == 0 else d}"))
                if tl < 2:
                    d = r4('v', CSA + 4 * tl)
                    M.append(I(f"{MF} {d}, {r4('a', qA(s,tl))}, v[36:39], {'0' if t == 0 else d}"))
            n = len(M); g = Gaps(n)
            if t < 17:
                need = [f"w{t+2}", f"x{(t+2)//2}"] if t + 2 < 18 else []
                if t == 2: need.append("hst")
                g.tail(n - 1, [W(vm=need or None, lg=0), I("s_barrier")])
            D = []
            for _ in range(2 if t == 0 else 1):
                if nx < 18 and nx <= t + 5: D += dmaX(nx); nx += 1
            for _ in range(2 if t in (1, 2) else 1):
                if nw < 18 and nw <= t + 6: D += dmaW(nw); nw += 1
            if t == 4: D += [[I(f"global_load_dwordx2 v[{40+2*f}:{41+2*f}], v233, s[100:101] offset:{32*f}")] for f in range(4)]
            if t == 0: D = hst + D
            if t == 3: D = [[I("buffer_atomic_add v9, v8, s[52:55], s93 offen sc1")]] + D
            if t == CH - 2: D += [[pl]]
            if t == 12: D = [[I("s_mov_b32 s24, s6")], [I("s_mov_b32 s25, s7")], [I(f"s_mov_b32 s26, {4608*4096}")]] + D
            if t == 13: D += dmaM(0)[:6]
            if t == CH: D += [chk] + dmaM(0)[6:] + [[I(f"buffer_load_dwordx2 v[{48+2*q}:{49+2*q}], v33, s[12:15], 0 offen offset:{128*q} sc1", tag="st")] for q in range(4)]
            if t == 15: D += dmaM(1)
            if t == 17: D += dmaM(2)
            if t in o.get("pf1", range(5, 17)): D = D + [[I("buffer_load_dword v236, v237, s[36:39], s11 offen")], [I(f"s_add_u32 s11, s11, {128*9216}")]]
            if D: g.spread(D, 0, n - 3)
            if t < 17: g.spread(qreads(t + 1), 0, n - 8)
            if t == 13:
                bg = self.core_setup()
                for f in range(4):
                    bg += L(f"""v_lshlrev_b32 v4, 16, v{40+2*f}
                    v_and_b32 v5, 0xffff0000, v{40+2*f}
                    v_lshlrev_b32 v6, 16, v{41+2*f}
                    v_and_b32 v7, 0xffff0000, v{41+2*f}""")
                    for e in range(4): bg += L(f"v_accvgpr_write_b32 a{240+4*f+e}, v{4+e}")
            if 13 <= t <= 16: bg = g.fill(bg, 0, n - 2)
            if t == 17:
                fin = L(f"""
                v_lshrrev_b32 v4, 4, v2
                s_lshl_b32 s3, s18, 7
                s_add_u32 s3, s3, {CSB}
                v_lshl_add_u32 v20, v4, 4, s3
                v_xor_b32 v21, 128, v20
                v_xor_b32 v22, 256, v20
                v_xor_b32 v23, 384, v20
                s_and_b32 s3, s18, 1
                s_lshl_b32 s3, s3, 7
                v_add_u32 v26, s3, v19
                s_lshr_b32 s3, s18, 1
                s_mul_i32 s3, s3, 3072
                s_add_u32 s3, s3, 16896
                v_add_u32 v27, s3, v3
                v_mov_b32 v24, v26
                v_mov_b32 v25, v27
                s_mov_b32 s92, 0""")
                assert not g.fill(fin, 0, 18)
                g.put(20, I(f"ds_write_b128 v20, v[{CSA}:{CSA+3}]")); g.put(22, I(f"ds_write_b128 v20, v[{CSA+4}:{CSA+7}] offset:64"))
            self.tr(p, "Q", t)
            p(g.weave(M))
        assert not bg
        self.tr(p, "Q", 18); self.tr(p, "Q", 19)
        self.stamp(p, 2)
        p("s_cmp_lg_u32 s94, 0\ns_cbranch_scc1 K_skip")
        return p

    def core_setup(self):
        c = L(f"""
        v_lshrrev_b32 v4, 4, v2
        s_lshl_b32 s3, s18, 3
        v_add_u32 v4, s3, v4
        v_and_b32 v5, 15, v2
        v_and_b32 v6, 15, v4
        v_xor_b32 v6, v5, v6
        v_lshlrev_b32 v6, 4, v6
        v_lshl_add_u32 v10, v4, 8, v6
        v_add_u32 v4, 4, v4
        v_and_b32 v6, 15, v4
        v_xor_b32 v6, v5, v6
        v_lshlrev_b32 v6, 4, v6
        v_lshl_add_u32 v11, v4, 8, v6
        v_subrev_u32 v11, 1024, v11
        v_lshrrev_b32 v4, 4, v2
        v_lshlrev_b32 v4, 3, v4
        s_lshl_b32 s3, s18, 1
        v_add_u32 v4, s3, v4
        v_lshlrev_b32 v5, 4, v5
        v_lshl_add_u32 v12, v4, 8, v5
        v_add_u32 v12, 1024, v12
        v_add_u32 v13, {256-1056}, v12
        s_lshr_b32 s58, s19, 1
        s_lshl_b32 s58, s58, 19
        s_add_u32 s58, s58, {1536*256}
        s_sub_u32 s59, s58, 1024
        s_lshl_b32 s56, s18, 11
        s_mul_i32 s57, s18, {2*1056}
        v_and_b32 v4, 15, v2
        v_lshrrev_b32 v5, 4, v2
        v_lshrrev_b32 v6, 1, v5
        v_and_b32 v7, 1, v5
        v_lshl_add_u32 v5, v7, 1, v6
        v_lshlrev_b32 v7, 8, v4
        v_add_u32 v7, {TOP}, v7
        """)
        for kp in range(4):
            c += L(f"""s_xor_b32 s3, s18, {kp}
            s_lshl_b32 s3, s3, 2
            v_add_u32 v6, s3, v5
            v_xor_b32 v6, v6, v4
            v_lshl_add_u32 v{14+kp}, v6, 4, v7""")
        c += L(f"""v_lshrrev_b32 v4, 2, v2
        v_and_b32 v5, 7, v4
        v_mul_u32_u24 v5, 1056, v5
        v_lshrrev_b32 v4, 3, v4
        v_lshl_add_u32 v5, v4, 8, v5
        v_and_b32 v4, 3, v2
        v_lshl_add_u32 v19, v4, 3, v5
        v_add_u32 v18, {TOP}, v19""")
        c += L(f"""s_lshr_b32 s3, s16, 2
        s_lshl1_add_u32 s3, s17, s3
        s_lshl2_add_u32 s3, s3, s18
        s_mul_i32 s3, s3, 12
        v_add_u32 v34, s3, v2
        v_lshlrev_b32 v34, 7, v34
        v_mov_b32 v4, 0x7fff0000
        v_cmp_gt_u32 vcc, 12, v2
        s_and_b32 s3, s16, 3
        s_mul_i32 s101, s3, {1152*4096}
        v_cndmask_b32 v34, v4, v34, vcc
        s_mov_b32 s100, s101""")
        return c
    def late_setup(self):
        c = []
        for k in range(5): c += L(f"v_add_u32 v{48+k}, {3*CSL}, v{14+k}")
        return c
    def dmaK(self, n):
        return [[I(f"s_add_u32 m0, s56, {kblk(n)}")], [I(f"buffer_load_dwordx4 v10, s[28:31], s58 offen lds", tag=f"k{n}")],
                [I(f"buffer_load_dwordx4 v11, s[28:31], s58 offen offset:1024 lds", tag=f"k{n}")], [I("s_add_u32 s58, s58, 8192")]]
    def dmaV(self, n):
        return [[I(f"s_add_u32 m0, s57, {vblk(n)}")], [I(f"buffer_load_dwordx4 v12, s[32:35], s59 offen lds", tag=f"v{n}")],
                [I(f"buffer_load_dwordx4 v13, s[32:35], s59 offen offset:1056 lds", tag=f"v{n}")], [I("s_add_u32 s59, s59, 8192")]]
    def rdK(self, n):
        a = kblk(n) - CB; hi = a >= 3 * CSL
        return self.readK(a - 3 * CSL * hi, self.KB, ar=48 if hi else 14)
    def rdV(self, n):
        a = vblk(n) - CB; hi = a >= 3 * CSL
        return self.readV(a - 3 * CSL * hi, ar=52 if hi else 18)
    def pp(self, d, a, srd_, so):
        return [[I(f"buffer_load_dword {d}, {a}, {srd_}, {so} offen nt"), I(f"buffer_load_dword {d}, {a}, {srd_}, {so} offen offset:64")]]
    def pf2(self):
        return [[I("buffer_load_dword v35, v34, s[24:27], s100 offen")], [I(f"s_add_u32 s100, s100, {96*4096}")]]
    def pf3(self):
        return self.pp("v35", "v33", "s[24:27]", "s101") + [[I(f"s_add_u32 s101, s101, {128*4096}")]]
    def nm(self, i): return self.o.get("nm", 2)
    def qepi(self):
        qacc = self.qacc
        rd = []; ops = []
        for kp in range(4):
            T = 40 if kp % 2 == 0 else 56
            rd.append([I(f"ds_read_b128 {r4('v', T)}, v{20+kp}"), I(f"ds_read_b128 {r4('v', T+4)}, v{20+kp} offset:64")])
            L_ = []
            for q in range(4):
                for tl in range(2):
                    for e in range(4): L_.append(I(f"v_fmac_f32 v{qacc(2*kp+tl, q)+e}, v{T+4*tl+e}, v{48+2*q}"))
                for tl in range(2):
                    for e in range(4): L_.append(I(f"v_mul_f32 v{qacc(2*kp+tl, q)+e}, v{qacc(2*kp+tl, q)+e}, v{49+2*q}"))
                F = QF + (q * 4 + kp) * 4
                for tl in range(2):
                    for h in range(2):
                        r = qacc(2 * kp + tl, q) + 2 * h
                        L_.append(I(f"v_cvt_pk_bf16_f32 v{F+2*tl+h}, v{r}, v{r+1}"))
            for q in range(4):
                F = QF + (q * 4 + kp) * 4
                L_.append(I(f"v_permlane16_swap_b32 v{F}, v{F+2}")); L_.append(I(f"v_permlane16_swap_b32 v{F+1}, v{F+3}"))
            ops.append(L_)
        return rd, ops

    KB, VB, MN, LA, OA = 128, 160, 160, 60, 176
    def S(self, b): return 64 + 32 * b
    def P(self, b): return 128 + 16 * b
    def readK(self, off, base, ar=14):
        return [I(f"ds_read_b128 {r4('a', base+(kt*4+ks)*4)}, v{ar+ks} offset:{off+kt*4096}") for kt in range(2) for ks in range(4)]
    def readV(self, off, ar=18):
        return [I(f"ds_read_b64_tr_b16 {r2('a', self.VB+dt*4+2*h)}, v{ar} offset:{off+dt*32+h*512}") for dt in range(8) for h in range(2)]
    def QK(self, b, kbase, zero, ksout=False):
        M = []
        for (kt, ks) in ([(kt, ks) for ks in range(4) for kt in range(2)] if ksout else [(kt, ks) for kt in range(2) for ks in range(4)]):
            if True:
                for qt in range(4):
                    d = self.S(b) + (kt * 4 + qt) * 4
                    c = ("0" if zero else r4('v', self.MN + 4 * qt)) if ks == 0 else r4('v', d)
                    M.append(I(f"{MF} {r4('v', d)}, {r4('a', kbase+(kt*4+ks)*4)}, {r4('v', QF+(qt*4+ks)*4)}, {c}"))
        return M
    def PV(self, b, zero, nm, zo=False):
        M = []
        for qt in range(nm):
            d = r4('v', self.OA + 4 * qt)
            M.append(I(f"{MF} {d}, v[36:39], {r4('v', self.P(b)+qt*4)}, {'0' if zo else d}"))
        for dt in range(8):
            for qt in range(4):
                d = r4('a', (dt * 4 + qt) * 4)
                M.append(I(f"{MF} {d}, {r4('a', self.VB+dt*4)}, {r4('v', self.P(b)+qt*4)}, {'0' if zero else d}"))
        return M
    def SM(self, b, h, nm):
        U = []; E = []; A = []; C = []
        for e in range(16):
            r = self.S(b) + 16 * h + e; qt = e // 4
            U.append(I(f"v_add_f32 v{r}, v{self.MN+4*qt}, v{r}")); E.append(I(f"v_exp_f32 v{r}, v{r}"))
            A.append(I(f"v_add_f32 v{self.LA+qt}, v{self.LA+qt}, v{r}") if qt >= nm else None)
            if e % 2: C.append(I(f"v_cvt_pk_bf16_f32 v{self.P(b)+qt*4+2*h+(e%4)//2}, v{r-1}, v{r}"))
        return U, E, A, C
    def phase(self, p, M, sm, reads, D, tail, carry, sub=False, defer=False, extra=None):
        n = len(M); g = Gaps(n)
        g.tail(n - 1, tail)
        eg = None
        if sm:
            U, E, A, C = sm
            eg = [(e * (n - 2)) // 16 for e in range(16)]
            for e in range(16): g.put(eg[e], E[e], force=True)
            if sub:
                g.pre.append(U[0])
                for e in range(1, 16): g.put(eg[e] - 1, U[e], force=True)
            for e in range(8): g.put(eg[2 * e + 1] + 1, C[e])
        if reads: g.spread(reads, 0, n - 7)
        if D: g.spread(D, 0, n - 3)
        for a in carry: g.put(0, a)
        out = []
        if sm:
            for e in range(16):
                if A[e] is None: continue
                q = eg[e] + 1
                while q < n and not g.fits(q, [A[e]]): q += 1
                if q < n: g.put(q, A[e], force=True)
                elif defer: out.append(A[e])
                else: g.put(eg[e] + 1, A[e])
        if extra: extra(g)
        p(g.weave(M))
        return out
    def iter(self, p, i, carry, Dq=None, Dp=None, pvtail=None, pvextra=None, pre_pv=None, qextra=None, need=()):
        b = i % 2
        self.tr(p, "C", 2 * i + 2)
        if i == 0: pass
        elif i < 15:
            nd = [f"v{i+1}"] + ([f"k{i+2}"] if i + 2 <= 15 else []) + list(need)
            carry = self.phase(p, self.QK(1 - b, self.KB, False), self.SM(b, 1, self.nm(i)), self.rdV(i), (Dq or []),
                               [W(vm=nd, lg=0), I("s_barrier")], carry, defer=True, extra=qextra)
        else:
            p(self.rdV(i)); U, E, A, C = self.SM(b, 1, self.nm(i)); p(E); p(C); p([a for a in A if a])
            p(pre_pv or [W(lg=0)])
        D = []
        self.tr(p, "C", 2 * i + 3)
        carry = self.phase(p, self.PV(b, i == 0, self.nm(i), zo=(i == 0)), self.SM(1 - b, 0, self.nm(i + 1)) if i < 15 else None,
                           self.rdK(i + 2) if i + 2 <= 15 else [], (Dp or []) + D, pvtail or [W(lg=0)], carry, extra=pvextra)
        if i == 15: self.tr(p, "C", 34); self.tr(p, "C", 35)
        return carry
    def maxops(self, b, run=False):
        mx = []
        for qt in range(4):
            r0 = self.S(b) + qt * 4; r1 = r0 + 16; t = 40 + qt
            if run: mx += L(f"v_max3_f32 v{t}, v{t}, v{r0}, v{r0+1}\nv_max3_f32 v{t}, v{t}, v{r0+2}, v{r0+3}\nv_max3_f32 v{t}, v{t}, v{r1}, v{r1+1}\nv_max3_f32 v{t}, v{t}, v{r1+2}, v{r1+3}")
            else: mx += L(f"v_max3_f32 v{t}, v{r0}, v{r0+1}, v{r0+2}\nv_max3_f32 v{t}, v{t}, v{r0+3}, v{r1}\nv_max3_f32 v{t}, v{t}, v{r1+1}, v{r1+2}\nv_max_f32 v{t}, v{t}, v{r1+3}")
        return mx
    def maxfin(self):
        mx = []
        for sw in ("v_permlane16_swap_b32", "v_permlane32_swap_b32"):
            for qt in range(4): mx += L(f"v_mov_b32 v{44+qt}, v{40+qt}")
            mx += L("s_nop 0")
            for qt in range(4): mx += L(f"{sw} v{40+qt}, v{44+qt}")
            for qt in range(4): mx += L(f"v_max_f32 v{40+qt}, v{40+qt}, v{44+qt}")
        for qt in range(4):
            for e in range(4): mx += L(f"v_sub_f32 v{self.MN+4*qt+e}, 0xc2000000, v{40+qt}")
        return mx
    def macc(self, f, d): return 192 + (f * 3 + d) * 4
    def mA(self, t, f): return ('a', 28 * (t % 2) + 4 * f)
    def mB(self, t, d): return ('a', 28 * (t % 2) + 16 + 4 * d)
    def mrdA(self, t, f):
        k, r = self.mA(t, f)
        return [I(f"ds_read_b64_tr_b16 {r2(k, r+2*h)}, v24 offset:{(t%2)*8448 + 32*f + 512*h}", tag="mr") for h in range(2)]
    def mrdB(self, t):
        return [I(f"ds_read_b128 {r4(*self.mB(t,d))}, v25 offset:{(t%2)*6144 + 1024*d}", tag="mr") for d in range(3)]
    def mmf(self, t):
        M = []
        for f in range(4):
            for d in range(3):
                a = r4('a', self.macc(f, d))
                M.append(I(f"{MF} {a}, {r4(*self.mA(t,f))}, {r4(*self.mB(t,d))}, {r4('a', 240+4*f) if t == 0 else a}"))
        return M
    def madv(self):
        return [[I("s_mov_b32 s93, s92")], [I(f"s_add_u32 s92, s92, {MSL}")], L(f"s_cmp_eq_u32 s92, {MB+NM*MSL}\ns_cselect_b32 s92, {MB}, s92"),
                [I("v_add_u32 v24, s92, v26")], [I("v_add_u32 v25, s92, v27")]]
    def gelu(self):
        c = L(f"""
        s_lshl_b32 s3, s8, 2
        s_and_b32 s4, s18, 1
        s_lshl_b32 s4, s4, 1
        s_add_u32 s3, s3, s4
        s_mul_i32 s3, s3, 36
        s_mul_i32 s4, s9, 6
        s_add_u32 s3, s3, s4
        s_lshr_b32 s4, s18, 1
        s_mul_i32 s4, s4, 3
        s_add_u32 s3, s3, s4
        s_lshl_b32 s3, s3, 10
        s_add_u32 s3, s3, {WS_UF}
        v_add_u32 v20, s3, v3
        v_add_u32 v21, {36*1024}, v20
        v_mov_b32 v56, {f2u(-0.10294324):#x}
        v_mov_b32 v57, {f2u(-2.3022082):#x}
        v_mov_b32 v58, 1.0
        """)
        setup = c; c = []
        U = 96; T = 104; O = 112
        for fp in range(2):
            for d in range(3):
                for e in range(8): c += L(f"v_accvgpr_read_b32 v{U+e}, a{self.macc(2*fp + e//4, d) + e%4}")
                for e in range(0, 8, 2): c += L(f"v_pk_mul_f32 {r2('v',T+e)}, {r2('v',U+e)}, {r2('v',U+e)}")
                for e in range(0, 8, 2): c += L(f"v_pk_fma_f32 {r2('v',T+e)}, {r2('v',T+e)}, v[56:57], v[56:57] op_sel:[0,0,1] op_sel_hi:[1,0,1]")
                for e in range(0, 8, 2): c += L(f"v_pk_mul_f32 {r2('v',T+e)}, {r2('v',T+e)}, {r2('v',U+e)}")
                for e in range(8): c += L(f"v_exp_f32 v{T+e}, v{T+e}")
                for e in range(0, 8, 2): c += L(f"v_pk_add_f32 {r2('v',T+e)}, {r2('v',T+e)}, v[58:59] op_sel_hi:[1,0]")
                for e in range(8): c += L(f"v_rcp_f32 v{T+e}, v{T+e}")
                for e in range(0, 8, 2): c += L(f"v_pk_mul_f32 {r2('v',T+e)}, {r2('v',T+e)}, {r2('v',U+e)}")
                for e in range(4): c += L(f"v_cvt_pk_bf16_f32 v{O+e}, v{T+2*e}, v{T+2*e+1}")
                c.append(I(f"buffer_store_dwordx4 {r4('v', O)}, v{20+fp}, s[12:15], 0 offen offset:{1024*d} sc1", tag="ust", cond=True))
        return setup, c
    def force(self, g, items, lo, hi):
        while True:
            import copy
            g2 = copy.deepcopy(g)
            if not g2.fill(items, lo, hi, dense=True): break
            g.cap += 1
        g.fill(items, lo, hi, dense=True)
    def kvfirst(self):
        return {55: self.dmaK(0), 57: self.dmaK(1) + self.dmaV(0), 59: self.dmaK(2) + self.dmaV(1), 60: self.dmaK(3) + self.dmaV(2), 61: self.dmaK(4) + self.dmaV(3)}
    def partA(self):
        o = self.o; p = Prog(); dmaM = self.dmaM
        def mreads(t): return self.mrdB(t) + [x for f in range(4) for x in self.mrdA(t, f)]
        p(W(vm=["m0", "st"], lg=0)); p("s_barrier")
        rd, ops = self.qepi()
        p(mreads(0)); p(rd[0]); p(rd[1])
        p(flat(dmaM(3)))
        p(W(lg=0))
        setup, ge = self.gelu()
        bg = ops[0] + rd[2] + ops[1] + rd[3] + ops[2] + ops[3] + self.late_setup() + setup
        kv = self.kvfirst()
        for t in range(64):
            n = t // 2
            M = self.mmf(t); g = Gaps(12)
            if t < 63:
                if t % 2 == 0: g.tail(11, [W(vm=(f"m{n+1}" if n + 1 < 32 else None), lg=0), I("s_barrier")])
                else: g.tail(11, [W(lg=0)])
            D = []
            if t == 0: D = dmaM(4)
            else:
                m = (t - 1) // 2
                if m + 5 < 32:
                    G = dmaM(m + 5); D = G[:6] if t % 2 else G[6:]
            D = D + kv.get(t, [])
            if t < 63:
                last = g.spread(mreads(t + 1), 0, 6)
                if D: g.spread(D, 0, 10)
                if t % 2 == 0: g.spread(self.madv(), 7, 10, after=last)
            if bg:
                g.cap = o.get("mcap", 2) + (1 if t % o.get("mx", 4) == 1 else 0)
                bg = g.fill(bg, 0, 10)
            if t % 2 == 0: self.tr(p, "M", n)
            p(g.weave(M))
        assert not bg, len(bg)
        self.tr(p, "M", 32); self.tr(p, "M", 33)
        self.tr(p, "G", 0); nst = 0
        p("s_nop 4")
        for x in ge:
            p(x)
            if x.tag == "ust": nst += 1; self.tr(p, "G", nst)
        self.tr(p, "G", 7)
        p("s_branch K_core")
        return p
    def partB(self):
        p = Prog()
        p("K_skip:")
        p(f"""
        s_load_dwordx2 s[60:61], s[0:1], 32
        s_sub_u32 s3, s99, 108
        s_mul_i32 s4, s3, {6*9216}
        v_mul_u32_u24 v5, 6554, v2
        v_lshrrev_b32 v5, 16, v5
        v_mul_u32_u24 v6, 10, v5
        v_sub_u32 v6, v2, v6
        v_mul_u32_u24 v5, 9216, v5
        v_lshl_add_u32 v5, v6, 7, v5
        s_and_b32 s6, s2, 3
        s_bfe_u32 s7, s2, 0x10002
        s_lshl1_add_u32 s6, s6, s7
        s_mul_i32 s7, s6, 9
        s_lshr_b32 s7, s7, 1
        s_lshl_b32 s7, s7, 8
        s_add_u32 s4, s4, s7
        v_add_u32 v5, s4, v5
        v_mov_b32 v6, 0x7fff0000
        v_cmp_gt_u32 vcc, 60, v2
        s_mul_i32 s6, s6, 20
        s_add_u32 s6, s6, s3
        v_cndmask_b32 v5, v6, v5, vcc
        s_lshl_b32 s6, s6, 13
        v_lshl_add_u32 v6, v2, 7, s6
        K_pfa:
        buffer_load_dword v7, v5, s[36:39], s11 offen
        s_add_u32 s11, s11, {120*9216}
        s_waitcnt vmcnt(1)
        s_cmp_lt_u32 s11, {2048*9216}
        s_cbranch_scc1 K_pfa
        s_waitcnt lgkmcnt(0)
        s_mov_b32 s62, {4096*1152}
        s_mov_b32 s63, 0x20000
        s_mov_b32 s92, 0
        K_pfb:
        buffer_load_dword v7, v6, s[60:63], s92 offen
        s_add_u32 s92, s92, {160*8192}
        s_waitcnt vmcnt(1)
        s_cmp_lt_u32 s92, {4096*1152}
        s_cbranch_scc1 K_pfb
        """)
        p(W(vm=0, lg=0)); p("s_barrier")
        kv = self.kvfirst()
        p(flat([g for t in sorted(kv) for g in kv[t]]))
        rd, ops = self.qepi()
        for kp in range(4):
            p(rd[kp]); p(W(lg=0)); p(ops[kp][:-8]); p("s_nop 1"); p(ops[kp][-8:])
        p(self.late_setup())
        return p
    def partC(self):
        o = self.o; p = Prog(); nm = self.nm(0)
        p("K_core:")
        self.tr(p, "S", 0)
        p(W(vm=["k0", "k1", "v0"])); p("s_barrier")
        self.tr(p, "S", 1); self.tr(p, "C", 0)
        for ks in range(4): p(f"v_add_u32 v{4+ks}, {K0B-CB}, v{14+ks}")
        p(self.readK(0, self.VB, ar=4))
        for qt in range(4): p(f"v_mov_b32 v{self.LA+qt}, 0")
        if o.get("touch", 1): p("TOUCH_2:")
        p(W(lg=0))
        self.tr(p, "S", 2)
        M = self.QK(0, self.VB, True); g = Gaps(32)
        g.spread(self.rdK(1), 0, 24)
        g.spread(self.dmaK(5) + self.dmaV(4), 0, 28)
        mx = self.maxops(0)
        p(g.weave(M))
        self.tr(p, "S", 3)
        p(W(lg=0)); p("s_nop 6")
        p(mx + self.maxfin())
        self.tr(p, "S", 4); self.tr(p, "C", 1)
        M = self.QK(1, self.KB, False); g = Gaps(32)
        g.tail(31, [W(vm=["v1", "k2"], lg=0), I("s_barrier")])
        g.spread(self.rdV(0), 0, 24)
        ops = []
        for h in range(2):
            U, E, A, C = self.SM(0, h, nm); ops += U + E + C + [a for a in A if a]
        self.force(g, ops, 0, 30)
        p("s_nop 0"); p(g.weave(M))
        self.tr(p, "S", 5); self.tr(p, "S", 6)
        c = []
        PFE = o.get("pf", 1)
        for i in range(13):
            Dq = []; Dp = []
            if i + 6 <= 15: Dp += self.dmaK(i + 6)
            if i + 5 <= 15: Dp += self.dmaV(i + 5)
            if PFE:
                if i <= 11: Dp += self.pf2()
            if i == 3: Dp = [[I("buffer_store_dword v9, v8, s[12:15], s45 offen sc1")]] + Dp
            if i == 8:
                Dq += [L("s_getpc_b64 s[6:7]\nK_pc2:"), [I("s_lshr_b32 s3, s2, 3")], [I("s_lshl_b32 s3, s3, 11")], [I("v_lshl_add_u32 v4, v0, 3, s3")],
                       [I("v_min_u32 v4, K_end - K_pc2 - 16, v4")], [I("global_load_dwordx2 v[54:55], v4, s[6:7]")]]
            c = self.iter(p, i, c, Dq=Dq, Dp=Dp)
        assert not c
        if o.get("touch", 1): p("TOUCH_3:")
        p("s_cmp_ge_u32 s16, 4\ns_cbranch_scc1 K_U")
        return p
    def lfin(self, tagname):
        LA = self.LA
        c = []
        qs = list(range(4))
        for sw in ("v_permlane16_swap_b32", "v_permlane32_swap_b32"):
            for qt in qs: c += L(f"v_mov_b32 v{44+qt}, v{LA+qt}")
            c += L("s_nop 0")
            for qt in qs: c += L(f"{sw} v{LA+qt}, v{44+qt}")
            for qt in qs: c += L(f"v_add_f32 v{LA+qt}, v{LA+qt}, v{44+qt}")
        for qt in range(self.nm(15)): c += L(f"v_add_f32 v{LA+qt}, v{LA+qt}, v{self.OA+4*qt}")
        c += L(f"""v_add_f32 v45, v{LA}, v{LA+1}
        v_add_f32 v46, v{LA+2}, v{LA+3}
        v_add_f32 v44, v45, v46
        v_mov_b32 v45, {self.o.get('thr', 0x5f800000):#x}
        v_cmp_nlt_f32 s[6:7], v44, v45
        s_cmp_lg_u64 s[6:7], 0
        s_cbranch_scc0 FBR_{tagname}
        s_call_b64 s[6:7], K_fallback
        FBR_{tagname}:""")
        for qt in range(4): c += L(f"v_rcp_f32 v{40+qt}, v{LA+qt}")
        return c
    def oepi(self, dst, tmp, pk, va):
        out = []; i = 0
        for k in range(4):
            for qt in range(4):
                c = []
                r = tmp(i); i += 1; d = dst(k, qt)
                for e in range(8): c.append(I(f"v_accvgpr_read_b32 v{r+e}, a{((2*k+e//4)*4+qt)*4+e%4}"))
                if pk:
                    sel = "op_sel_hi:[1,0]" if qt % 2 == 0 else "op_sel:[0,1] op_sel_hi:[1,1]"
                    for e in range(0, 8, 2): c.append(I(f"v_pk_mul_f32 {r2('v', r+e)}, {r2('v', r+e)}, {r2('v', 40+(qt&2))} {sel}"))
                else:
                    for e in range(8): c.append(I(f"v_mul_f32 v{r+e}, v{r+e}, v{40+qt}"))
                for j in range(4): c.append(I(f"v_cvt_pk_bf16_f32 v{d+j}, v{r+2*j}, v{r+2*j+1}"))
                c.append(I(f"buffer_store_dwordx4 {r4('v', d)}, {va}, s[12:15], s11 offen offset:{1024*qt} sc1", tag=f"ost{k}"))
                if qt == 3: c.append(I(f"s_add_u32 s11, s11, {128*1024}"))
                out.append(c)
        return out
    def tailprep(self):
        c = L(f"""
        s_lshl_b32 s92, s17, 3
        s_lshl_b32 s93, s18, 1
        s_add_u32 s92, s92, s93
        s_lshl_b32 s92, s92, 3
        s_add_u32 s92, s92, s16
        s_mul_i32 s92, s92, 9216
        s_add_u32 s92, s92, {WS_PART}
        s_add_u32 s93, s92, {8*9216}
        v_mov_b32 v44, v3
        v_add_u32 v45, 4096, v3
        v_add_u32 v46, 8192, v3
        s_lshr_b32 s56, s17, 2
        s_lshl_b32 s56, s56, 8
        s_lshl_b32 s57, s16, 5
        s_add_u32 s56, s56, s57
        s_and_b32 s57, s17, 3
        s_mul_i32 s57, s57, 288
        s_lshl_b32 s58, s17, 3
        s_add_u32 s58, s58, s16
        s_mul_i32 s58, s58, {8*9216}
        s_add_u32 s58, s58, {WS_PART}
        s_lshl_b32 s59, s17, 7
        s_add_u32 s59, s59, {WS_FP}
        s_lshl_b32 s94, s16, 2
        s_add_u32 s94, s59, s94
        s_add_u32 s95, s59, 16
        """)
        for i in range(3):
            c += L(f"""v_add_u32 v4, {256*i}, v0
            v_mul_u32_u24 v5, 3641, v4
            v_lshrrev_b32 v5, 16, v5
            v_mul_u32_u24 v6, 18, v5
            v_sub_u32 v6, v4, v6
            v_add_u32 v5, s56, v5
            v_mul_u32_u24 v5, 1152, v5
            v_lshl_add_u32 v{16+i}, v6, 4, v5""")
        c += L(f"""v_mov_b32 v4, 0x7fff0000
        v_cmp_lt_u32 vcc, 63, v0
        v_and_b32 v47, 7, v2
        v_lshlrev_b32 v47, 2, v47
        v_cndmask_b32 v18, v18, v4, vcc
        v_bfe_u32 v4, v0, 2, 4
        v_add_u32 v5, s56, v4
        v_lshlrev_b32 v19, 1, v5
        v_lshrrev_b32 v6, 6, v0
        v_and_b32 v7, 1, v0
        v_lshlrev_b32 v7, 2, v7
        v_lshl_add_u32 v7, v6, 3, v7
        v_bfe_u32 v6, v0, 1, 1
        v_mul_u32_u24 v4, 288, v4
        v_add_u32 v4, v4, v7
        v_lshl_add_u32 v12, v6, 5, v4
        v_mul_u32_u24 v13, {16*288}, v6
        v_add3_u32 v13, v13, v4, 64
        v_mul_u32_u24 v5, 1152, v5
        v_add_u32 v5, v5, v7
        v_lshl_add_u32 v10, v6, 5, v5
        v_add_u32 v11, {16*1152}, v10
        v_mul_u32_u24 v14, {16*1152}, v6
        v_add_u32 v14, v14, v5
        v_lshlrev_b32 v15, 2, v0""")
        return c
    def final_block(self, p, FA, Bk, rdA):
        order = [8, 0, 1, 2, 3, 4, 5]
        M = []; done = {}
        for n_, t in enumerate(order):
            for ks in range(3):
                for u in range(4): M.append(I(f"{MF} {self.acc2(t,u)}, {FA(n_ % 2, ks)}, {Bk(ks,u)}, {self.acc2(t,u)}"))
            for u in range(4): done[(t, u)] = len(M) - 1
        for u in range(4):
            for t in (6, 7):
                for ks in range(3): M.append(I(f"{MF} {self.acc2(t,u)}, {FA((t + 1) % 2, ks)}, {Bk(ks,u)}, {self.acc2(t,u)}"))
            done[(7, u)] = len(M) - 1
        n = len(M); g = Gaps(n)
        seq = order + [6, 7]
        for n_ in range(1, 9):
            R = rdA(seq[n_], n_ % 2)
            for r in R: r.tag = f"fa{n_}"
            lo = 12 * (n_ - 1)
            if n_ < 8:
                g.spread(R, lo, lo + 5); g.put(lo + 11, W(lg=f"fa{n_}"), force=True)
            else:
                g.spread(R, lo - 4 if len(R) == 3 else lo - 8, lo - 1 if False else lo, staged=True) if False else None
        R = rdA(7, 0); per = len(R) // 3
        for ks in range(3):
            for r in R[ks * per:(ks + 1) * per]:
                r.tag = "fa8"; g.put(72 + 4 * ks + 3, r, force=True)
        g.put(86, W(lg="fa8"), force=True)
        chunks = []
        ci = 0
        def chunk(pr, h, c):
            nonlocal ci
            r = 64 + (ci % 4) * 12; ci += 1; ops = []
            if c < 8:
                for j, (t, u) in enumerate(pr):
                    for x in range(4): ops.append(I(f"v_accvgpr_read_b32 v{r+4*j+x}, a{128+(t*4+u)*4+x}"))
                src = r
            else: src = 240 + 8 * h
            for j in range(4): ops.append(I(f"v_cvt_pk_bf16_f32 v{r+8+j}, v{src+2*j}, v{src+2*j+1}"))
            ops.append(I(f"buffer_store_dwordx4 {r4('v', r+8)}, v{44+c//4}, s[12:15], s{92+h} offen offset:{(c%4)*1024} sc1", tag="pst"))
            return ops
        pos = 0; rest = []
        L_ = [(done[(8, 3)], chunk(None, 0, 8)), (done[(8, 3)], chunk(None, 1, 8))]
        for tp in range(4):
            for u in range(4): L_.append((done[(2 * tp + 1, u)], chunk(((2*tp, u), (2*tp+1, u)), u >> 1, 2 * tp + (u & 1))))
        g.cap = 3
        for d, ops in L_:
            if rest: rest += ops; continue
            lo = max(pos, d + 4)
            r_ = g.fill(ops, lo, n - 1) if lo < n else ops
            pos = g.lastfill + 1 if len(r_) < len(ops) else pos
            rest = r_
        p(g.weave(M)); p("s_nop 7"); p(rest)
    OBASE = f"""
        s_lshl_b32 s11, s19, 19
        s_lshl_b32 s4, s5, 12
        s_add_u32 s11, s11, s4
        s_add_u32 s11, s11, {WS_OF}
        """
    def acc2(self, t, u): return r4('a', 128 + (t * 4 + u) * 4) if t < 8 else r4('v', 240 + 4 * u)

    def partO(self):
        o = self.o; p = Prog()
        ntw = " nt" if o.get("ntwo") else ""
        NW = 6
        p("K_O:")
        p("s_mul_i32 s3, s18, 144\nv_add_u32 v7, s3, v2\ns_and_b32 s4, s17, 3\ns_mul_i32 s4, s4, 288")
        for i in range(3):
            p(f"""v_add_u32 v4, {64*i}, v7
            v_mul_u32_u24 v5, 3641, v4
            v_lshrrev_b32 v5, 16, v5
            v_mul_u32_u24 v6, 18, v5
            v_sub_u32 v6, v4, v6
            v_mul_u32_u24 v5, 1152, v5
            v_lshl_add_u32 v6, v6, 4, v5
            v_add_u32 v{20+i}, s4, v6
            s_sub_u32 s4, s4, 1024""")
        p(f"""
        v_lshrrev_b32 v4, 2, v2
        v_mul_u32_u24 v4, 288, v4
        v_and_b32 v5, 3, v2
        v_lshl_add_u32 v23, v5, 3, v4
        v_lshlrev_b32 v24, 2, v5
        s_mul_i32 s60, s18, 2304
        s_and_b32 s54, s44, 0xffffff80
        s_add_u32 s55, s54, 16
        s_and_b32 s99, s19, 0xf8
        v_mov_b32 v26, 2
        v_mov_b32 v27, 4
        s_lshl_b32 s63, s5, 12
        s_add_u32 s63, s63, {WS_OF}
        """)
        A_ = lambda k: [(h_, k) for h_ in (1, 2, 3)]
        B_ = lambda k: [(h_, k) for h_ in (4, 5, 6, 7)]
        ORD = [(0, k) for k in range(4)] + A_(0) + A_(1) + B_(0) + A_(2) + A_(3) + B_(1) + B_(2) + B_(3)
        def kk(t): return ORD[t]
        def k32(t, r):
            hsel, k = kk(t)
            a = [I(f"s_xor_b32 {r}, s19, {hsel}")] if hsel < 4 else [I(f"s_add_u32 {r}, s99, {hsel}")]
            return [a, [I(f"s_lshl2_add_u32 {r}, {r}, {k}")]]
        def dmaW(t):
            G = []
            G += k32(t, "s3") + [[I(f"s_mul_i32 s61, s3, {32*1152}")]]
            G += [[I(f"s_add_u32 m0, s60, {(t % NW)*9216}")],
                  [I(f"buffer_load_dwordx4 v20, s[40:43], s61 offen{ntw} lds", tag=f"g{t}")],
                  [I(f"buffer_load_dwordx4 v21, s[40:43], s61 offen offset:1024{ntw} lds", tag=f"g{t}")],
                  [I("s_mov_b64 exec, 0xffff"), I(f"buffer_load_dwordx4 v22, s[40:43], s61 offen offset:2048{ntw} lds", tag=f"g{t}"), I("s_mov_b64 exec, -1")]]
            return G
        def Bf(t, u): return r4('v', 168 + (t * 4 + u) * 4) if t < 4 else r4('a', ((t - 4) % 8) * 16 + 4 * u)
        def ldB(t):
            G = []
            G += k32(t, "s4") + [[I("s_lshl_b32 s4, s4, 17")], [I("s_add_u32 s62, s4, s63")]]
            for u in range(4): G.append([I(f"buffer_load_dwordx4 {Bf(t,u)}, v3, s[12:15], s62 offen offset:{1024*u} sc1", tag=f"b{t}")])
            return G
        def A(s, t): return 64 + 36 * s + 4 * t
        def reads(t):
            return [I(f"ds_read_b64_tr_b16 {r2('v', A(t%2,tt)+2*h)}, v23 offset:{(t % NW)*9216+h*4608+32*tt}") for tt in range(9) for h in range(2)]
        c = self.iter(p, 13, [], Dp=dmaW(0) + dmaW(1))
        c = self.iter(p, 14, c, Dp=dmaW(2) + dmaW(3))
        c = self.iter(p, 15, c, Dp=dmaW(4) + dmaW(5), pre_pv=[W(vm=["g0", "g1"], lg=0), I("s_barrier")],
                      pvextra=lambda g: g.spread(reads(0), 2, 28))
        self.stamp(p, 3)
        p(self.OBASE); p("s_nop 2"); p(self.lfin("O"))
        late = []
        for ci, ch in enumerate(self.oepi(lambda k, qt: 168 + (k * 4 + qt) * 4, lambda i: 136 + (i % 4) * 8, True, "v3")):
            if ci < 8: p(ch)
            else:
                p([x for x in ch if klass(x) == 2]); late += [[x] for x in ch if klass(x) != 2]
        p("s_barrier")
        self.stamp(p, 4)
        nb = 4
        FA = lambda buf, ks: r4('v', 136 + buf * 12 + ks * 4)
        def rdA(tt, buf):
            return [I(f"ds_read_b64_tr_b16 {r2('v', 136+buf*12+ks*4+2*h)}, v23 offset:{((29+ks) % NW)*9216+h*4608+32*tt}") for ks in range(3) for h in range(2)]
        bg = self.tailprep()
        F1 = o.get("f1", 1); L0 = o.get("l0", 4); F2 = o.get("f2", 7); DB = o.get("db", 4)
        REQ = {4: ("s54", 2), 10: ("s55", 1), 14: ("s54", 4), 20: ("s55", 2), 24: ("s55", 3), 28: ("s55", 4)}
        P = {n_: self.poll(f"pO{n_}", 12, 24, sr, 25, v_) for n_, (sr, v_) in REQ.items()}
        ckstep = {n_: (F1 + 2 if n_ == 4 else min(n_ - DB, 24)) for n_ in REQ}
        plstep = {n_: (F1 + 1 if n_ == 4 else ckstep[n_] - 1) for n_ in REQ}
        for t in range(29):
            M = [I(f"{MF} {self.acc2(tt,u)}, {r4('v', A(t%2,tt))}, {Bf(t,u)}, {'0' if t == 0 else self.acc2(tt,u)}") for tt in range(9) for u in range(4)]
            g = Gaps(36)
            need = ([f"g{t+2}"] if t < 27 else (["g31"] if t == 27 else [])) + ([f"b{t+1}" if t < 28 else "b31"] if t + 1 >= 4 else [])
            if t == F1: need.append("ost1")
            if t == F2: need.append("ost3")
            g.tail(35, [W(vm=need or None, lg=0)] + ([I("s_barrier")] if t < 28 else []))
            D = []; Dend = []
            if t == F1 + 1: D += [[I("buffer_store_dword v26, v8, s[12:15], s44 offen sc1")]]
            if t == F2 + 1: D += [[I("buffer_store_dword v27, v8, s[12:15], s44 offen sc1")]]
            for n_ in REQ:
                if plstep[n_] == t:
                    if n_ == 4: Dend += [[P[n_][0]]]
                    else: D += [[P[n_][0]]]
            if t >= F1 + 2:
                for _ in range(2):
                    if nb < 32 and (nb <= t + DB or (t >= 24 and nb < t + 8)):
                        if nb in REQ:
                            assert ckstep[nb] <= t, (nb, t)
                            D += [P[nb][1]]
                        D += ldB(nb); nb += 1
            if L0 <= t < L0 + 3: Dend += late[(0, 3, 7, 10)[t - L0]:(0, 3, 7, 10)[t - L0 + 1]]
            if t + 6 < 32: D += dmaW(t + 6)
            D += Dend
            if D: g.spread(D, 0, 33)
            g.spread(reads(t + 1) if t < 28 else rdA(8, 0), 0, 28)
            if t >= 20: bg = g.fill(bg, 0, 34)
            self.tr(p, "2", t)
            p(g.weave(M))
        assert not bg
        self.tr(p, "2", 29)
        self.final_block(p, FA, lambda ks, u: Bf(29 + ks, u), rdA)
        for t in range(30, 38): self.tr(p, "2", t)
        p("s_branch K_tail")
        return p

    def partU(self):
        o = self.o; p = Prog()
        ntw = " nt" if o.get("ntw2") else ""
        hs = " sc1" if o.get("sc1dma", 1) else ""
        SB = 9216 + 16 * 1056
        p("K_U:")
        p(f"""
        s_and_b32 s3, s17, 3
        s_mul_i32 s3, s3, 9216
        s_mul_i32 s60, s18, 2304
        s_add_u32 s3, s3, s60
        v_add_u32 v20, s3, v3
        s_and_b32 s4, s16, 3
        s_mul_i32 s61, s4, {36*36*1024}
        s_add_u32 s61, s61, {WS_UF}
        s_mul_i32 s62, s4, {1152*4096}
        s_lshl_b32 s54, s4, 8
        s_add_u32 s54, s54, {WS_FU}
        v_min_u32 v31, 53, v2
        v_lshlrev_b32 v31, 2, v31
        v_and_b32 v4, 31, v2
        v_lshlrev_b32 v4, 4, v4
        v_lshrrev_b32 v5, 5, v2
        v_lshl_add_u32 v4, v5, 16, v4
        s_lshl_b32 s3, s18, 14
        s_lshr_b32 s4, s17, 2
        s_lshl_b32 s4, s4, 9
        s_add_u32 s3, s3, s4
        v_add_u32 v21, s3, v4
        v_add_u32 v22, {4096-1056}, v21
        v_add_u32 v23, {2*(4096-1056)}, v21
        v_add_u32 v24, {3*(4096-1056)}, v21
        s_mul_i32 s63, s18, {4*1056}
        s_add_u32 s63, s63, 9216
        v_lshrrev_b32 v4, 2, v2
        v_mul_u32_u24 v4, 1056, v4
        v_and_b32 v5, 3, v2
        v_lshl_add_u32 v4, v5, 3, v4
        s_lshl_b32 s3, s18, 7
        s_add_u32 s3, s3, 9216
        v_add_u32 v25, s3, v4
        v_add_u32 v26, {2*SB}, v25
        v_add_u32 v27, {4*SB}, v25
        v_mov_b32 v28, v3
        v_mov_b32 v33, 2
        v_add_u32 v29, {2*SB}, v3
        v_add_u32 v30, {4*SB}, v3
        """)
        sl = lambda n: n % 6
        def dma(n):
            base = sl(n) * SB; tg = f"g{n}"
            G = [[I(f"s_add_u32 m0, s63, {base}")]]
            for u in range(4): G.append([I(f"buffer_load_dwordx4 v{21+u}, s[40:43], s62 offen offset:{1056*u}{ntw} lds", tag=tg)])
            G += [[I(f"s_add_u32 m0, s60, {base}")], [I(f"s_add_u32 s62, s62, {32*4096}")],
                  [I(f"buffer_load_dwordx4 v20, s[12:15], s61 offen{hs} lds", tag=tg)],
                  [I(f"buffer_load_dwordx4 v20, s[12:15], s61 offen offset:1024{hs} lds", tag=tg)],
                  [I("s_mov_b64 exec, 0xffff"), I(f"buffer_load_dwordx4 v20, s[12:15], s61 offen offset:2048{hs} lds", tag=tg), I("s_mov_b64 exec, -1")],
                  [I(f"s_add_u32 s61, s61, {36*1024}")]]
            return G
        SET = [64, 116]
        def A(s, t): return SET[s] + 4 * t
        def B(s, u): return SET[s] + 36 + 4 * u
        def reads(t):
            s = t % 2; slot = sl(t); off = (slot & 1) * SB
            R = [I(f"ds_read_b64_tr_b16 {r2('v', B(s,u)+2*h)}, v{25+slot//2} offset:{off+h*512+32*u}") for u in range(4) for h in range(2)]
            R += [I(f"ds_read_b128 {r4('v', A(s,tt))}, v{28+slot//2} offset:{off+tt*1024}") for tt in range(9)]
            return R
        pl, chk = self.poll("pU", 12, 31, "s54", 32, 1)
        p(pl)
        c = self.iter(p, 13, [], Dp=[chk] + dma(0))
        c = self.iter(p, 14, c, Dq=dma(1), Dp=dma(2))
        c = self.iter(p, 15, c, Dp=dma(3), pre_pv=[W(vm=["g0"], lg=0), I("s_barrier")], pvextra=lambda g: g.spread(reads(0), 2, 28))
        self.stamp(p, 3)
        p(self.OBASE); p("s_nop 2"); p(self.lfin("U"))
        p(W(vm="g1")); p("s_barrier")
        self.stamp(p, 4)
        och = self.oepi(lambda k, qt: 216 + ((k * 4 + qt) % 4) * 4, lambda i: 184 + (i % 4) * 8, False, "v3")
        issued = 4; fl = {}
        FA = lambda buf, ks: r4('v', 116 + buf * 12 + ks * 4)
        FB_ = lambda ks, u: 168 + ks * 16 + u * 4
        def rdA(tt, buf):
            return [I(f"ds_read_b128 {FA(buf, ks)}, v{28+sl(33+ks)//2} offset:{(sl(33+ks) & 1)*SB+tt*1024}") for ks in range(3)]
        rdBf = [I(f"ds_read_b64_tr_b16 {r2('v', FB_(ks,u)+2*h)}, v{25+sl(33+ks)//2} offset:{(sl(33+ks) & 1)*SB+h*512+32*u}") for ks in range(3) for u in range(4) for h in range(2)]
        bg = self.tailprep()
        OST = o.get("ost", (0, 1, 2, 3, 5, 7, 8, 10, 11, 13, 14, 16, 17, 18, 20, 21))
        p("v_mov_b32 v58, 3\nv_mov_b32 v59, 4")
        for t in range(33):
            p.mark("B6")
            M = [I(f"{MF} {self.acc2(tt,u)}, {r4('v', A(t%2,tt))}, {r4('v', B(t%2,u))}, {'0' if t == 0 else self.acc2(tt,u)}") for tt in range(9) for u in range(4)]
            g = Gaps(36)
            need = ([f"g{t+2}"] if t < 31 else (["g35"] if t == 31 else [])) + ([f"ost{fl[t+1]}"] if t + 1 in fl else [])
            g.tail(35, [W(vm=need or None, lg=0)] + ([I("s_barrier")] if t < 32 else []))
            D = []
            if t in fl: D += [[I(f"buffer_store_dword v{(9, 33, 58, 59)[fl[t]]}, v8, s[12:15], s44 offen sc1")]]
            want = min(36, t + 7)
            nd = min(2 if t in o.get("cu", (4, 6)) else 1, want - issued)
            for _ in range(nd): D += dma(issued); issued += 1
            if D: g.spread(D, 0, 33)
            g.spread(reads(t + 1) if t < 32 else rdBf + rdA(8, 0), 0, 28)
            if t in OST:
                assert not g.fill(och.pop(0), 0, 34)
                if len(och) % 4 == 0: fl[t + 3] = 3 - len(och) // 4
            if t >= 29: bg = g.fill(bg, 0, 34)
            self.tr(p, "2", t)
            p(g.weave(M))
        p.mark("B0")
        assert not bg
        self.tr(p, "2", 33)
        self.final_block(p, FA, lambda ks, u: r4('v', FB_(ks, u)), rdA)
        for t in range(34, 38): self.tr(p, "2", t)
        return p

    def partT(self):
        p = Prog()
        p("K_tail:")
        self.stamp(p, 5); self.tr(p, "T", 0)
        XR = 144
        for c in range(9):
            a, off = (f"v{10 + (c & 1)}", 64 * (c >> 1)) if c < 8 else ("v14", 256)
            p(f"buffer_load_dword v{XR+c}, {a}, s[20:23], s57 offen offset:{off}", tag="x")
        p("global_load_ushort v20, v19, s[46:47]\nglobal_load_ushort v21, v19, s[46:47] offset:32", tag="x")
        p(f"""
        v_add_u32 v5, 4096, v15
        v_add_u32 v6, 8192, v15
        v_mov_b32 v4, v15
        s_mov_b32 s62, 0x00003f80
        s_mov_b32 s63, 0x3f800000
        v_mov_b32 v24, {f2u(-1.4426950408889634):#x}
        v_mov_b32 v25, 1.0
        """)
        self.tr(p, "T", 1)
        p(W(vm="pst")); self.tr(p, "T", 2); p("s_barrier")
        p("buffer_store_dword v9, v8, s[12:15], s94 offen sc1")
        PB = 160
        def loads(parts):
            for part in parts:
                for c in range(9):
                    p(f"buffer_load_dword v{PB+part*9+c}, v{4+c//4}, s[12:15], s58 offen offset:{(c%4)*1024} sc1", tag=f"p{part}")
                p("s_add_u32 s58, s58, 9216")
        pl, chk = self.poll("pP1", 12, 47, "s59", 31, 1)
        p(W(vm="x"))
        p(f"""v_lshlrev_b32 v20, 16, v20
        v_lshlrev_b32 v21, 16, v21
        v_and_b32 v7, 2, v0
        v_cmp_eq_u32 vcc, 0, v7""")
        for c in range(9): p(f"v_lshlrev_b32 v{84+2*c}, 16, v{XR+c}\nv_and_b32 v{85+2*c}, 0xffff0000, v{XR+c}")
        p("v_cndmask_b32 v22, v21, v20, vcc")
        p(self.w0poll(pl, chk, "P")); self.tr(p, "T", 3)
        loads(range(7)); self.tr(p, "T", 4)
        p(W(vm="p0")); self.tr(p, "T", 5)
        loads(range(7, 8))
        SA = 104; Y = 122
        self.tr(p, "T", 6)
        for part in range(8):
            p(W(vm=f"p{part}"))
            base = SA if part < 4 else Y
            for c in range(9):
                for h in range(2):
                    d = base + 2 * c + h
                    cin = "0" if part == 0 else (f"v{22 if c == 8 else 20 + (c & 1)}" if part == 4 else f"v{d}")
                    p(f"v_dot2_f32_bf16 v{d}, v{PB+part*9+c}, s{62+h}, {cin}")
        p("s_nop 2"); self.tr(p, "T", 7)
        T = 64
        for e in range(0, 18, 2): p(f"v_pk_mul_f32 {r2('v',T+e)}, {r2('v',Y+e)}, v[24:25] op_sel_hi:[1,0]")
        for e in range(18):
            p(f"v_exp_f32 v{T+e}, v{T+e}")
            if e % 2: p(f"v_pk_mul_f32 {r2('v',SA+e-1)}, {r2('v',SA+e-1)}, {r2('v',Y+e-1)}")
        for e in range(0, 18, 2): p(f"v_pk_add_f32 {r2('v',T+e)}, {r2('v',T+e)}, v[24:25] op_sel:[0,1] op_sel_hi:[1,1]")
        for e in range(18): p(f"v_rcp_f32 v{T+e}, v{T+e}")
        for e in range(0, 18, 2): p(f"v_pk_fma_f32 {r2('v',T+e)}, {r2('v',T+e)}, {r2('v',SA+e)}, {r2('v',84+e)}")
        for c in range(9): p(f"v_cvt_pk_bf16_f32 v{T+c*2}, v{T+2*c}, v{T+2*c+1}")
        for c in range(9):
            if c < 8: p(f"ds_write_b32 v12, v{T+2*c} offset:{(c&1)*16*288 + (c>>1)*64}")
            else: p(f"ds_write_b32 v13, v{T+2*c} offset:192")
        p("v_lshlrev_b32 v4, 4, v0\ns_waitcnt lgkmcnt(0)\ns_barrier")
        for i in range(3): p(f"ds_read_b128 {r4('v', 84+4*i)}, v4 offset:{4096*i}", tag=f"o{i}")
        for i in range(3):
            p(W(lg=f"o{i}"))
            p(f"buffer_store_dwordx4 {r4('v', 84+4*i)}, v{16+i}, s[48:51], s57 offen")
        if self.o.get("dbgts"):
            p("""s_waitcnt vmcnt(0)
            s_memrealtime s[66:67]
            s_waitcnt lgkmcnt(0)
            s_mov_b32 s54, 64
            s_mov_b32 s55, 0x20000
            v_mov_b32 v4, s64
            v_mov_b32 v5, s66
            s_lshl_b32 s3, s2, 3
            buffer_store_dwordx2 v[4:5], v8, s[52:55], s3 offen""")
        if self.o.get("trace"):
            self.tr(p, "T", 8); p("s_waitcnt vmcnt(0)"); self.tr(p, "T", 9); self.tr(p, "T", 10)
            p(f"s_lshl_b32 s3, s2, 10\ns_add_u32 s3, s3, {WS_TS}\nv_lshlrev_b32 v4, 2, v0\nbuffer_store_dword v1, v4, s[12:15], s3 offen")
        if self.o.get("echo") is not None:
            e = self.o["echo"]
            p("s_waitcnt vmcnt(0)"); self.stamp(p, 6)
            p(f"""s_waitcnt lgkmcnt(0)
            s_sub_u32 s3, s{66+4*e}, s66
            s_add_u32 s3, s3, s90
            K_echo:
            s_memrealtime s[6:7]
            s_waitcnt lgkmcnt(0)
            s_sub_u32 s4, s6, s3
            s_cmp_lt_i32 s4, 0
            s_cbranch_scc1 K_echo""")
        elif self.ts:
            p("s_waitcnt vmcnt(0)"); self.stamp(p, 6)
            p(f"s_waitcnt lgkmcnt(0)\ns_mul_i32 s3, s2, {16*NST}\ns_add_u32 s3, s3, {WS_TS}")
            for i in range(NST):
                for e in range(4): p(f"v_mov_b32 v{4+e}, s{64+4*i+e}")
                p(f"buffer_store_dwordx4 v[4:7], v8, s[12:15], s3 offen offset:{16*i}\ns_nop 1")
        p("s_endpgm")
        return p

    def partF(self):
        nm = self.o.get("nm", 2); LA = self.LA
        p = Prog()
        FB = FBB
        p(f"""
        K_fallback:
        s_waitcnt vmcnt(0) lgkmcnt(0)
        s_mul_i32 s56, s18, 8448
        s_add_u32 s56, s56, {FB}
        v_lshrrev_b32 v4, 4, v2
        v_and_b32 v5, 15, v2
        """)
        for q in range(4):
            p(f"""v_add_u32 v6, {4*q}, v4
            v_xor_b32 v7, v6, v5
            v_lshlrev_b32 v7, 4, v7
            v_lshl_add_u32 v{48+q}, v6, 8, v7""")
        p(f"""
        v_lshlrev_b32 v6, 11, v4
        v_lshl_add_u32 v52, v5, 4, v6
        s_sub_u32 s3, s56, {TOP}
        v_add_u32 v53, s3, v14
        v_add_u32 v54, s3, v15
        v_add_u32 v55, s3, v16
        v_add_u32 v56, s3, v17
        v_add_u32 v57, s56, v19
        s_lshr_b32 s57, s19, 1
        s_lshl_b32 s57, s57, 19
        s_add_u32 s57, s57, {1536*256}
        """)
        def loadK():
            for q in range(8):
                p(f"s_add_u32 m0, s56, {1024*q}\ns_add_u32 s3, s58, {4096*(q//4)}\nbuffer_load_dwordx4 v{48+q%4}, s[28:31], s3 offen lds")
            p("s_waitcnt vmcnt(0)")
            p(self.readK(0, self.KB, ar=53)); p("s_waitcnt lgkmcnt(0)")
        for qt in range(4): p(f"v_mov_b32 v{40+qt}, 0xff800000")
        p("s_mov_b32 s58, s57\ns_mov_b32 s59, 16\nFB_l1:")
        loadK()
        p(self.QKf(True)); p("s_nop 7")
        p(self.maxf())
        p("s_add_u32 s58, s58, 8192\ns_sub_u32 s59, s59, 1\ns_cmp_lg_u32 s59, 0\ns_cbranch_scc1 FB_l1")
        p(self.maxfin())
        for qt in range(4): p(f"v_mov_b32 v{LA+qt}, 0")
        for i in range(128): p(f"v_accvgpr_write_b32 a{i}, 0")
        p("s_mov_b32 s58, s57\ns_mov_b32 s59, 16\nFB_l2:")
        loadK()
        p(self.QKf(False))
        for q in range(8):
            p(f"s_add_u32 m0, s56, {1056*q}\ns_add_u32 s3, s58, {256*q}\nbuffer_load_dwordx4 v52, s[32:35], s3 offen lds")
        SF = 116
        for e in range(32): p(f"v_exp_f32 v{SF+e}, v{SF+e}")
        for e in range(32): p(f"v_add_f32 v{LA+(e%16)//4}, v{LA+(e%16)//4}, v{SF+e}")
        PF = 148
        def pf(qt): return PF + 4 * qt if qt < 3 else 180
        for e in range(1, 32, 2):
            qt = (e % 16) // 4; h = e // 16
            p(f"v_cvt_pk_bf16_f32 v{pf(qt)+2*h+(e%4)//2}, v{SF+e-1}, v{SF+e}")
        p("s_waitcnt vmcnt(0)")
        p(self.readV(0, ar=57)); p("s_waitcnt lgkmcnt(0)")
        for dt in range(8):
            for qt in range(4):
                d = r4('a', (dt * 4 + qt) * 4)
                p(f"{MF} {d}, {r4('a', self.VB+dt*4)}, {r4('v', pf(qt))}, {d}")
        p("s_add_u32 s58, s58, 8192\ns_sub_u32 s59, s59, 1\ns_cmp_lg_u32 s59, 0\ns_cbranch_scc1 FB_l2")
        for sw in ("v_permlane16_swap_b32", "v_permlane32_swap_b32"):
            for qt in range(4): p(f"v_mov_b32 v{44+qt}, v{LA+qt}")
            p("s_nop 1")
            for qt in range(4): p(f"{sw} v{LA+qt}, v{44+qt}")
            for qt in range(4): p(f"v_add_f32 v{LA+qt}, v{LA+qt}, v{44+qt}")
        p("s_setpc_b64 s[6:7]")
        return p
    def QKf(self, zero):
        M = []
        for kt in range(2):
            for ks in range(4):
                for qt in range(4):
                    d = 116 + (kt * 4 + qt) * 4
                    c = ("0" if zero else r4('v', self.MN + 4 * qt)) if ks == 0 else r4('v', d)
                    M.append(I(f"{MF} {r4('v', d)}, {r4('a', self.KB+(kt*4+ks)*4)}, {r4('v', QF+(qt*4+ks)*4)}, {c}"))
        return M
    def maxf(self):
        mx = []
        for qt in range(4):
            r0 = 116 + qt * 4; r1 = r0 + 16; t = 40 + qt
            mx += L(f"v_max3_f32 v{t}, v{t}, v{r0}, v{r0+1}\nv_max3_f32 v{t}, v{t}, v{r0+2}, v{r0+3}\nv_max3_f32 v{t}, v{t}, v{r1}, v{r1+1}\nv_max3_f32 v{t}, v{t}, v{r1+2}, v{r1+3}")
        return mx

    def build(self):
        P0 = self.part0().s; PA = self.partA().s; PB = self.partB().s; PC = self.partC().s
        PO = self.partO().s; PU = self.partU().s; PT = self.partT().s; PF = self.partF().s
        seg = {}
        bad = 0
        for n1, x1 in (("A", PA), ("B", PB)):
            for n2, x2 in (("O", PO), ("U", PU)):
                parts = [("0", P0), (n1, x1), ("C", PC), (n2, x2), ("T", PT)]
                st = []
                for nme, x in parts: st += [I(f"SEG_{nme}:")] + x
                st = resolve(st)
                bad += check(st, n1 + n2)
                cur = None; d = {}
                for ins in st:
                    if ins.t.startswith("SEG_"): cur = ins.t[4:-1]; d[cur] = []
                    else: d[cur].append(ins)
                for k, v in d.items():
                    if k in seg: assert [x.t for x in seg[k]] == [x.t for x in v], f"segment {k} differs on path {n1}{n2}"
                    else: seg[k] = v
        bad += check(PF, "F")
        assert not bad
        assert seg["A"][-1].t == "s_branch K_core"
        body = []
        for k in "0ACOUT": body += fold(seg[k][:-1] if k == "A" else seg[k], "s10", "K" + k)
        for _, sp in self.spins: body += sp
        body += seg["B"] + [I("s_branch K_core")]
        body += PF
        return body

import subprocess, os, re as _re
def wrap(body):
    name = KNAME + "_kernel"
    t = text(body).replace("ALIGN:", "  s_branch K_main\n.p2align 12\nK_main:")
    out = ["; @launch grid=(256,1,1) block=(256,1,1) lds=163840", '.amdgcn_target "amdgcn-amd-amdhsa--gfx950"\n.text',
           kernel_header(name) + t + "K_end:\n  s_endpgm", '.section .rodata,"a"', ".p2align 6",
           kernel_desc(name, 512, sgpr=102, accum=256).replace(".end_amdhsa_kernel", "  .amdhsa_float_denorm_mode_32 3\n.end_amdhsa_kernel")]
    return "\n".join(out) + "\n"
def sizes(body):
    open("_sz.s", "w").write(wrap(body))
    subprocess.run(["clang", "-x", "assembler", "-target", "amdgcn-amd-amdhsa", "-mcpu=gfx950", "-c", "_sz.s", "-o", "_sz.o"], check=True)
    d = subprocess.run(["llvm-objdump", "-d", "--mcpu=gfx950", "_sz.o"], capture_output=True, text=True).stdout
    d = d[d.index("<K_main>:"):]
    return [4 * len(m.group(1).split()) for m in _re.finditer(r"// [0-9A-F]{12}: ((?:[0-9A-F]{8} ?)+)", d)]
def add_touch(body):
    TYPED = 3
    def entry(n, heads):
        c = ["s_mov_b64 exec, 0"]
        if n == TYPED: c += ["s_cmp_ge_u32 s16, 4", "s_cbranch_scc1 TE_U"]
        def lad(hs):
            r = []
            for w in range(3): r += [f"s_cmp_eq_u32 s18, {w}", f"s_cbranch_scc1 {hs[w]}"]
            return r + [f"s_branch {hs[3]}"]
        c += lad(heads[0])
        if n == TYPED: c += ["TE_U:"] + lad(heads[1])
        c += [f"TR_{n}:", "s_mov_b64 exec, -1"]
        return [I(x) for x in c]
    NE = (1, 2, 3)
    dummy = {n: [[f"TR_{n}"] * 4] * 2 for n in NE}
    b1 = []
    for x in body:
        if x.t.startswith("TOUCH_"): b1 += [I(f"TB_{x.t[6]}:")] + entry(int(x.t[6]), dummy[int(x.t[6])])
        else: b1.append(x)
    sz = sizes(b1)
    k0 = [x.t for x in b1].index("ALIGN:")
    out = list(b1[:k0 + 1]); addr = 0; si = 0; page = 0; pend = False
    pts = ["1"]; region = "1"; inent = False
    out += [I("TP_0:"), I("TPB_0")]; addr += 4
    for x in b1[k0 + 1:]:
        if x.t.endswith(":"):
            if x.t.startswith("TB_"): inent = True
            if x.t.startswith("TR_"): inent = False; region = x.t[3]
            if x.t == "K_O:": region = "O"
            if x.t == "K_U:": region = "U"
            if x.t == "K_tail:": region = "T"
            if x.t.startswith(("SP_", "WB_")) or x.t == "K_fallback:": region = "x"
            out.append(x)
            if x.t in ("K_U:", "K_tail:"):
                pts.append(region); out += [I(f"TP_{len(pts)-1}:"), I(f"TPB_{len(pts)-1}")]; addr += 4
            continue
        out.append(x); addr += sz[si]; si += 1
        if addr // 4096 > page: page = addr // 4096; pend = True
        if pend:
            off = addr % 4096
            if region == "x" or off > 60: pend = False; continue
            ok = x.op().startswith("v_mfma") or off >= 40
            if inent or "exec" in x.t or x.op() in ("s_branch", "s_getpc_b64"): ok = False
            if ok:
                pts.append(region); out += [I(f"TP_{len(pts)-1}:"), I(f"TPB_{len(pts)-1}")]; addr += 4; pend = False
    nxt = {}; H = {}
    def chain(ids, ret):
        heads = []
        for w in range(4):
            c = ids[w::4]
            for a, b_ in zip(c, c[1:] + [None]): nxt[a] = f"TP_{b_}" if b_ is not None else ret[w]
            heads.append(f"TP_{c[0]}" if c else ret[w])
        return heads
    sel = lambda r: [i for i, q in enumerate(pts) if q in r]
    H[1] = [chain(sel(("1",)), ["TR_1"] * 4)]
    H[2] = [chain(sel(("2",)), ["TR_2"] * 4)]
    com = chain(sel(("3", "T")), ["TR_3"] * 4)[::-1]
    H[3] = [chain(sel(("O",)), com), chain(sel(("U",)), com)]
    res = []; k = 0
    while k < len(out):
        x = out[k]
        if x.t.startswith("TB_"):
            n = int(x.t[3]); e = entry(n, H[n]); res += e; k += 1 + len(e); continue
        if x.t.startswith("TPB_"): res.append(I(f"s_cbranch_execz {nxt[int(x.t[4:])]}"))
        else: res.append(x)
        k += 1
    return res, pts
def build(fname, opts={}, ts=False):
    g = Gen(opts, ts)
    body = g.build()
    if opts.get("touch", 1):
        body, pts = add_touch(body)
    open(fname, "w").write(wrap(body))

if __name__ == "__main__":
    build("v18.s"); build("v18_ts.s", ts=True); build("v18_fb.s", {"thr": 0x3f800000})
    for ph in "AQSGCM2T": build(f"v18_tr{ph}.s", {"trace": ph})
```
